```python
import torch

def _softmax(x, axis=-1):
    return torch.softmax(x, dim=axis)
def _gelu(x):
    return torch.nn.functional.gelu(x, approximate="tanh")
def _silu(x):
    return torch.nn.functional.silu(x)
def _sigmoid(x):
    return torch.sigmoid(x)
def _layernorm(x, axis=-1, eps=1e-5):
    m = x.mean(dim=axis, keepdim=True)
    v = x.var(dim=axis, keepdim=True, unbiased=False)
    return (x - m) / torch.sqrt(v + eps)
def _scatter_add(tgt, idx, src, axis=0):
    return tgt.clone().index_add_(axis, idx, src)
def _segment_sum(src, seg, n):
    out = torch.zeros((n,) + src.shape[1:], dtype=src.dtype)
    return out.index_add_(0, seg, src)
def _pad(x, pw):
    flat = tuple(v for pair in reversed(pw) for v in pair)
    return torch.nn.functional.pad(x, flat)

kernel_name = 'sequential_preLN__softmax_full_mha__glu_gated_swiglu__prompt'

def setup_inputs():

    _w = (lambda a: (lambda t: t.to(torch.bfloat16) if t.is_floating_point() else t)(torch.as_tensor(a)))
    def _A_setup():
        B, S, D = 1, 2048, 512
        return {
            "x": _w((lambda *s: torch.randn(*s, dtype=torch.bfloat16) * 0.05)(B, S, D)),
            "wqkv": _w((lambda *s: torch.randn(*s, dtype=torch.bfloat16) * 0.05)(D, 3 * D)),
            "wo": _w((lambda *s: torch.randn(*s, dtype=torch.bfloat16) * 0.05)(D, D)),
        }
    _A_in = _A_setup()

    def _B_setup():
        B, S, D, F = 1, 2048, 512, 1376
        return {
            "x": _w((lambda *s: torch.randn(*s, dtype=torch.bfloat16) * 0.05)(B, S, D)),
            "w1": _w((lambda *s: torch.randn(*s, dtype=torch.bfloat16) * 0.4)(D, F) * (2.0 / D) ** 0.5),
            "w3": _w((lambda *s: torch.randn(*s, dtype=torch.bfloat16) * 0.4)(D, F) * (2.0 / D) ** 0.5),
            "w2": _w((lambda *s: torch.randn(*s, dtype=torch.bfloat16) * 0.4)(F, D) * (2.0 / F) ** 0.5),
        }
    _B_in = _B_setup()

    return {
        "A_x": _A_in["x"],
        "A_wqkv": _A_in["wqkv"],
        "A_wo": _A_in["wo"],
        "B_x": _B_in["x"],
        "B_w1": _B_in["w1"],
        "B_w3": _B_in["w3"],
        "B_w2": _B_in["w2"],
    }

def reference(A_x, A_wqkv, A_wo, B_x, B_w1, B_w3, B_w2):
    def _A_ref(x, wqkv, wo):
        B, S, D = x.shape
        H = 32; Dh = D // H
        qkv = (lambda x, *d: x.permute(*d))((x @ wqkv).reshape(B, S, 3, H, Dh), 2, 0, 3, 1, 4)
        q, k, v = qkv[0], qkv[1], qkv[2]
        scale = Dh ** -0.5
        scores = torch.einsum("bhqd,bhkd->bhqk", q, k) * scale
        p = _softmax(scores, axis=-1)
        o = torch.einsum("bhqk,bhkd->bhqd", p, v)
        return (lambda x, *d: x.permute(*d))(o, 0, 2, 1, 3).reshape(B, S, D) @ wo

    def _B_ref(x, w1, w3, w2):
        gate = torch.einsum("bsd,df->bsf", x, w1)
        up = torch.einsum("bsd,df->bsf", x, w3)
        h = _silu(gate) * up
        out = torch.einsum("bsf,fd->bsd", h, w2)
        return out

    x = A_x
    h = x + _A_ref(_layernorm(x, axis=-1), A_wqkv, A_wo)
    h2 = h + _B_ref(_layernorm(h, axis=-1), B_w1, B_w3, B_w2)
    return h2
```

```python
class Asm:
    def __init__(self):
        self.lines = []
        self.uid = 0

    def __call__(self, s):
        for l in s.split("\n"):
            l = l.strip()
            if l:
                self.lines.append("    " + l)

    def label(self, l):
        self.lines.append(l + ":")

    def newlabel(self, base):
        self.uid += 1
        return f"L_{base}_{self.uid}"

    def comment(self, s):
        self.lines.append("    ; " + s)

    def raw(self, s):
        self.lines.append(s)

    def text(self):
        return "\n".join(self.lines) + "\n"


def vr(a, n=1):
    return f"v{a}" if n == 1 else f"v[{a}:{a+n-1}]"


def sr(a, n=1):
    return f"s{a}" if n == 1 else f"s[{a}:{a+n-1}]"


class Regs:
    def __init__(self, start=0, limit=256):
        self.n = start
        self.limit = limit

    def alloc(self, n=1, align=1):
        a = (self.n + align - 1) // align * align
        self.n = a + n
        assert self.n <= self.limit, f"out of registers: {self.n}"
        return a


def mfma(d, a, b, c=None):
    if c is None:
        c = vr(d, 16)
    elif c == 0:
        c = "0"
    else:
        c = vr(c, 16)
    return f"v_mfma_f32_32x32x16_bf16 {vr(d,16)}, {vr(a,4)}, {vr(b,4)}, {c}"


def smfmac(d, a, b, idx):
    return f"v_smfmac_f32_32x32x32_bf16 {vr(d,16)}, {vr(a,4)}, {vr(b,8)}, v{idx}"


def srd(A, d, base, nbytes):
    A(f"s_mov_b32 s{d}, s{base}")
    A(f"s_mov_b32 s{d+1}, s{base+1}")
    A(f"s_mov_b32 s{d+2}, {hex(nbytes)}")
    A(f"s_mov_b32 s{d+3}, 0x00020000")
```

```python
import sys, os
sys.path.insert(0, os.path.dirname(os.path.abspath(__file__)))
from asmlib import *

NAME = "sequential_preLN__softmax_full_mha__glu_gated_swiglu__prompt"
QF = 0x000000
KV = 0x200000
OF = 0x600000
HF = 0x800000
GF = 0xA00000
WS_BYTES = 0x1000000
LOG2E = 1.4426950408889634
import struct
def f32(x):
    return hex(struct.unpack("<I", struct.pack("<f", x))[0])

S_WS, S_A, S_B, S_C = 8, 12, 16, 20
S_W = 24
LDS_ALL = 163840

def prologue(A, name, ptrs, end):
    A.raw(f".globl {name}")
    A.raw(".p2align 8")
    A.raw(f".type {name},@function")
    A.label(name)
    A("s_cmp_ge_u32 s2, 256")
    A(f"s_cbranch_scc1 {end}")
    for n, (off, d, nb) in enumerate(ptrs):
        A(f"s_load_dwordx2 s[{40+2*n}:{41+2*n}], s[0:1], {off}")
    A("v_lshrrev_b32 v1, 6, v0")
    A("v_and_b32 v0, 63, v0")
    A(f"v_readfirstlane_b32 s{S_W}, v1")
    A("s_and_b32 s25, s2, 7")
    A("s_lshr_b32 s26, s2, 3")
    return lambda: _finish_prologue(A, ptrs)

def _finish_prologue(A, ptrs):
    A("s_waitcnt lgkmcnt(0)")
    for n, (off, d, nb) in enumerate(ptrs):
        srd(A, d, 40 + 2 * n, nb)

def descriptor(name, vgpr=256):
    return f""".section .rodata,"a"
.p2align 6
.amdhsa_kernel {name}
  .amdhsa_next_free_vgpr {vgpr}
  .amdhsa_next_free_sgpr 96
  .amdhsa_accum_offset {vgpr}
  .amdhsa_group_segment_fixed_size 0
  .amdhsa_kernarg_size 80
  .amdhsa_user_sgpr_count 2
  .amdhsa_user_sgpr_kernarg_segment_ptr 1
  .amdhsa_system_sgpr_workgroup_id_x 1
.end_amdhsa_kernel
"""

def dma(A, voff, srdn, soff, m0base, m0add):
    A(f"s_add_u32 m0, s{m0base}, {m0add}")
    A("s_nop 0")
    A(f"buffer_load_dwordx4 v{voff}, s[{srdn}:{srdn+3}], {soff} offen lds")

def div12(A, idx, kr, wi):
    A(f"v_mul_u32_u24 v{kr}, 171, v{idx}")
    A(f"v_lshrrev_b32 v{kr}, 11, v{kr}")
    A(f"v_mul_u32_u24 v{wi}, 12, v{kr}")
    A(f"v_sub_u32 v{wi}, v{idx}, v{wi}")
assert all((i * 171) >> 11 == i // 12 for i in range(192))

def halfsum(A, r, t):
    A(f"v_mov_b32 v{t}, v{r}")
    A("s_nop 1")
    A(f"v_permlane32_swap_b32 v{r}, v{t}")
    A("s_nop 1")
    A(f"v_add_f32 v{r}, v{r}, v{t}")

def ln_stats(A, s1, s2, t, nmean, var):
    A(f"v_add_f32 v{s1}, v{s1}, v{s1+1}")
    A(f"v_add_f32 v{s2}, v{s2}, v{s2+1}")
    A(f"v_mov_b32 v{t}, v{s1}")
    A(f"v_mov_b32 v{t+1}, v{s2}")
    A("s_nop 1")
    A(f"v_permlane32_swap_b32 v{s1}, v{t}")
    A(f"v_permlane32_swap_b32 v{s2}, v{t+1}")
    A("s_nop 1")
    A(f"v_add_f32 v{s1}, v{s1}, v{t}")
    A(f"v_add_f32 v{s2}, v{s2}, v{t+1}")
    A(f"v_mul_f32 v{nmean}, {f32(-1.0/512)}, v{s1}")
    A(f"v_mul_f32 v{s2}, {f32(1.0/512)}, v{s2}")
    A(f"v_fma_f32 v{var}, -v{nmean}, v{nmean}, v{s2}")
    A(f"v_max_f32 v{var}, 0, v{var}")
    A(f"v_add_f32 v{var}, {f32(1e-5)}, v{var}")

def pk_fma(d, a, b, c, bc=()):
    hi = [0 if i in bc else 1 for i in range(3)]
    s = f"v_pk_fma_f32 {vr(d,2)}, {vr(a,2)}, {vr(b,2)}, {vr(c,2)}"
    if bc:
        s += f" op_sel_hi:[{hi[0]},{hi[1]},{hi[2]}]"
    return s

def pk_mul(d, a, b, bc=()):
    hi = [0 if i in bc else 1 for i in range(2)]
    s = f"v_pk_mul_f32 {vr(d,2)}, {vr(a,2)}, {vr(b,2)}"
    if bc:
        s += f" op_sel_hi:[{hi[0]},{hi[1]}]"
    return s

def pk_add(d, a, b):
    return f"v_pk_add_f32 {vr(d,2)}, {vr(a,2)}, {vr(b,2)}"

def k1(A, name):
    end = name + "_end"
    fin = prologue(A, name, [(72, S_WS, WS_BYTES), (0, S_A, 2048 * 1024), (8, S_B, 512 * 3072)], end)
    WB, XB, SC = 0, 5 * 12288, 5 * 12288 + 5 * 16384
    ST = SC + 512
    sRB, sP = 27, 28
    A(f"s_and_b32 s{sRB}, s25, 3")
    A(f"s_lshl_b32 s{sRB}, s{sRB}, 2")
    A("s_and_b32 s29, s26, 3")
    A(f"s_add_u32 s{sRB}, s{sRB}, s29")
    A(f"s_lshr_b32 s{sP}, s25, 2")
    A(f"s_lshl_b32 s{sP}, s{sP}, 3")
    A("s_lshr_b32 s29, s26, 2")
    A(f"s_add_u32 s{sP}, s{sP}, s29")
    vWa = 2
    A("v_lshrrev_b32 v3, 5, v0")
    A("v_lshlrev_b32 v3, 3, v3")
    A("v_bfe_u32 v4, v0, 2, 2")
    A("v_add_u32 v3, v3, v4")
    A(f"v_mul_u32_u24 v{vWa}, 192, v3")
    A("v_bfe_u32 v4, v0, 4, 1")
    A(f"v_lshl_add_u32 v{vWa}, v4, 5, v{vWa}")
    A("v_and_b32 v4, 3, v0")
    A(f"v_lshl_add_u32 v{vWa}, v4, 3, v{vWa}")
    vOnes = 5
    A(f"v_mov_b32 v{vOnes}, 0x3f803f80")
    A(f"s_cmp_ge_u32 s{S_W}, 4")
    helper = name + "_helper"
    A(f"s_cbranch_scc1 {helper}")

    R = Regs(8)
    vXa = R.alloc(4); vXb = R.alloc(4)
    s1 = R.alloc(2, 2); s2 = R.alloc(2, 2)
    acc = [R.alloc(16, 4) for _ in range(3)]
    XF = [R.alloc(4, 4) for _ in range(3)]
    WF = [[R.alloc(4, 4) for _ in range(3)] for _ in range(3)]
    A("v_and_b32 v3, 31, v0")
    A("v_lshrrev_b32 v4, 5, v0")
    A("v_bfe_u32 v6, v0, 1, 3")
    A(f"s_lshl_b32 s29, s{S_W}, 12")
    A(f"s_add_u32 s29, s29, {XB}")
    A("v_lshlrev_b32 v7, 7, v3")
    A("v_add_u32 v7, s29, v7")
    for i in range(4):
        A(f"v_or_b32 v{vXa+i}, {2*i}, v4")
        A(f"v_xor_b32 v{vXa+i}, v{vXa+i}, v6")
        A(f"v_lshl_add_u32 v{vXa+i}, v{vXa+i}, 4, v7")
        A(f"v_add_u32 v{vXb+i}, 0x10000, v{vXa+i}")
    for r in (s1, s1 + 1, s2, s2 + 1):
        A(f"v_mov_b32 v{r}, 0")
    fin()
    def reads(s):
        c, sub, b = s >> 2, s & 3, s % 3
        slot = c % 5
        out = []
        if slot < 4:
            out.append(f"ds_read_b128 {vr(XF[b],4)}, v{vXa+sub} offset:{slot*16384}")
        else:
            out.append(f"ds_read_b128 {vr(XF[b],4)}, v{vXb+sub}")
        for u in range(3):
            for sec in range(2):
                off = WB + slot * 12288 + (16 * sub + 4 * sec) * 192 + 64 * u
                out.append(f"ds_read_b64_tr_b16 {vr(WF[b][u]+2*sec,2)}, v{vWa} offset:{off}")
        return out
    A("s_barrier")
    for l in reads(0) + reads(1):
        A(l)
    for s in range(32):
        b = s % 3
        nx = reads(s + 2) if s + 2 < 32 else []
        if nx and (s + 2) % 4 == 0:
            A("s_barrier")
        A(f"s_waitcnt lgkmcnt({7 if s < 31 else 0})")
        dots = []
        for r in range(4):
            dots.append(f"v_dot2_f32_bf16 v{s1+(r&1)}, v{XF[b]+r}, v{vOnes}, v{s1+(r&1)}")
            dots.append(f"v_dot2_f32_bf16 v{s2+(r&1)}, v{XF[b]+r}, v{XF[b]+r}, v{s2+(r&1)}")
        c0 = 0 if s == 0 else None
        A(mfma(acc[0], WF[b][0], XF[b], c0))
        for l in nx[0:3] + dots[0:3]: A(l)
        A(mfma(acc[1], WF[b][1], XF[b], c0))
        for l in nx[3:5] + dots[3:6]: A(l)
        A(mfma(acc[2], XF[b], WF[b][2], c0))
        for l in nx[5:7] + dots[6:8]: A(l)
    T = R.alloc(4, 2); nm = R.alloc(2, 2); rs = R.alloc(2, 2); rq = R.alloc(2, 2); csv = R.alloc(2, 2)
    CS = R.alloc(32, 4); VS = R.alloc(32, 4); PK = R.alloc(24, 4)
    vA = R.alloc(4)
    A("s_nop 2")
    ln_stats(A, s1, s2, T, nm, rs)
    A(f"v_rsq_f32 v{rs}, v{rs}")
    A(f"s_lshl_b32 s29, s{S_W}, 8")
    A(f"s_add_u32 s29, s29, {ST}")
    A(f"v_lshl_add_u32 v{vA}, v0, 2, s29")
    A("v_cmp_gt_u32 vcc, 32, v0")
    A(f"v_mul_f32 v{rq}, {f32(0.25*LOG2E)}, v{rs}")
    A(f"v_lshl_add_u32 v{vA+1}, v4, 4, s29")
    A(f"v_cndmask_b32 v{T}, v{nm}, v{rs}, vcc")
    A(f"ds_write_b32 v{vA}, v{T}")
    A(f"v_lshlrev_b32 v{vA+2}, 4, v4")
    A(f"v_lshlrev_b32 v{vA+3}, 2, v3")
    A("s_waitcnt lgkmcnt(0)")
    for g in range(4):
        A(f"ds_read_b128 {vr(VS+4*g,4)}, v{vA+1} offset:{32*g}")
        A(f"ds_read_b128 {vr(VS+16+4*g,4)}, v{vA+1} offset:{128+32*g}")
    A("s_waitcnt lgkmcnt(0)")
    A("s_barrier")
    A(f"v_add_u32 v{vA+2}, {SC}, v{vA+2}")
    A(f"v_add_u32 v{vA+3}, {SC+256}, v{vA+3}")
    for u in range(2):
        for g in range(4):
            A(f"ds_read_b128 {vr(CS+16*u+4*g,4)}, v{vA+2} offset:{128*u+32*g}")
    A(f"ds_read_b32 v{csv}, v{vA+3}")
    sQ, sK, sV = 30, 31, 32
    A(f"s_lshl_b32 s33, s{sRB}, 2")
    A(f"s_add_u32 s33, s33, s{S_W}")
    A(f"s_lshl_b32 s{sQ}, s{sP}, 17")
    A("s_lshl_b32 s34, s33, 10")
    A(f"s_add_u32 s{sQ}, s{sQ}, s34")
    if QF: A(f"s_add_u32 s{sQ}, s{sQ}, {QF}")
    A(f"s_add_u32 s35, s{sQ}, 0x10000")
    A(f"s_lshl_b32 s{sK}, s{sP}, 18")
    A("s_lshl_b32 s34, s33, 11")
    A(f"s_add_u32 s{sK}, s{sK}, s34")
    A(f"s_add_u32 s{sK}, s{sK}, {KV}")
    A(f"s_add_u32 s36, s{sK}, 0x20000")
    vQo, vKo, vVo = XF[0], XF[0] + 1, XF[0] + 2
    A(f"v_lshlrev_b32 v{vQo}, 4, v0")
    A(f"v_and_b32 v{vKo}, 0x33, v0")
    A(f"v_bfe_u32 v{T}, v0, 2, 1")
    A(f"v_lshl_or_b32 v{vKo}, v{T}, 3, v{vKo}")
    A(f"v_bfe_u32 v{T}, v0, 3, 1")
    A(f"v_lshl_or_b32 v{vKo}, v{T}, 2, v{vKo}")
    A(f"v_lshlrev_b32 v{vKo}, 4, v{vKo}")
    A(f"v_and_b32 v{vVo}, 15, v0")
    A(f"v_lshlrev_b32 v{vVo}, 4, v{vVo}")
    A(f"v_lshl_or_b32 v{vVo}, v4, 8, v{vVo}")
    A(f"v_bfe_u32 v{T}, v0, 4, 1")
    A(f"v_lshl_or_b32 v{vVo}, v{T}, 17, v{vVo}")
    A("s_waitcnt lgkmcnt(5)")
    for u in range(3):
        a = acc[u]
        if u == 1: A("s_waitcnt lgkmcnt(1)")
        if u == 2: A("s_waitcnt lgkmcnt(0)")
        for r in range(0, 16, 2):
            if u < 2:
                A(pk_fma(a + r, CS + 16 * u + r, nm, a + r, bc=(1,)))
            else:
                A(pk_fma(a + r, VS + 16 + r, csv, a + r, bc=(1,)))
        for r in range(0, 16, 2):
            if u < 2:
                A(pk_mul(a + r, a + r, rq if u == 0 else rs, bc=(1,)))
            else:
                A(pk_mul(a + r, a + r, VS + r))
        for r in range(8):
            A(f"v_cvt_pk_bf16_f32 v{PK+8*u+r}, v{a+2*r}, v{a+2*r+1}")
        if u == 0:
            A(f"buffer_store_dwordx4 {vr(PK,4)}, v{vQo}, s[{S_WS}:{S_WS+3}], s{sQ} offen")
            A(f"buffer_store_dwordx4 {vr(PK+4,4)}, v{vQo}, s[{S_WS}:{S_WS+3}], s35 offen")
        elif u == 1:
            A(f"buffer_store_dwordx4 {vr(PK+8,4)}, v{vKo}, s[{S_WS}:{S_WS+3}], s{sK} offen")
            A(f"buffer_store_dwordx4 {vr(PK+12,4)}, v{vKo}, s[{S_WS}:{S_WS+3}], s36 offen")
        else:
            A(f"buffer_store_dwordx4 {vr(PK+16,4)}, v{vVo}, s[{S_WS}:{S_WS+3}], s{sK} offen offset:1024")
            A(f"buffer_store_dwordx4 {vr(PK+20,4)}, v{vVo}, s[{S_WS}:{S_WS+3}], s{sK} offen offset:1536")
    A("s_waitcnt vmcnt(0)")
    A("s_endpgm")

    A.label(helper)
    vXg, vWg = 8, 12
    sJ = 29
    A(f"s_sub_u32 s{sJ}, s{S_W}, 4")
    A(f"s_lshl_b32 s30, s{sRB}, 17")
    A(f"s_lshl_b32 s31, s{sJ}, 15")
    A("s_add_u32 s30, s30, s31")
    A("v_lshrrev_b32 v16, 3, v0")
    A("v_lshlrev_b32 v16, 10, v16")
    A("v_add_u32 v16, s30, v16")
    A("v_and_b32 v17, 7, v0")
    A("v_lshrrev_b32 v18, 4, v0")
    A("v_xor_b32 v17, v17, v18")
    A(f"v_lshl_add_u32 v{vXg}, v17, 4, v16")
    A(f"v_xor_b32 v{vXg+1}, 64, v{vXg}")
    A(f"v_add_u32 v{vXg+1}, 0x2000, v{vXg+1}")
    A(f"v_add_u32 v{vXg+2}, 0x4000, v{vXg}")
    A(f"v_add_u32 v{vXg+3}, 0x4000, v{vXg+1}")
    A(f"s_mul_i32 s30, s{sJ}, {16*3072}")
    A(f"s_lshl_b32 s31, s{sP}, 6")
    A("s_add_u32 s30, s30, s31")
    for r in range(3):
        A(f"v_add_u32 v16, {64*r}, v0")
        div12(A, 16, 17, 18)
        A(f"v_mul_u32_u24 v17, 3072, v17")
        A("v_lshrrev_b32 v19, 2, v18")
        A("v_lshl_add_u32 v17, v19, 10, v17")
        A("v_and_b32 v18, 3, v18")
        A("v_lshl_add_u32 v17, v18, 4, v17")
        A(f"v_add_u32 v{vWg+r}, s30, v17")
    sMX, sMW = 32, 33
    A(f"s_lshl_b32 s{sMX}, s{sJ}, 12")
    A(f"s_mul_i32 s{sMW}, s{sJ}, 3072")
    fin()
    def issue(c):
        slot = c % 5
        A(f"s_movk_i32 s34, {c*128}")
        A(f"s_mov_b32 s35, {c*64*3072}")
        for q in range(4):
            dma(A, vXg + q, S_A, "s34", sMX, XB + slot * 16384 + q * 1024)
            if q < 3:
                dma(A, vWg + q, S_B, "s35", sMW, WB + slot * 12288 + q * 1024)
    for c in range(5):
        issue(c)
    cs = 20; CF = 24
    A(f"v_mov_b32 v{cs}, 0")
    A(f"v_mov_b32 v{cs+1}, 0")
    A(f"s_min_u32 s36, s{sJ}, 2")
    A("s_lshl_b32 s36, s36, 6")
    A(f"v_add_u32 v{vWa}, s36, v{vWa}")
    issued = 35
    for c in range(8):
        A(f"s_waitcnt vmcnt({issued - 7*(c+1)})")
        A("s_barrier")
        if 2 <= c <= 4:
            issue(c + 3); issued += 7
        slot = c % 5
        for q in range(8):
            A(f"ds_read_b64_tr_b16 {vr(CF+2*q,2)}, v{vWa} offset:{WB + slot*12288 + (16*(q>>1)+4*(q&1))*192}")
        A("s_waitcnt lgkmcnt(0)")
        for r in range(16):
            A(f"v_dot2_f32_bf16 v{cs+(r&1)}, v{CF+r}, v{vOnes}, v{cs+(r&1)}")
    A("s_nop 2")
    A(f"v_add_f32 v{cs}, v{cs}, v{cs+1}")
    halfsum(A, cs, cs + 1)
    A("v_and_b32 v16, 31, v0")
    A("s_lshl_b32 s36, s36, 1")
    A(f"s_add_u32 s36, s36, {SC}")
    A("v_lshl_add_u32 v16, v16, 2, s36")
    A(f"ds_write_b32 v16, v{cs}")
    A("s_waitcnt lgkmcnt(0)")
    A("s_barrier")
    A.label(end)
    A("s_endpgm")

def k2(A, name):
    end = name + "_end"
    fin = prologue(A, name, [(72, S_WS, WS_BYTES)], end)
    sHead, sQB, sKH, sPW = 27, 28, 29, 30
    A(f"s_lshl_b32 s{sHead}, s25, 2")
    A("s_and_b32 s31, s26, 3")
    A(f"s_add_u32 s{sHead}, s{sHead}, s31")
    A(f"s_lshr_b32 s{sQB}, s26, 2")
    A(f"s_lshr_b32 s{sKH}, s{S_W}, 2")
    A(f"s_and_b32 s{sPW}, s{S_W}, 3")
    R = Regs(2)
    vL16 = R.alloc(); vIdx = R.alloc(); vKa = R.alloc(); vVa = R.alloc(); T = R.alloc(2, 2)
    Qa = R.alloc(4, 4); Qb = R.alloc(4, 4)
    Na = R.alloc(16, 4); Nb = R.alloc(16, 4)
    Oa = R.alloc(16, 4); Ob = R.alloc(16, 4)
    Sa = R.alloc(16, 4); Sb = R.alloc(16, 4)
    K = [R.alloc(4, 4), R.alloc(4, 4)]
    V = [R.alloc(8, 4), R.alloc(8, 4)]
    sQo, sKVo, sM0 = 32, 33, 34
    A(f"v_lshlrev_b32 v{vL16}, 4, v0")
    A(f"s_lshl_b32 s{sQo}, s{sHead}, 16")
    A(f"s_lshl_b32 s31, s{sQB}, 13")
    A(f"s_add_u32 s{sQo}, s{sQo}, s31")
    A(f"s_lshl_b32 s31, s{sPW}, 11")
    A(f"s_add_u32 s{sQo}, s{sQo}, s31")
    if QF: A(f"s_add_u32 s{sQo}, s{sQo}, {QF}")
    A(f"s_lshl_b32 s{sKVo}, s{sHead}, 17")
    A(f"s_add_u32 s{sKVo}, s{sKVo}, {KV}")
    A(f"s_lshl_b32 s{sM0}, s{S_W}, 10")
    A(f"s_add_u32 s35, s{sKVo}, s{sM0}")
    fin()
    A(f"buffer_load_dwordx4 {vr(Qa,4)}, v{vL16}, s[{S_WS}:{S_WS+3}], s{sQo} offen")
    A(f"buffer_load_dwordx4 {vr(Qb,4)}, v{vL16}, s[{S_WS}:{S_WS+3}], s{sQo} offen offset:1024")
    for i in range(16):
        dma(A, vL16, S_WS, "s35", sM0, i * 8192)
        if i < 15: A("s_add_u32 s35, s35, 0x2000")
    A(f"v_mov_b32 v{vIdx}, 0xdddddddd")
    A(f"s_lshl_b32 s31, s{sKH}, 11")
    A(f"v_add_u32 v{vKa}, s31, v{vL16}")
    A(f"v_and_b32 v{T}, 15, v0")
    A(f"v_lshlrev_b32 v{vVa}, 4, v{T}")
    A(f"v_lshrrev_b32 v{T}, 5, v0")
    A(f"v_lshl_add_u32 v{vVa}, v{T}, 8, v{vVa}")
    A(f"v_add_u32 v{vVa}, s31, v{vVa}")
    A(f"v_and_b32 v{T}, 27, v0")
    A(f"v_cmp_eq_u32 vcc, 16, v{T}")
    A(f"v_mov_b32 v{T+1}, 0x3f803f80")
    A(f"v_mov_b32 v{T}, 0")
    for r in range(8):
        A(f"v_cndmask_b32 v{V[0]+r}, v{T}, v{T+1}, vcc")
        A(f"v_cndmask_b32 v{V[1]+r}, v{T}, v{T+1}, vcc")
    for r in range(16):
        A(f"v_mov_b32 v{Oa+r}, 0")
        A(f"v_mov_b32 v{Ob+r}, 0")
        if r >= 8: A(f"v_mov_b32 v{Sb+r}, 0")
    sHalf = 36
    A(f"s_mov_b32 s{sHalf}, 0x0000ffff")
    A(f"s_mov_b32 s{sHalf+1}, 0x0000ffff")
    A("s_waitcnt vmcnt(13)")
    A("s_barrier")
    A(f"ds_read_b128 {vr(K[1],4)}, v{vL16}")
    A(f"ds_read_b128 {vr(K[0],4)}, v{vKa}")
    A(f"s_mov_b64 exec, s[{sHalf}:{sHalf+1}]")
    A(f"ds_read_b128 {vr(V[0],4)}, v{vVa} offset:1024")
    A(f"ds_read_b128 {vr(V[0]+4,4)}, v{vVa} offset:1536")
    A("s_mov_b64 exec, -1")
    A("s_waitcnt lgkmcnt(3)")
    A(mfma(Na, K[1], Qa, 0))
    A(mfma(Nb, K[1], Qb, 0))
    A(f"ds_read_b128 {vr(K[1],4)}, v{vKa} offset:4096")
    A("s_nop 7")
    A("s_nop 1")
    def rowmax(N):
        A(f"v_max3_f32 v{T}, v{N}, v{N+1}, v{N+2}")
        A(f"v_max3_f32 v{T+1}, v{N+3}, v{N+4}, v{N+5}")
        for r in range(6, 14, 4):
            A(f"v_max3_f32 v{T}, v{N+r}, v{N+r+1}, v{T}")
            A(f"v_max3_f32 v{T+1}, v{N+r+2}, v{N+r+3}, v{T+1}")
        A(f"v_max3_f32 v{T}, v{N+14}, v{N+15}, v{T}")
        A(f"v_max_f32 v{T}, v{T}, v{T+1}")
        A(f"v_mov_b32 v{T+1}, v{T}")
        A("s_nop 1")
        A(f"v_permlane32_swap_b32 v{T}, v{T+1}")
        A("s_nop 1")
        A(f"v_max_f32 v{T}, v{T}, v{T+1}")
        A(f"v_sub_f32 v{T}, 0, v{T}")
        for r in range(16):
            A(f"v_mov_b32 v{N+r}, v{T}")
    rowmax(Na)
    A("s_waitcnt lgkmcnt(3)")
    A("s_nop 0")
    A(mfma(Sa, K[0], Qa, Na))
    rowmax(Nb)
    def ex(S, lo, hi):
        for r in range(lo, hi):
            A(f"v_exp_f32 v{S+r}, v{S+r}")
    sTrip = 38
    A(f"s_mov_b32 s{sTrip}, 0")
    loop = name + "_loop"
    A.raw(".p2align 6")
    A.label(loop)
    p1, p2, p3 = 2, 7, 12
    for t in range(4):
        c = t & 1; n = c ^ 1
        ex(Sa, 0, p1)
        A(smfmac(Ob, V[n] + 4, Sb + 8, vIdx))
        ex(Sa, p1, p2)
        A(mfma(Sb, K[c], Qb, Nb))
        A(f"s_mov_b64 exec, s[{sHalf}:{sHalf+1}]")
        A(f"ds_read_b128 {vr(V[n],4)}, v{vVa} offset:{4096*(t+1)+1024}")
        A(f"ds_read_b128 {vr(V[n]+4,4)}, v{vVa} offset:{4096*(t+1)+1536}")
        A("s_mov_b64 exec, -1")
        ex(Sa, p2, p3)
        A("s_waitcnt lgkmcnt(2)")
        A(smfmac(Oa, V[c], Sa, vIdx))
        A(f"ds_read_b128 {vr(K[c],4)}, v{vKa} offset:{4096*(t+2)}")
        ex(Sa, p3, 16)
        ex(Sb, 0, p1)
        A(smfmac(Oa, V[c] + 4, Sa + 8, vIdx))
        ex(Sb, p1, p2)
        A(mfma(Sa, K[n], Qa, Na))
        ex(Sb, p2, p3)
        A(smfmac(Ob, V[c], Sb, vIdx))
        if t == 3:
            A(f"v_add_u32 v{vKa}, 0x4000, v{vKa}")
            A(f"v_add_u32 v{vVa}, 0x4000, v{vVa}")
        ex(Sb, p3, 16)
    skip = name + "_skip"
    A(f"s_cmp_lg_u32 s{sTrip}, 0")
    A(f"s_cbranch_scc1 {skip}")
    A("s_waitcnt vmcnt(0)")
    A("s_barrier")
    A.label(skip)
    A(f"s_add_u32 s{sTrip}, s{sTrip}, 1")
    A(f"s_cmp_lt_u32 s{sTrip}, 8")
    A(f"s_cbranch_scc1 {loop}")
    A(smfmac(Ob, V[1] + 4, Sb + 8, vIdx))
    XCH = 139264
    A(f"s_mul_i32 s31, s{S_W}, 2304")
    A(f"s_add_u32 s31, s31, {XCH}")
    A(f"v_add_u32 v{vKa}, s31, v{vL16}")
    A(f"v_lshl_add_u32 v{T}, v0, 2, s31")
    A(f"s_xor_b32 s39, s{S_W}, 4")
    A("s_mul_i32 s31, s39, 2304")
    A(f"s_add_u32 s31, s31, {XCH}")
    A(f"v_add_u32 v{vVa}, s31, v{vL16}")
    A(f"v_lshl_add_u32 v{T+1}, v0, 2, s31")
    A("s_waitcnt lgkmcnt(0)")
    A("s_nop 7")
    lb = name + "_kh1"; lj = name + "_join"
    A(f"s_cmp_eq_u32 s{sKH}, 1")
    A(f"s_cbranch_scc1 {lb}")
    A(f"ds_write_b128 v{vKa}, {vr(Ob,4)}")
    A(f"ds_write_b128 v{vKa}, {vr(Ob+4,4)} offset:1024")
    A(f"ds_write_b32 v{T}, v{Ob+8} offset:2048")
    A(f"s_branch {lj}")
    A.label(lb)
    A(f"ds_write_b128 v{vKa}, {vr(Oa,4)}")
    A(f"ds_write_b128 v{vKa}, {vr(Oa+4,4)} offset:1024")
    A(f"ds_write_b32 v{T}, v{Oa+8} offset:2048")
    A("s_nop 1")
    for r in range(9):
        A(f"v_mov_b32 v{Oa+r}, v{Ob+r}")
    for r in range(4):
        A(f"v_mov_b32 v{Qa+r}, v{Qb+r}")
    A.label(lj)
    A("s_waitcnt lgkmcnt(0)")
    A("s_barrier")
    A(f"ds_read_b128 {vr(Sa,4)}, v{vVa}")
    A(f"ds_read_b128 {vr(Sa+4,4)}, v{vVa} offset:1024")
    A(f"ds_read_b32 v{Sa+8}, v{T+1} offset:2048")
    A(f"s_lshl_b32 s31, s{sQB}, 3")
    A(f"s_lshl_b32 s39, s{sPW}, 1")
    A("s_add_u32 s31, s31, s39")
    A(f"s_add_u32 s31, s31, s{sKH}")
    A("s_lshl_b32 s31, s31, 15")
    A(f"s_lshl_b32 s39, s{sHead}, 10")
    A("s_add_u32 s31, s31, s39")
    A(f"s_add_u32 s31, s31, {OF}")
    A("s_waitcnt lgkmcnt(0)")
    A(f"v_add_f32 v{Oa+8}, v{Oa+8}, v{Sa+8}")
    for r in range(0, 8, 2):
        A(pk_add(Oa + r, Oa + r, Sa + r))
    fb = name + "_fallback"; fz = name + "_final"
    A(f"v_mov_b32 v{T}, {f32(2.0**30)}")
    A(f"v_cmp_nge_f32 vcc, v{T}, v{Oa+8}")
    A(f"s_cbranch_vccnz {fb}")
    A.label(fz)
    A(f"v_rcp_f32 v{T}, v{Oa+8}")
    A("s_nop 0")
    for r in range(0, 8, 2):
        A(pk_mul(Oa + r, Oa + r, T, bc=(1,)))
    for r in range(4):
        A(f"v_cvt_pk_bf16_f32 v{Sa+r}, v{Oa+2*r}, v{Oa+2*r+1}")
    A(f"buffer_store_dwordx4 {vr(Sa,4)}, v{vL16}, s[{S_WS}:{S_WS+3}], s31 offen")
    A("s_waitcnt vmcnt(0)")
    A.label(end)
    A("s_endpgm")
    A.label(fb)
    A(f"v_mov_b32 v{Nb}, 0xff800000")
    A(f"s_mov_b32 s35, s{sKVo}")
    A(f"s_mov_b32 s{sTrip}, 0")
    l1 = name + "_fb1"
    A.label(l1)
    A(f"buffer_load_dwordx4 {vr(K[0],4)}, v{vL16}, s[{S_WS}:{S_WS+3}], s35 offen")
    A("s_waitcnt vmcnt(0)")
    A(mfma(Sa, K[0], Qa, 0))
    A("s_nop 7")
    A("s_nop 7")
    for r in range(0, 16, 2):
        A(f"v_max3_f32 v{Nb}, v{Sa+r}, v{Sa+r+1}, v{Nb}")
    A("s_add_u32 s35, s35, 2048")
    A(f"s_add_u32 s{sTrip}, s{sTrip}, 1")
    A(f"s_cmp_lt_u32 s{sTrip}, 64")
    A(f"s_cbranch_scc1 {l1}")
    A(f"v_mov_b32 v{T+1}, v{Nb}")
    A("s_nop 1")
    A(f"v_permlane32_swap_b32 v{Nb}, v{T+1}")
    A("s_nop 1")
    A(f"v_max_f32 v{T}, v{Nb}, v{T+1}")
    A(f"v_sub_f32 v{T}, 0, v{T}")
    for r in range(16):
        A(f"v_mov_b32 v{Na+r}, v{T}")
        A(f"v_mov_b32 v{Oa+r}, 0")
    A(f"v_and_b32 v{T}, 15, v0")
    A(f"v_lshlrev_b32 v{vVa}, 4, v{T}")
    A(f"v_lshrrev_b32 v{T}, 5, v0")
    A(f"v_lshl_add_u32 v{vVa}, v{T}, 8, v{vVa}")
    A(f"s_mov_b32 s35, s{sKVo}")
    A(f"s_mov_b32 s{sTrip}, 0")
    l2 = name + "_fb2"
    A.label(l2)
    A(f"buffer_load_dwordx4 {vr(K[0],4)}, v{vL16}, s[{S_WS}:{S_WS+3}], s35 offen")
    A(f"s_mov_b64 exec, s[{sHalf}:{sHalf+1}]")
    A(f"buffer_load_dwordx4 {vr(V[0],4)}, v{vVa}, s[{S_WS}:{S_WS+3}], s35 offen offset:1024")
    A(f"buffer_load_dwordx4 {vr(V[0]+4,4)}, v{vVa}, s[{S_WS}:{S_WS+3}], s35 offen offset:1536")
    A("s_mov_b64 exec, -1")
    A("s_waitcnt vmcnt(0)")
    A(mfma(Sa, K[0], Qa, Na))
    A("s_nop 7")
    A("s_nop 7")
    ex(Sa, 0, 16)
    A("s_nop 1")
    A(smfmac(Oa, V[0], Sa, vIdx))
    A(smfmac(Oa, V[0] + 4, Sa + 8, vIdx))
    A("s_nop 7")
    A("s_add_u32 s35, s35, 2048")
    A(f"s_add_u32 s{sTrip}, s{sTrip}, 1")
    A(f"s_cmp_lt_u32 s{sTrip}, 64")
    A(f"s_cbranch_scc1 {l2}")
    A("s_nop 7")
    A("s_nop 7")
    A(f"s_branch {fz}")

def gemm64(A, name, which):
    end = name + "_end"
    if which == 3:
        NK, ACT, wptr, wbytes = 32, OF, 16, 512 * 1024
        ptrs = [(72, S_WS, WS_BYTES), (wptr, S_B, wbytes), (0, S_C, 2048 * 1024)]
    else:
        NK, ACT, wptr, wbytes = 86, GF, 48, 1376 * 1024
        ptrs = [(72, S_WS, WS_BYTES), (wptr, S_B, wbytes), (56, S_C, 2048 * 1024)]
    NS = NK // 2
    NCH = (NK + 7) // 8
    SLOTS = min(NCH, 9)
    SCR = 147456
    fin = prologue(A, name, ptrs, end)
    sRB, sCB = 27, 28
    A(f"s_lshl_b32 s{sRB}, s25, 2")
    A("s_and_b32 s29, s26, 3")
    A(f"s_add_u32 s{sRB}, s{sRB}, s29")
    A(f"s_lshr_b32 s{sCB}, s26, 2")
    helper = name + "_helper"
    A(f"s_cmp_ge_u32 s{S_W}, 4")
    A(f"s_cbranch_scc1 {helper}")
    R = Regs(2)
    vL16 = R.alloc(); T = R.alloc(4, 2)
    nwin = 1 if which == 3 else 3
    vA = [[R.alloc() for _ in range(nwin)] for _ in range(2)]
    vRes = R.alloc()
    RES = R.alloc(8, 4)
    acc = [R.alloc(16, 4), R.alloc(16, 4)]
    WF = [[R.alloc(4, 4) for _ in range(2)] for _ in range(3)]
    AF = [R.alloc(4, 4) for _ in range(NS)]
    sRU, sKH, sAo = 29, 30, 31
    A(f"s_and_b32 s{sRU}, s{S_W}, 1")
    A(f"s_lshl_b32 s32, s{sRB}, 1")
    A(f"s_add_u32 s{sRU}, s{sRU}, s32")
    A(f"s_lshr_b32 s{sKH}, s{S_W}, 1")
    A(f"s_mul_i32 s{sAo}, s{sRU}, {NK*1024}")
    A(f"s_lshl_b32 s32, s{sKH}, 10")
    A(f"s_add_u32 s{sAo}, s{sAo}, s32")
    A(f"s_add_u32 s{sAo}, s{sAo}, {ACT}")
    A(f"v_lshlrev_b32 v{vL16}, 4, v0")
    sCU = 33
    A(f"s_lshl_b32 s{sCU}, s{sCB}, 1")
    A(f"s_add_u32 s{sCU}, s{sCU}, s{sKH}")
    if which == 3:
        A(f"v_and_b32 v{T}, 31, v0")
        A(f"v_lshlrev_b32 v{vRes}, 10, v{T}")
        A(f"v_lshrrev_b32 v{T}, 5, v0")
        A(f"v_lshl_add_u32 v{vRes}, v{T}, 3, v{vRes}")
        A(f"s_lshl_b32 s34, s{sRU}, 15")
        A(f"s_lshl_b32 s35, s{sCU}, 6")
        A("s_add_u32 s34, s34, s35")
    else:
        A(f"s_lshl_b32 s34, s{sRU}, 15")
        A(f"s_lshl_b32 s35, s{sCU}, 11")
        A("s_add_u32 s34, s34, s35")
        A(f"s_add_u32 s34, s34, {HF}")
    fin()
    if which == 3:
        for g in range(4):
            A(f"buffer_load_dwordx2 {vr(RES+2*g,2)}, v{vRes}, s[{S_C}:{S_C+3}], s34 offen offset:{16*g}")
    else:
        for g in range(2):
            A(f"buffer_load_dwordx4 {vr(RES+4*g,4)}, v{vL16}, s[{S_WS}:{S_WS+3}], s34 offen offset:{1024*g}")
    for n in range(NS):
        A(f"buffer_load_dwordx4 {vr(AF[n],4)}, v{vL16}, s[{S_WS}:{S_WS+3}], s{sAo} offen offset:{2048*(n&1)}")
        if n & 1 and n + 1 < NS:
            A(f"s_add_u32 s{sAo}, s{sAo}, 4096")
    A(f"v_lshrrev_b32 v{T}, 5, v0")
    A(f"v_lshlrev_b32 v{T}, 2, v{T}")
    A(f"v_bfe_u32 v{T+1}, v0, 2, 2")
    A(f"v_add_u32 v{T}, v{T}, v{T+1}")
    A(f"v_lshlrev_b32 v{T}, 7, v{T}")
    A(f"v_bfe_u32 v{T+1}, v0, 4, 1")
    A(f"v_lshl_add_u32 v{T}, v{T+1}, 5, v{T}")
    A(f"v_and_b32 v{T+1}, 3, v0")
    A(f"v_lshl_add_u32 v{T}, v{T+1}, 3, v{T}")
    A(f"v_bfe_u32 v{T+1}, v0, 3, 1")
    A(f"v_xor_b32 v{T+1}, s{sKH}, v{T+1}")
    A(f"v_lshl_add_u32 v{T}, v{T+1}, 6, v{T}")
    A(f"s_lshl_b32 s32, s{sKH}, 11")
    A(f"v_add_u32 v{vA[0][0]}, s32, v{T}")
    A(f"v_xor_b32 v{vA[1][0]}, 64, v{vA[0][0]}")
    for w in range(1, nwin):
        for k in range(2):
            A(f"v_add_u32 v{vA[k][w]}, {w*65536}, v{vA[k][0]}")
    def reads(n):
        c = n >> 2
        off = (c % SLOTS) * 16384 + (n & 3) * 4096
        out = []
        for k in range(2):
            for sec in range(2):
                o = off + sec * 1024
                out.append(f"ds_read_b64_tr_b16 {vr(WF[n%3][k]+2*sec,2)}, v{vA[k][o>>16]} offset:{o&0xffff}")
        return out
    A("s_barrier")
    for l in reads(0) + reads(1): A(l)
    for n in range(NS):
        nx = reads(n + 2) if n + 2 < NS else []
        if nx and (n + 2) % 4 == 0:
            A("s_barrier")
        A(f"s_waitcnt vmcnt({NS-1-n}) lgkmcnt({4 if n < NS-1 else 0})")
        c0 = 0 if n == 0 else None
        A(mfma(acc[0], WF[n % 3][0], AF[n], c0))
        for l in nx[0:2]: A(l)
        A(mfma(acc[1], WF[n % 3][1], AF[n], c0))
        for l in nx[2:4]: A(l)
    A(f"s_lshl_b32 s32, s{S_W}, 12")
    A(f"s_add_u32 s32, s32, {SCR}")
    A(f"v_add_u32 v{T}, s32, v{vL16}")
    A(f"s_xor_b32 s32, s32, 0x2000")
    A(f"v_add_u32 v{T+1}, s32, v{vL16}")
    UN = AF[0]
    A("s_nop 7")
    for q in range(4):
        A(f"ds_write_b128 v{T}, {vr(acc[1]+4*q,4)} offset:{1024*q}")
    for r in range(8):
        A(f"v_lshlrev_b32 v{UN+2*r}, 16, v{RES+r}")
        A(f"v_and_b32 v{UN+2*r+1}, 0xffff0000, v{RES+r}")
    A("s_waitcnt lgkmcnt(0)")
    A("s_barrier")
    for q in range(4):
        A(f"ds_read_b128 {vr(acc[1]+4*q,4)}, v{T+1} offset:{1024*q}")
    for r in range(0, 16, 2):
        A(pk_add(acc[0] + r, acc[0] + r, UN + r))
    if which == 3:
        A(f"s_lshl_b32 s34, s{sRU}, 15")
        A(f"s_lshl_b32 s35, s{sCU}, 11")
        A("s_add_u32 s34, s34, s35")
        A(f"s_add_u32 s34, s34, {HF}")
    else:
        A(f"v_and_b32 v{T}, 31, v0")
        A(f"v_lshlrev_b32 v{vRes}, 10, v{T}")
        A(f"v_lshrrev_b32 v{T}, 5, v0")
        A(f"v_lshl_add_u32 v{vRes}, v{T}, 4, v{vRes}")
        A(f"s_lshl_b32 s34, s{sRU}, 15")
        A(f"s_lshl_b32 s35, s{sCU}, 6")
        A("s_add_u32 s34, s34, s35")
    for q in range(4):
        A(f"s_waitcnt lgkmcnt({3-q})")
        A(pk_add(acc[0] + 4 * q, acc[0] + 4 * q, acc[1] + 4 * q))
        A(pk_add(acc[0] + 4 * q + 2, acc[0] + 4 * q + 2, acc[1] + 4 * q + 2))
    for r in range(8):
        A(f"v_cvt_pk_bf16_f32 v{RES+r}, v{acc[0]+2*r}, v{acc[0]+2*r+1}")
    if which == 3:
        for g in range(2):
            A(f"buffer_store_dwordx4 {vr(RES+4*g,4)}, v{vL16}, s[{S_WS}:{S_WS+3}], s34 offen offset:{1024*g}")
    else:
        A("s_nop 1")
        for g in range(2):
            A(f"v_permlane32_swap_b32 v{RES+4*g}, v{RES+4*g+2}")
            A(f"v_permlane32_swap_b32 v{RES+4*g+1}, v{RES+4*g+3}")
        A("s_nop 1")
        for g in range(2):
            A(f"buffer_store_dwordx4 {vr(RES+4*g,4)}, v{vRes}, s[{S_C}:{S_C+3}], s34 offen offset:{32*g}")
    A("s_waitcnt vmcnt(0)")
    A("s_endpgm")
    A.label(helper)
    sJ = 29
    A(f"s_sub_u32 s{sJ}, s{S_W}, 4")
    A("v_lshrrev_b32 v2, 3, v0")
    A("v_lshlrev_b32 v2, 10, v2")
    A("v_bfe_u32 v3, v0, 4, 1")
    A("v_lshlrev_b32 v3, 2, v3")
    A("v_and_b32 v4, 7, v0")
    A("v_xor_b32 v3, v3, v4")
    A("v_lshl_add_u32 v2, v3, 4, v2")
    A(f"s_lshl_b32 s30, s{sCB}, 7")
    A(f"s_lshl_b32 s31, s{sJ}, 13")
    A("s_add_u32 s30, s30, s31")
    A("v_add_u32 v2, s30, v2")
    A(f"s_lshl_b32 s32, s{sJ}, 10")
    fin()
    def npieces(c):
        return min(8, NK - 8 * c) * 2 // 4
    def issue(c):
        for q in range(npieces(c)):
            A(f"s_mov_b32 s33, {(c*16 + q*4)*8192}")
            dma(A, 2, S_B, "s33", 32, (c % SLOTS) * 16384 + q * 4096)
    issued = 0
    for c in range(SLOTS):
        issue(c); issued += npieces(c)
    need = 0
    for c in range(NCH):
        need += npieces(c)
        A(f"s_waitcnt vmcnt({issued - need})")
        A("s_barrier")
        if c >= 2 and c - 2 + SLOTS < NCH:
            issue(c - 2 + SLOTS); issued += npieces(c - 2 + SLOTS)
    A("s_barrier")
    A.label(end)
    A("s_endpgm")

def k4(A, name):
    end = name + "_end"
    fin = prologue(A, name, [(72, S_WS, WS_BYTES), (32, S_A, 512 * 2752), (40, S_B, 512 * 2752)], end)
    CH = 12352; SLOTS = 13; SC = SLOTS * CH
    assert SC + 768 <= LDS_ALL
    sRB, sU0 = 27, 28
    A(f"s_lshl_b32 s{sRB}, s25, 1")
    A("s_and_b32 s29, s26, 1")
    A(f"s_add_u32 s{sRB}, s{sRB}, s29")
    A(f"s_lshr_b32 s{sU0}, s26, 1")
    A(f"s_mul_i32 s{sU0}, s{sU0}, {16*0x5556}")
    A(f"s_lshr_b32 s{sU0}, s{sU0}, 16")
    assert all((c * 16 * 0x5556) >> 16 == (16 * c) // 3 for c in range(16))
    vWa = 2
    A("v_lshrrev_b32 v6, 5, v0")
    A("v_lshlrev_b32 v5, 2, v6")
    A("v_bfe_u32 v7, v0, 2, 2")
    A("v_add_u32 v5, v5, v7")
    A(f"v_mul_u32_u24 v{vWa}, 192, v5")
    A("v_bfe_u32 v7, v0, 4, 1")
    A("v_mul_u32_u24 v7, 6176, v7")
    A(f"v_add_u32 v{vWa}, v{vWa}, v7")
    A("v_and_b32 v7, 3, v0")
    A(f"v_lshl_add_u32 v{vWa}, v7, 3, v{vWa}")
    vOnes = 5
    A(f"v_mov_b32 v{vOnes}, 0x3f803f80")
    helper = name + "_helper"
    A(f"s_cmp_ge_u32 s{S_W}, 4")
    A(f"s_cbranch_scc1 {helper}")
    A(f"v_add_u32 v{vWa+1}, 0x10000, v{vWa}")
    A(f"v_add_u32 v{vWa+2}, 0x20000, v{vWa}")
    R = Regs(7)
    vL16 = R.alloc()
    s1 = R.alloc(2, 2); s2 = R.alloc(2, 2); T = R.alloc(2, 2); nm = R.alloc(2, 2); var = R.alloc(2, 2); rl = R.alloc(2, 2)
    acc = [R.alloc(16, 4) for _ in range(6)]
    WF = [R.alloc(4, 4) for _ in range(6)]
    NH = 28
    HFr = [R.alloc(4, 4) for _ in range(NH)]
    sRU, sAo = 29, 30
    A(f"s_lshl_b32 s{sRU}, s{sRB}, 2")
    A(f"s_add_u32 s{sRU}, s{sRU}, s{S_W}")
    A(f"s_lshl_b32 s{sAo}, s{sRU}, 15")
    A(f"s_add_u32 s{sAo}, s{sAo}, {HF}")
    A(f"v_lshlrev_b32 v{vL16}, 4, v0")
    for r in (s1, s1 + 1, s2, s2 + 1):
        A(f"v_mov_b32 v{r}, 0")
    fin()
    def hload(s):
        A(f"buffer_load_dwordx4 {vr(HFr[s % NH],4)}, v{vL16}, s[{S_WS}:{S_WS+3}], s{sAo} offen offset:{1024*(s&3)}")
        if (s & 3) == 3 and s < 31:
            A(f"s_add_u32 s{sAo}, s{sAo}, 4096")
    for s in range(NH): hload(s)
    def reads(s, u):
        c = s >> 1
        out = []
        for sec in range(2):
            o = (c % SLOTS) * CH + (16 * (s & 1) + 8 * sec) * 192 + 32 * u
            out.append(f"ds_read_b64_tr_b16 {vr(WF[u]+2*sec,2)}, v{vWa+(o>>16)} offset:{o&0xffff}")
        return out
    A("s_barrier")
    for u in range(6):
        for l in reads(0, u): A(l)
    issued = NH
    for s in range(32):
        H = HFr[s % NH]
        if s % 4 == 3 and s < 31:
            A("s_barrier")
        dots = []
        for r in range(4):
            dots.append(f"v_dot2_f32_bf16 v{s1+(r&1)}, v{H+r}, v{vOnes}, v{s1+(r&1)}")
            dots.append(f"v_dot2_f32_bf16 v{s2+(r&1)}, v{H+r}, v{H+r}, v{s2+(r&1)}")
        for u in range(6):
            lg = 10 if s < 31 else 2 * (5 - u)
            if u == 0:
                A(f"s_waitcnt vmcnt({issued-1-s}) lgkmcnt({lg})")
            else:
                A(f"s_waitcnt lgkmcnt({lg})")
            A(mfma(acc[u], WF[u], H, 0 if s == 0 else None))
            if s < 31:
                for l in reads(s + 1, u): A(l)
            for l in dots[2 * u:2 * u + 2] if u < 4 else []: A(l)
        if s + NH < 32:
            hload(s + NH); issued += 1
    CS = HFr[0]; E = HFr[8]; PK = HFr[12]
    ln_stats(A, s1, s2, T, nm, var)
    A(f"v_rsq_f32 v{rl}, v{var}")
    A(f"v_lshlrev_b32 v{T}, 4, v6")
    A(f"v_add_u32 v{T}, {SC}, v{T}")
    A(f"v_mul_f32 v{rl}, {f32(-LOG2E)}, v{rl}")
    A(f"s_mul_i32 s31, s{sRU}, 86")
    A(f"s_add_u32 s31, s31, s{sU0}")
    A("s_lshl_b32 s31, s31, 10")
    A(f"s_add_u32 s31, s31, {GF}")
    A("s_add_u32 s32, s31, 4096")
    A("s_barrier")
    def csreads(u):
        for g in range(4):
            A(f"ds_read_b128 {vr(CS+16*(u&1)+4*g,4)}, v{T} offset:{128*u+32*g}")
    csreads(0)
    for u in range(6):
        a = acc[u]; c = CS + 16 * (u & 1)
        if u < 5: csreads(u + 1)
        A(f"s_waitcnt lgkmcnt({4 if u < 5 else 0})")
        for r in range(0, 16, 2):
            A(pk_fma(a + r, c + r, nm, a + r, bc=(1,)))
        for r in range(0, 8, 2):
            A(pk_mul(E + r, a + r, rl, bc=(1,)))
        for r in range(8):
            A(f"v_exp_f32 v{E+r}, v{E+r}")
        for r in range(0, 8, 2):
            A(pk_mul(a + r, a + r, a + 8 + r))
        for r in range(0, 8, 2):
            A(pk_fma(E + r, E + r, var, var, bc=(1, 2)))
        for r in range(8):
            A(f"v_rcp_f32 v{E+r}, v{E+r}")
        A("s_nop 0")
        for r in range(0, 8, 2):
            A(pk_mul(a + r, a + r, E + r))
        p = PK + 4 * (u & 1)
        for r in range(4):
            A(f"v_cvt_pk_bf16_f32 v{p+r}, v{a+2*r}, v{a+2*r+1}")
        A(f"buffer_store_dwordx4 {vr(p,4)}, v{vL16}, s[{S_WS}:{S_WS+3}], s{31 + (u>>2)} offen offset:{1024*(u&3)}")
    A("s_waitcnt vmcnt(0)")
    A("s_endpgm")
    A.label(helper)
    sJ = 29
    vWg = 8
    A(f"s_sub_u32 s{sJ}, s{S_W}, 4")
    A(f"s_and_b32 s30, s{sJ}, 1")
    A(f"s_mul_i32 s31, s30, {16*2752}")
    A(f"s_lshl_b32 s32, s{sU0}, 5")
    A("s_add_u32 s31, s31, s32")
    for r in range(3):
        A(f"v_add_u32 v16, {64*r}, v0")
        div12(A, 16, 17, 18)
        A(f"v_mul_u32_u24 v17, 2752, v17")
        A("v_lshl_add_u32 v17, v18, 4, v17")
        A(f"v_add_u32 v{vWg+r}, s31, v17")
    sM = 33
    A(f"s_mul_i32 s{sM}, s30, 3072")
    A(f"s_lshr_b32 s34, s{sJ}, 1")
    A("s_mul_i32 s32, s34, 6176")
    A(f"s_add_u32 s{sM}, s{sM}, s32")
    fin()
    A("s_cmp_eq_u32 s34, 1")
    A(f"s_cselect_b32 s{S_A}, s{S_B}, s{S_A}")
    A(f"s_cselect_b32 s{S_A+1}, s{S_B+1}, s{S_A+1}")
    def issue(c):
        A(f"s_mov_b32 s35, {c*32*2752}")
        for q in range(3):
            dma(A, vWg + q, S_A, "s35", sM, (c % SLOTS) * CH + q * 1024)
    for c in range(SLOTS): issue(c)
    issued = 3 * SLOTS
    cs = 20; CF = 24
    for r in range(4): A(f"v_mov_b32 v{cs+r}, 0")
    A(f"s_lshl_b32 s36, s{sJ}, 5")
    A(f"v_add_u32 v{vWa}, s36, v{vWa}")
    A(f"v_add_u32 v{vWa+1}, 0x10000, v{vWa}")
    A(f"v_add_u32 v{vWa+2}, 0x20000, v{vWa}")
    for C in range(8):
        A(f"s_waitcnt vmcnt({issued - 6*(C+1)})")
        A("s_barrier")
        if C == 1:
            issue(13); issued += 3
        if C == 2:
            issue(14); issue(15); issued += 6
        for half in range(2):
            for q in range(8):
                s = 4 * C + (q >> 1)
                o = ((s >> 1) % SLOTS) * CH + (16 * (s & 1) + 8 * (q & 1)) * 192 + 128 * half
                A(f"ds_read_b64_tr_b16 {vr(CF+2*q,2)}, v{vWa+(o>>16)} offset:{o&0xffff}")
            A("s_waitcnt lgkmcnt(0)")
            for r in range(16):
                A(f"v_dot2_f32_bf16 v{cs+2*half+(r&1)}, v{CF+r}, v{vOnes}, v{cs+2*half+(r&1)}")
    A("s_nop 2")
    A(f"v_add_f32 v{cs}, v{cs}, v{cs+1}")
    A(f"v_add_f32 v{cs+2}, v{cs+2}, v{cs+3}")
    halfsum(A, cs, cs + 1)
    halfsum(A, cs + 2, cs + 3)
    A("v_and_b32 v16, 31, v0")
    A(f"s_lshl_b32 s36, s{sJ}, 7")
    A(f"s_add_u32 s36, s36, {SC}")
    A("v_lshl_add_u32 v16, v16, 2, s36")
    A(f"ds_write_b32 v16, v{cs}")
    A(f"ds_write_b32 v16, v{cs+2} offset:512")
    A("s_waitcnt lgkmcnt(0)")
    A("s_barrier")
    A.label(end)
    A("s_endpgm")


def main():
    ref = open(f"cdna_kernels/{NAME}.s.ref").read().splitlines()
    head = []
    for l in ref:
        if l.startswith("; Override") or "@launch" in l or l.startswith("; grid="):
            continue
        if not l.startswith(";"):
            break
        head.append(l)
    names = ["qkv_kernel", "attn_kernel", "oproj_kernel", "ffn1_kernel", "ffn2_kernel"]
    for n in names:
        head.append(f"; @launch kernel={n} grid=(256,1,1) block=(512,1,1) lds={LDS_ALL}")
    A = Asm()
    A.raw('.amdgcn_target "amdgcn-amd-amdhsa--gfx950"')
    A.raw(".text")
    k1(A, names[0])
    k2(A, names[1])
    gemm64(A, names[2], 3)
    k4(A, names[3])
    gemm64(A, names[4], 5)
    out = "\n".join(head) + "\n" + A.text()
    for n in names:
        out += descriptor(n)
    path = sys.argv[1] if len(sys.argv) > 1 else f"cdna_kernels/{NAME}.s"
    open(path, "w").write(out)

if __name__ == "__main__":
    main()
```

```python
import sys, os
sys.path.insert(0, os.path.dirname(os.path.abspath(__file__)))
from asmlib import *

NAME = "sequential_preLN__softmax_full_mha__glu_gated_swiglu__prompt"
QF = 0x000000
KV = 0x200000
OF = 0x600000
HF = 0x800000
GF = 0xA00000
WS_BYTES = 0x1000000
LOG2E = 1.4426950408889634
import struct
def f32(x):
    return hex(struct.unpack("<I", struct.pack("<f", x))[0])

S_WS, S_A, S_B, S_C = 8, 12, 16, 20
S_W = 24
LDS_ALL = 163840
STAMP = int(os.environ.get("STAMP", 0))
TS = 0xF80000
KIDX = [0]
def stamp(A, n):
    if STAMP:
        A(f"s_memrealtime s[{60+2*n}:{61+2*n}]")
        A(f"s_memtime s[{70+2*n}:{71+2*n}]")
def finish(A, nst=1):
    A("s_waitcnt vmcnt(0)")
    if STAMP:
        stamp(A, nst)
        lab = A.newlabel("st")
        A(f"s_cmp_lg_u32 s{S_W}, 0")
        A(f"s_cbranch_scc1 {lab}")
        A("s_waitcnt lgkmcnt(0)")
        A(f"s_lshl_b32 s59, s2, 6")
        A(f"s_add_u32 s59, s59, {TS + KIDX[0]*16384}")
        A("v_mov_b32 v1, 0")
        for i in range(nst + 1):
            A(f"v_mov_b32 v2, s{60+2*i}")
            A(f"buffer_store_dword v2, v1, s[{S_WS}:{S_WS+3}], s59 offen offset:{4*i}")
            A(f"v_mov_b32 v3, s{70+2*i}")
            A(f"buffer_store_dword v3, v1, s[{S_WS}:{S_WS+3}], s59 offen offset:{32+4*i}")
        A("s_waitcnt vmcnt(0)")
        A.label(lab)
    KIDX[0] += 1

def prologue(A, name, ptrs, end):
    A.raw(f".globl {name}")
    A.raw(".p2align 8")
    A.raw(f".type {name},@function")
    A.label(name)
    A("s_cmp_ge_u32 s2, 256")
    A(f"s_cbranch_scc1 {end}")
    stamp(A, 0)
    for n, (off, d, nb) in enumerate(ptrs):
        A(f"s_load_dwordx2 s[{40+2*n}:{41+2*n}], s[0:1], {off}")
    A("v_lshrrev_b32 v1, 6, v0")
    A("v_and_b32 v0, 63, v0")
    A(f"v_readfirstlane_b32 s{S_W}, v1")
    A("s_and_b32 s25, s2, 7")
    A("s_lshr_b32 s26, s2, 3")
    return lambda: _finish_prologue(A, ptrs)

def _finish_prologue(A, ptrs):
    A("s_waitcnt lgkmcnt(0)")
    for n, (off, d, nb) in enumerate(ptrs):
        srd(A, d, 40 + 2 * n, nb)

def descriptor(name, vgpr=256):
    return f""".section .rodata,"a"
.p2align 6
.amdhsa_kernel {name}
  .amdhsa_next_free_vgpr {vgpr}
  .amdhsa_next_free_sgpr 96
  .amdhsa_accum_offset {vgpr}
  .amdhsa_group_segment_fixed_size 0
  .amdhsa_kernarg_size 80
  .amdhsa_user_sgpr_count 2
  .amdhsa_user_sgpr_kernarg_segment_ptr 1
  .amdhsa_system_sgpr_workgroup_id_x 1
.end_amdhsa_kernel
"""

def dma(A, voff, srdn, soff, m0base, m0add):
    A(f"s_add_u32 m0, s{m0base}, {m0add}")
    A("s_nop 0")
    nt = "nt " if (srdn != S_WS and os.environ.get("NT")) else ""
    A(f"buffer_load_dwordx4 v{voff}, s[{srdn}:{srdn+3}], {soff} offen {nt}lds")

def div12(A, idx, kr, wi):
    A(f"v_mul_u32_u24 v{kr}, 171, v{idx}")
    A(f"v_lshrrev_b32 v{kr}, 11, v{kr}")
    A(f"v_mul_u32_u24 v{wi}, 12, v{kr}")
    A(f"v_sub_u32 v{wi}, v{idx}, v{wi}")
assert all((i * 171) >> 11 == i // 12 for i in range(192))

def halfsum(A, r, t):
    A(f"v_mov_b32 v{t}, v{r}")
    A("s_nop 1")
    A(f"v_permlane32_swap_b32 v{r}, v{t}")
    A("s_nop 1")
    A(f"v_add_f32 v{r}, v{r}, v{t}")

def ln_stats(A, s1, s2, t, nmean, var):
    A(f"v_add_f32 v{s1}, v{s1}, v{s1+1}")
    A(f"v_add_f32 v{s2}, v{s2}, v{s2+1}")
    A(f"v_mov_b32 v{t}, v{s1}")
    A(f"v_mov_b32 v{t+1}, v{s2}")
    A("s_nop 1")
    A(f"v_permlane32_swap_b32 v{s1}, v{t}")
    A(f"v_permlane32_swap_b32 v{s2}, v{t+1}")
    A("s_nop 1")
    A(f"v_add_f32 v{s1}, v{s1}, v{t}")
    A(f"v_add_f32 v{s2}, v{s2}, v{t+1}")
    A(f"v_mul_f32 v{nmean}, {f32(-1.0/512)}, v{s1}")
    A(f"v_mul_f32 v{s2}, {f32(1.0/512)}, v{s2}")
    A(f"v_fma_f32 v{var}, -v{nmean}, v{nmean}, v{s2}")
    A(f"v_max_f32 v{var}, 0, v{var}")
    A(f"v_add_f32 v{var}, {f32(1e-5)}, v{var}")

def pk_fma(d, a, b, c, bc=()):
    hi = [0 if i in bc else 1 for i in range(3)]
    s = f"v_pk_fma_f32 {vr(d,2)}, {vr(a,2)}, {vr(b,2)}, {vr(c,2)}"
    if bc:
        s += f" op_sel_hi:[{hi[0]},{hi[1]},{hi[2]}]"
    return s

def pk_mul(d, a, b, bc=()):
    hi = [0 if i in bc else 1 for i in range(2)]
    s = f"v_pk_mul_f32 {vr(d,2)}, {vr(a,2)}, {vr(b,2)}"
    if bc:
        s += f" op_sel_hi:[{hi[0]},{hi[1]}]"
    return s

def pk_add(d, a, b):
    return f"v_pk_add_f32 {vr(d,2)}, {vr(a,2)}, {vr(b,2)}"

def k1(A, name):
    end = name + "_end"
    fin = prologue(A, name, [(72, S_WS, WS_BYTES), (0, S_A, 2048 * 1024), (8, S_B, 512 * 3072)], end)
    WB, XB, SC = 0, 5 * 12288, 5 * 12288 + 5 * 16384
    ST = SC + 512
    sRB, sP = 27, 28
    A(f"s_and_b32 s{sRB}, s25, 3")
    A(f"s_lshl_b32 s{sRB}, s{sRB}, 2")
    A("s_and_b32 s29, s26, 3")
    A(f"s_add_u32 s{sRB}, s{sRB}, s29")
    A(f"s_lshr_b32 s{sP}, s25, 2")
    A(f"s_lshl_b32 s{sP}, s{sP}, 3")
    A("s_lshr_b32 s29, s26, 2")
    A(f"s_add_u32 s{sP}, s{sP}, s29")
    vWa = 2
    A("v_lshrrev_b32 v3, 5, v0")
    A("v_lshlrev_b32 v3, 3, v3")
    A("v_bfe_u32 v4, v0, 2, 2")
    A("v_add_u32 v3, v3, v4")
    A(f"v_mul_u32_u24 v{vWa}, 192, v3")
    A("v_bfe_u32 v4, v0, 4, 1")
    A(f"v_lshl_add_u32 v{vWa}, v4, 5, v{vWa}")
    A("v_and_b32 v4, 3, v0")
    A(f"v_lshl_add_u32 v{vWa}, v4, 3, v{vWa}")
    vOnes = 5
    A(f"v_mov_b32 v{vOnes}, 0x3f803f80")
    A(f"s_cmp_ge_u32 s{S_W}, 4")
    helper = name + "_helper"
    A(f"s_cbranch_scc1 {helper}")

    R = Regs(8)
    vXa = R.alloc(4); vXb = R.alloc(4)
    s1 = R.alloc(2, 2); s2 = R.alloc(2, 2)
    acc = [R.alloc(16, 4) for _ in range(3)]
    XF = [R.alloc(4, 4) for _ in range(3)]
    WF = [[R.alloc(4, 4) for _ in range(3)] for _ in range(3)]
    A("v_and_b32 v3, 31, v0")
    A("v_lshrrev_b32 v4, 5, v0")
    A("v_bfe_u32 v6, v0, 1, 3")
    A(f"s_lshl_b32 s29, s{S_W}, 12")
    A(f"s_add_u32 s29, s29, {XB}")
    A("v_lshlrev_b32 v7, 7, v3")
    A("v_add_u32 v7, s29, v7")
    for i in range(4):
        A(f"v_or_b32 v{vXa+i}, {2*i}, v4")
        A(f"v_xor_b32 v{vXa+i}, v{vXa+i}, v6")
        A(f"v_lshl_add_u32 v{vXa+i}, v{vXa+i}, 4, v7")
        A(f"v_add_u32 v{vXb+i}, 0x10000, v{vXa+i}")
    for r in (s1, s1 + 1, s2, s2 + 1):
        A(f"v_mov_b32 v{r}, 0")
    fin()
    def reads(s):
        c, sub, b = s >> 2, s & 3, s % 3
        slot = c % 5
        out = []
        if slot < 4:
            out.append(f"ds_read_b128 {vr(XF[b],4)}, v{vXa+sub} offset:{slot*16384}")
        else:
            out.append(f"ds_read_b128 {vr(XF[b],4)}, v{vXb+sub}")
        for u in range(3):
            for sec in range(2):
                off = WB + slot * 12288 + (16 * sub + 4 * sec) * 192 + 64 * u
                out.append(f"ds_read_b64_tr_b16 {vr(WF[b][u]+2*sec,2)}, v{vWa} offset:{off}")
        return out
    A("s_barrier")
    stamp(A, 1)
    for l in reads(0) + reads(1):
        A(l)
    for s in range(32):
        b = s % 3
        nx = reads(s + 2) if s + 2 < 32 else []
        if nx and (s + 2) % 4 == 0:
            A("s_barrier")
        A(f"s_waitcnt lgkmcnt({7 if s < 31 else 0})")
        dots = []
        for r in range(4):
            dots.append(f"v_dot2_f32_bf16 v{s1+(r&1)}, v{XF[b]+r}, v{vOnes}, v{s1+(r&1)}")
            dots.append(f"v_dot2_f32_bf16 v{s2+(r&1)}, v{XF[b]+r}, v{XF[b]+r}, v{s2+(r&1)}")
        c0 = 0 if s == 0 else None
        A(mfma(acc[0], WF[b][0], XF[b], c0))
        for l in nx[0:3] + dots[0:3]: A(l)
        A(mfma(acc[1], WF[b][1], XF[b], c0))
        for l in nx[3:5] + dots[3:6]: A(l)
        A(mfma(acc[2], XF[b], WF[b][2], c0))
        for l in nx[5:7] + dots[6:8]: A(l)
    T = R.alloc(4, 2); nm = R.alloc(2, 2); rs = R.alloc(2, 2); rq = R.alloc(2, 2); csv = R.alloc(2, 2)
    CS = R.alloc(32, 4); VS = R.alloc(32, 4); PK = R.alloc(24, 4)
    vA = R.alloc(4)
    stamp(A, 2)
    A("s_nop 2")
    ln_stats(A, s1, s2, T, nm, rs)
    A(f"v_rsq_f32 v{rs}, v{rs}")
    A(f"s_lshl_b32 s29, s{S_W}, 8")
    A(f"s_add_u32 s29, s29, {ST}")
    A(f"v_lshl_add_u32 v{vA}, v0, 2, s29")
    A("v_cmp_gt_u32 vcc, 32, v0")
    A(f"v_mul_f32 v{rq}, {f32(0.25*LOG2E)}, v{rs}")
    A(f"v_lshl_add_u32 v{vA+1}, v4, 4, s29")
    A(f"v_cndmask_b32 v{T}, v{nm}, v{rs}, vcc")
    A(f"ds_write_b32 v{vA}, v{T}")
    A(f"v_lshlrev_b32 v{vA+2}, 4, v4")
    A(f"v_lshlrev_b32 v{vA+3}, 2, v3")
    A("s_waitcnt lgkmcnt(0)")
    for g in range(4):
        A(f"ds_read_b128 {vr(VS+4*g,4)}, v{vA+1} offset:{32*g}")
        A(f"ds_read_b128 {vr(VS+16+4*g,4)}, v{vA+1} offset:{128+32*g}")
    A("s_waitcnt lgkmcnt(0)")
    A("s_barrier")
    A(f"v_add_u32 v{vA+2}, {SC}, v{vA+2}")
    A(f"v_add_u32 v{vA+3}, {SC+256}, v{vA+3}")
    for u in range(2):
        for g in range(4):
            A(f"ds_read_b128 {vr(CS+16*u+4*g,4)}, v{vA+2} offset:{128*u+32*g}")
    A(f"ds_read_b32 v{csv}, v{vA+3}")
    sQ, sK, sV = 30, 31, 32
    A(f"s_lshl_b32 s33, s{sRB}, 2")
    A(f"s_add_u32 s33, s33, s{S_W}")
    A(f"s_lshl_b32 s{sQ}, s{sP}, 17")
    A("s_lshl_b32 s34, s33, 10")
    A(f"s_add_u32 s{sQ}, s{sQ}, s34")
    if QF: A(f"s_add_u32 s{sQ}, s{sQ}, {QF}")
    A(f"s_add_u32 s35, s{sQ}, 0x10000")
    A(f"s_lshl_b32 s{sK}, s{sP}, 18")
    A("s_lshl_b32 s34, s33, 11")
    A(f"s_add_u32 s{sK}, s{sK}, s34")
    A(f"s_add_u32 s{sK}, s{sK}, {KV}")
    A(f"s_add_u32 s36, s{sK}, 0x20000")
    vQo, vKo, vVo = XF[0], XF[0] + 1, XF[0] + 2
    A(f"v_lshlrev_b32 v{vQo}, 4, v0")
    A(f"v_and_b32 v{vKo}, 0x33, v0")
    A(f"v_bfe_u32 v{T}, v0, 2, 1")
    A(f"v_lshl_or_b32 v{vKo}, v{T}, 3, v{vKo}")
    A(f"v_bfe_u32 v{T}, v0, 3, 1")
    A(f"v_lshl_or_b32 v{vKo}, v{T}, 2, v{vKo}")
    A(f"v_lshlrev_b32 v{vKo}, 4, v{vKo}")
    A(f"v_and_b32 v{vVo}, 15, v0")
    A(f"v_lshlrev_b32 v{vVo}, 4, v{vVo}")
    A(f"v_lshl_or_b32 v{vVo}, v4, 8, v{vVo}")
    A(f"v_bfe_u32 v{T}, v0, 4, 1")
    A(f"v_lshl_or_b32 v{vVo}, v{T}, 17, v{vVo}")
    A("s_waitcnt lgkmcnt(5)")
    for u in range(3):
        a = acc[u]
        if u == 1: A("s_waitcnt lgkmcnt(1)")
        if u == 2: A("s_waitcnt lgkmcnt(0)")
        for r in range(0, 16, 2):
            if u < 2:
                A(pk_fma(a + r, CS + 16 * u + r, nm, a + r, bc=(1,)))
            else:
                A(pk_fma(a + r, VS + 16 + r, csv, a + r, bc=(1,)))
        for r in range(0, 16, 2):
            if u < 2:
                A(pk_mul(a + r, a + r, rq if u == 0 else rs, bc=(1,)))
            else:
                A(pk_mul(a + r, a + r, VS + r))
        for r in range(8):
            A(f"v_cvt_pk_bf16_f32 v{PK+8*u+r}, v{a+2*r}, v{a+2*r+1}")
        if u == 0:
            A(f"buffer_store_dwordx4 {vr(PK,4)}, v{vQo}, s[{S_WS}:{S_WS+3}], s{sQ} offen")
            A(f"buffer_store_dwordx4 {vr(PK+4,4)}, v{vQo}, s[{S_WS}:{S_WS+3}], s35 offen")
        elif u == 1:
            A(f"buffer_store_dwordx4 {vr(PK+8,4)}, v{vKo}, s[{S_WS}:{S_WS+3}], s{sK} offen")
            A(f"buffer_store_dwordx4 {vr(PK+12,4)}, v{vKo}, s[{S_WS}:{S_WS+3}], s36 offen")
        else:
            A(f"buffer_store_dwordx4 {vr(PK+16,4)}, v{vVo}, s[{S_WS}:{S_WS+3}], s{sK} offen offset:1024")
            A(f"buffer_store_dwordx4 {vr(PK+20,4)}, v{vVo}, s[{S_WS}:{S_WS+3}], s{sK} offen offset:1536")
    finish(A, 3)
    A("s_endpgm")

    A.label(helper)
    vXg, vWg = 8, 12
    sJ = 29
    A(f"s_sub_u32 s{sJ}, s{S_W}, 4")
    A(f"s_lshl_b32 s30, s{sRB}, 17")
    A(f"s_lshl_b32 s31, s{sJ}, 15")
    A("s_add_u32 s30, s30, s31")
    A("v_lshrrev_b32 v16, 3, v0")
    A("v_lshlrev_b32 v16, 10, v16")
    A("v_add_u32 v16, s30, v16")
    A("v_and_b32 v17, 7, v0")
    A("v_lshrrev_b32 v18, 4, v0")
    A("v_xor_b32 v17, v17, v18")
    A(f"v_lshl_add_u32 v{vXg}, v17, 4, v16")
    A(f"v_xor_b32 v{vXg+1}, 64, v{vXg}")
    A(f"v_add_u32 v{vXg+1}, 0x2000, v{vXg+1}")
    A(f"v_add_u32 v{vXg+2}, 0x4000, v{vXg}")
    A(f"v_add_u32 v{vXg+3}, 0x4000, v{vXg+1}")
    A(f"s_mul_i32 s30, s{sJ}, {16*3072}")
    A(f"s_lshl_b32 s31, s{sP}, 6")
    A("s_add_u32 s30, s30, s31")
    for r in range(3):
        A(f"v_add_u32 v16, {64*r}, v0")
        div12(A, 16, 17, 18)
        A(f"v_mul_u32_u24 v17, 3072, v17")
        A("v_lshrrev_b32 v19, 2, v18")
        A("v_lshl_add_u32 v17, v19, 10, v17")
        A("v_and_b32 v18, 3, v18")
        A("v_lshl_add_u32 v17, v18, 4, v17")
        A(f"v_add_u32 v{vWg+r}, s30, v17")
    sMX, sMW = 32, 33
    A(f"s_lshl_b32 s{sMX}, s{sJ}, 12")
    A(f"s_mul_i32 s{sMW}, s{sJ}, 3072")
    fin()
    def issue(c):
        slot = c % 5
        A(f"s_movk_i32 s34, {c*128}")
        A(f"s_mov_b32 s35, {c*64*3072}")
        for q in range(4):
            dma(A, vXg + q, S_A, "s34", sMX, XB + slot * 16384 + q * 1024)
            if q < 3:
                dma(A, vWg + q, S_B, "s35", sMW, WB + slot * 12288 + q * 1024)
    for c in range(5):
        issue(c)
    cs = 20; CF = 24
    A(f"v_mov_b32 v{cs}, 0")
    A(f"v_mov_b32 v{cs+1}, 0")
    A(f"s_min_u32 s36, s{sJ}, 2")
    A("s_lshl_b32 s36, s36, 6")
    A(f"v_add_u32 v{vWa}, s36, v{vWa}")
    issued = 35
    for c in range(8):
        A(f"s_waitcnt vmcnt({issued - 7*(c+1)})")
        A("s_barrier")
        if 2 <= c <= 4:
            issue(c + 3); issued += 7
        slot = c % 5
        for q in range(8):
            A(f"ds_read_b64_tr_b16 {vr(CF+2*q,2)}, v{vWa} offset:{WB + slot*12288 + (16*(q>>1)+4*(q&1))*192}")
        A("s_waitcnt lgkmcnt(0)")
        for r in range(16):
            A(f"v_dot2_f32_bf16 v{cs+(r&1)}, v{CF+r}, v{vOnes}, v{cs+(r&1)}")
    A("s_nop 2")
    A(f"v_add_f32 v{cs}, v{cs}, v{cs+1}")
    halfsum(A, cs, cs + 1)
    A("v_and_b32 v16, 31, v0")
    A("s_lshl_b32 s36, s36, 1")
    A(f"s_add_u32 s36, s36, {SC}")
    A("v_lshl_add_u32 v16, v16, 2, s36")
    A(f"ds_write_b32 v16, v{cs}")
    A("s_waitcnt lgkmcnt(0)")
    A("s_barrier")
    A.label(end)
    A("s_endpgm")

def k2(A, name):
    end = name + "_end"
    fin = prologue(A, name, [(72, S_WS, WS_BYTES)], end)
    sHead, sQB, sKH, sPW = 27, 28, 29, 30
    A(f"s_lshl_b32 s{sHead}, s25, 2")
    A("s_and_b32 s31, s26, 3")
    A(f"s_add_u32 s{sHead}, s{sHead}, s31")
    A(f"s_lshr_b32 s{sQB}, s26, 2")
    A(f"s_lshr_b32 s{sKH}, s{S_W}, 2")
    A(f"s_and_b32 s{sPW}, s{S_W}, 3")
    R = Regs(2)
    vL16 = R.alloc(); vIdx = R.alloc(); vKa = R.alloc(); vVa = R.alloc(); T = R.alloc(2, 2)
    Qa = R.alloc(4, 4); Qb = R.alloc(4, 4)
    Na = R.alloc(16, 4); Nb = R.alloc(16, 4)
    Oa = R.alloc(16, 4); Ob = R.alloc(16, 4)
    Sa = R.alloc(16, 4); Sb = R.alloc(16, 4)
    K = [R.alloc(4, 4), R.alloc(4, 4)]
    V = [R.alloc(8, 4), R.alloc(8, 4)]
    sQo, sKVo, sM0 = 32, 33, 34
    A(f"v_lshlrev_b32 v{vL16}, 4, v0")
    A(f"s_lshl_b32 s{sQo}, s{sHead}, 16")
    A(f"s_lshl_b32 s31, s{sQB}, 13")
    A(f"s_add_u32 s{sQo}, s{sQo}, s31")
    A(f"s_lshl_b32 s31, s{sPW}, 11")
    A(f"s_add_u32 s{sQo}, s{sQo}, s31")
    if QF: A(f"s_add_u32 s{sQo}, s{sQo}, {QF}")
    A(f"s_lshl_b32 s{sKVo}, s{sHead}, 17")
    A(f"s_add_u32 s{sKVo}, s{sKVo}, {KV}")
    A(f"s_lshl_b32 s{sM0}, s{S_W}, 10")
    A(f"s_add_u32 s35, s{sKVo}, s{sM0}")
    fin()
    A(f"buffer_load_dwordx4 {vr(Qa,4)}, v{vL16}, s[{S_WS}:{S_WS+3}], s{sQo} offen")
    A(f"buffer_load_dwordx4 {vr(Qb,4)}, v{vL16}, s[{S_WS}:{S_WS+3}], s{sQo} offen offset:1024")
    for i in range(16):
        dma(A, vL16, S_WS, "s35", sM0, i * 8192)
        if i < 15: A("s_add_u32 s35, s35, 0x2000")
    A(f"v_mov_b32 v{vIdx}, 0xdddddddd")
    A(f"s_lshl_b32 s31, s{sKH}, 11")
    A(f"v_add_u32 v{vKa}, s31, v{vL16}")
    A(f"v_and_b32 v{T}, 15, v0")
    A(f"v_lshlrev_b32 v{vVa}, 4, v{T}")
    A(f"v_lshrrev_b32 v{T}, 5, v0")
    A(f"v_lshl_add_u32 v{vVa}, v{T}, 8, v{vVa}")
    A(f"v_add_u32 v{vVa}, s31, v{vVa}")
    A(f"v_and_b32 v{T}, 27, v0")
    A(f"v_cmp_eq_u32 vcc, 16, v{T}")
    A(f"v_mov_b32 v{T+1}, 0x3f803f80")
    A(f"v_mov_b32 v{T}, 0")
    for r in range(8):
        A(f"v_cndmask_b32 v{V[0]+r}, v{T}, v{T+1}, vcc")
        A(f"v_cndmask_b32 v{V[1]+r}, v{T}, v{T+1}, vcc")
    for r in range(16):
        A(f"v_mov_b32 v{Oa+r}, 0")
        A(f"v_mov_b32 v{Ob+r}, 0")
        if r >= 8: A(f"v_mov_b32 v{Sb+r}, 0")
    sHalf = 36
    A(f"s_mov_b32 s{sHalf}, 0x0000ffff")
    A(f"s_mov_b32 s{sHalf+1}, 0x0000ffff")
    A("s_waitcnt vmcnt(13)")
    A("s_barrier")
    stamp(A, 1)
    A(f"ds_read_b128 {vr(K[1],4)}, v{vL16}")
    A(f"ds_read_b128 {vr(K[0],4)}, v{vKa}")
    A(f"s_mov_b64 exec, s[{sHalf}:{sHalf+1}]")
    A(f"ds_read_b128 {vr(V[0],4)}, v{vVa} offset:1024")
    A(f"ds_read_b128 {vr(V[0]+4,4)}, v{vVa} offset:1536")
    A("s_mov_b64 exec, -1")
    A("s_waitcnt lgkmcnt(3)")
    A(mfma(Na, K[1], Qa, 0))
    A(mfma(Nb, K[1], Qb, 0))
    A(f"ds_read_b128 {vr(K[1],4)}, v{vKa} offset:4096")
    A("s_nop 7")
    A("s_nop 1")
    def rowmax(N):
        A(f"v_max3_f32 v{T}, v{N}, v{N+1}, v{N+2}")
        A(f"v_max3_f32 v{T+1}, v{N+3}, v{N+4}, v{N+5}")
        for r in range(6, 14, 4):
            A(f"v_max3_f32 v{T}, v{N+r}, v{N+r+1}, v{T}")
            A(f"v_max3_f32 v{T+1}, v{N+r+2}, v{N+r+3}, v{T+1}")
        A(f"v_max3_f32 v{T}, v{N+14}, v{N+15}, v{T}")
        A(f"v_max_f32 v{T}, v{T}, v{T+1}")
        A(f"v_mov_b32 v{T+1}, v{T}")
        A("s_nop 1")
        A(f"v_permlane32_swap_b32 v{T}, v{T+1}")
        A("s_nop 1")
        A(f"v_max_f32 v{T}, v{T}, v{T+1}")
        A(f"v_sub_f32 v{T}, 0, v{T}")
        for r in range(16):
            A(f"v_mov_b32 v{N+r}, v{T}")
    rowmax(Na)
    A("s_waitcnt lgkmcnt(3)")
    A("s_nop 0")
    A(mfma(Sa, K[0], Qa, Na))
    rowmax(Nb)
    def ex(S, lo, hi):
        for r in range(lo, hi):
            A(f"v_exp_f32 v{S+r}, v{S+r}")
    sTrip = 38
    A(f"s_mov_b32 s{sTrip}, 0")
    loop = name + "_loop"
    A.raw(".p2align 6")
    A.label(loop)
    p1, p2, p3 = 2, 7, 12
    for t in range(4):
        c = t & 1; n = c ^ 1
        ex(Sa, 0, p1)
        A(smfmac(Ob, V[n] + 4, Sb + 8, vIdx))
        ex(Sa, p1, p2)
        A(mfma(Sb, K[c], Qb, Nb))
        A(f"s_mov_b64 exec, s[{sHalf}:{sHalf+1}]")
        A(f"ds_read_b128 {vr(V[n],4)}, v{vVa} offset:{4096*(t+1)+1024}")
        A(f"ds_read_b128 {vr(V[n]+4,4)}, v{vVa} offset:{4096*(t+1)+1536}")
        A("s_mov_b64 exec, -1")
        ex(Sa, p2, p3)
        A("s_waitcnt lgkmcnt(2)")
        A(smfmac(Oa, V[c], Sa, vIdx))
        A(f"ds_read_b128 {vr(K[c],4)}, v{vKa} offset:{4096*(t+2)}")
        ex(Sa, p3, 16)
        ex(Sb, 0, p1)
        A(smfmac(Oa, V[c] + 4, Sa + 8, vIdx))
        ex(Sb, p1, p2)
        A(mfma(Sa, K[n], Qa, Na))
        ex(Sb, p2, p3)
        A(smfmac(Ob, V[c], Sb, vIdx))
        if t == 3:
            A(f"v_add_u32 v{vKa}, 0x4000, v{vKa}")
            A(f"v_add_u32 v{vVa}, 0x4000, v{vVa}")
        ex(Sb, p3, 16)
    skip = name + "_skip"
    A(f"s_cmp_lg_u32 s{sTrip}, 0")
    A(f"s_cbranch_scc1 {skip}")
    A("s_waitcnt vmcnt(0)")
    A("s_barrier")
    A.label(skip)
    A(f"s_add_u32 s{sTrip}, s{sTrip}, 1")
    A(f"s_cmp_lt_u32 s{sTrip}, 8")
    A(f"s_cbranch_scc1 {loop}")
    A(smfmac(Ob, V[1] + 4, Sb + 8, vIdx))
    stamp(A, 2)
    XCH = 139264
    A(f"s_mul_i32 s31, s{S_W}, 2304")
    A(f"s_add_u32 s31, s31, {XCH}")
    A(f"v_add_u32 v{vKa}, s31, v{vL16}")
    A(f"v_lshl_add_u32 v{T}, v0, 2, s31")
    A(f"s_xor_b32 s39, s{S_W}, 4")
    A("s_mul_i32 s31, s39, 2304")
    A(f"s_add_u32 s31, s31, {XCH}")
    A(f"v_add_u32 v{vVa}, s31, v{vL16}")
    A(f"v_lshl_add_u32 v{T+1}, v0, 2, s31")
    A("s_waitcnt lgkmcnt(0)")
    A("s_nop 7")
    lb = name + "_kh1"; lj = name + "_join"
    A(f"s_cmp_eq_u32 s{sKH}, 1")
    A(f"s_cbranch_scc1 {lb}")
    A(f"ds_write_b128 v{vKa}, {vr(Ob,4)}")
    A(f"ds_write_b128 v{vKa}, {vr(Ob+4,4)} offset:1024")
    A(f"ds_write_b32 v{T}, v{Ob+8} offset:2048")
    A(f"s_branch {lj}")
    A.label(lb)
    A(f"ds_write_b128 v{vKa}, {vr(Oa,4)}")
    A(f"ds_write_b128 v{vKa}, {vr(Oa+4,4)} offset:1024")
    A(f"ds_write_b32 v{T}, v{Oa+8} offset:2048")
    A("s_nop 1")
    for r in range(9):
        A(f"v_mov_b32 v{Oa+r}, v{Ob+r}")
    for r in range(4):
        A(f"v_mov_b32 v{Qa+r}, v{Qb+r}")
    A.label(lj)
    A("s_waitcnt lgkmcnt(0)")
    A("s_barrier")
    A(f"ds_read_b128 {vr(Sa,4)}, v{vVa}")
    A(f"ds_read_b128 {vr(Sa+4,4)}, v{vVa} offset:1024")
    A(f"ds_read_b32 v{Sa+8}, v{T+1} offset:2048")
    A(f"s_lshl_b32 s31, s{sQB}, 3")
    A(f"s_lshl_b32 s39, s{sPW}, 1")
    A("s_add_u32 s31, s31, s39")
    A(f"s_add_u32 s31, s31, s{sKH}")
    A("s_lshl_b32 s31, s31, 15")
    A(f"s_lshl_b32 s39, s{sHead}, 10")
    A("s_add_u32 s31, s31, s39")
    A(f"s_add_u32 s31, s31, {OF}")
    A("s_waitcnt lgkmcnt(0)")
    A(f"v_add_f32 v{Oa+8}, v{Oa+8}, v{Sa+8}")
    for r in range(0, 8, 2):
        A(pk_add(Oa + r, Oa + r, Sa + r))
    fb = name + "_fallback"; fz = name + "_final"
    A(f"v_mov_b32 v{T}, {f32(2.0**30)}")
    A(f"v_cmp_nge_f32 vcc, v{T}, v{Oa+8}")
    A(f"s_cbranch_vccnz {fb}")
    A.label(fz)
    A(f"v_rcp_f32 v{T}, v{Oa+8}")
    A("s_nop 0")
    for r in range(0, 8, 2):
        A(pk_mul(Oa + r, Oa + r, T, bc=(1,)))
    for r in range(4):
        A(f"v_cvt_pk_bf16_f32 v{Sa+r}, v{Oa+2*r}, v{Oa+2*r+1}")
    A(f"buffer_store_dwordx4 {vr(Sa,4)}, v{vL16}, s[{S_WS}:{S_WS+3}], s31 offen")
    finish(A, 3)
    A.label(end)
    A("s_endpgm")
    A.label(fb)
    A(f"v_mov_b32 v{Nb}, 0xff800000")
    A(f"s_mov_b32 s35, s{sKVo}")
    A(f"s_mov_b32 s{sTrip}, 0")
    l1 = name + "_fb1"
    A.label(l1)
    A(f"buffer_load_dwordx4 {vr(K[0],4)}, v{vL16}, s[{S_WS}:{S_WS+3}], s35 offen")
    A("s_waitcnt vmcnt(0)")
    A(mfma(Sa, K[0], Qa, 0))
    A("s_nop 7")
    A("s_nop 7")
    for r in range(0, 16, 2):
        A(f"v_max3_f32 v{Nb}, v{Sa+r}, v{Sa+r+1}, v{Nb}")
    A("s_add_u32 s35, s35, 2048")
    A(f"s_add_u32 s{sTrip}, s{sTrip}, 1")
    A(f"s_cmp_lt_u32 s{sTrip}, 64")
    A(f"s_cbranch_scc1 {l1}")
    A(f"v_mov_b32 v{T+1}, v{Nb}")
    A("s_nop 1")
    A(f"v_permlane32_swap_b32 v{Nb}, v{T+1}")
    A("s_nop 1")
    A(f"v_max_f32 v{T}, v{Nb}, v{T+1}")
    A(f"v_sub_f32 v{T}, 0, v{T}")
    for r in range(16):
        A(f"v_mov_b32 v{Na+r}, v{T}")
        A(f"v_mov_b32 v{Oa+r}, 0")
    A(f"v_and_b32 v{T}, 15, v0")
    A(f"v_lshlrev_b32 v{vVa}, 4, v{T}")
    A(f"v_lshrrev_b32 v{T}, 5, v0")
    A(f"v_lshl_add_u32 v{vVa}, v{T}, 8, v{vVa}")
    A(f"s_mov_b32 s35, s{sKVo}")
    A(f"s_mov_b32 s{sTrip}, 0")
    l2 = name + "_fb2"
    A.label(l2)
    A(f"buffer_load_dwordx4 {vr(K[0],4)}, v{vL16}, s[{S_WS}:{S_WS+3}], s35 offen")
    A(f"s_mov_b64 exec, s[{sHalf}:{sHalf+1}]")
    A(f"buffer_load_dwordx4 {vr(V[0],4)}, v{vVa}, s[{S_WS}:{S_WS+3}], s35 offen offset:1024")
    A(f"buffer_load_dwordx4 {vr(V[0]+4,4)}, v{vVa}, s[{S_WS}:{S_WS+3}], s35 offen offset:1536")
    A("s_mov_b64 exec, -1")
    A("s_waitcnt vmcnt(0)")
    A(mfma(Sa, K[0], Qa, Na))
    A("s_nop 7")
    A("s_nop 7")
    ex(Sa, 0, 16)
    A("s_nop 1")
    A(smfmac(Oa, V[0], Sa, vIdx))
    A(smfmac(Oa, V[0] + 4, Sa + 8, vIdx))
    A("s_nop 7")
    A("s_add_u32 s35, s35, 2048")
    A(f"s_add_u32 s{sTrip}, s{sTrip}, 1")
    A(f"s_cmp_lt_u32 s{sTrip}, 64")
    A(f"s_cbranch_scc1 {l2}")
    A("s_nop 7")
    A("s_nop 7")
    A(f"s_branch {fz}")

def gemm64(A, name, which):
    end = name + "_end"
    if which == 3:
        NK, ACT, wptr, wbytes = 32, OF, 16, 512 * 1024
        ptrs = [(72, S_WS, WS_BYTES), (wptr, S_B, wbytes), (0, S_C, 2048 * 1024)]
    else:
        NK, ACT, wptr, wbytes = 86, GF, 48, 1376 * 1024
        ptrs = [(72, S_WS, WS_BYTES), (wptr, S_B, wbytes), (56, S_C, 2048 * 1024)]
    NS = NK // 2
    NCH = (NK + 7) // 8
    SLOTS = min(NCH, 9)
    SCR = 147456
    fin = prologue(A, name, ptrs, end)
    sRB, sCB = 27, 28
    A(f"s_lshl_b32 s{sRB}, s25, 2")
    A("s_and_b32 s29, s26, 3")
    A(f"s_add_u32 s{sRB}, s{sRB}, s29")
    A(f"s_lshr_b32 s{sCB}, s26, 2")
    helper = name + "_helper"
    A(f"s_cmp_ge_u32 s{S_W}, 4")
    A(f"s_cbranch_scc1 {helper}")
    R = Regs(2)
    vL16 = R.alloc(); T = R.alloc(4, 2)
    nwin = 1 if which == 3 else 3
    vA = [[R.alloc() for _ in range(nwin)] for _ in range(2)]
    vRes = R.alloc()
    RES = R.alloc(8, 4)
    acc = [R.alloc(16, 4), R.alloc(16, 4)]
    WF = [[R.alloc(4, 4) for _ in range(2)] for _ in range(3)]
    AF = [R.alloc(4, 4) for _ in range(NS)]
    sRU, sKH, sAo = 29, 30, 31
    A(f"s_and_b32 s{sRU}, s{S_W}, 1")
    A(f"s_lshl_b32 s32, s{sRB}, 1")
    A(f"s_add_u32 s{sRU}, s{sRU}, s32")
    A(f"s_lshr_b32 s{sKH}, s{S_W}, 1")
    A(f"s_mul_i32 s{sAo}, s{sRU}, {NK*1024}")
    A(f"s_lshl_b32 s32, s{sKH}, 10")
    A(f"s_add_u32 s{sAo}, s{sAo}, s32")
    A(f"s_add_u32 s{sAo}, s{sAo}, {ACT}")
    A(f"v_lshlrev_b32 v{vL16}, 4, v0")
    sCU = 33
    A(f"s_lshl_b32 s{sCU}, s{sCB}, 1")
    A(f"s_add_u32 s{sCU}, s{sCU}, s{sKH}")
    if which == 3:
        A(f"v_and_b32 v{T}, 31, v0")
        A(f"v_lshlrev_b32 v{vRes}, 10, v{T}")
        A(f"v_lshrrev_b32 v{T}, 5, v0")
        A(f"v_lshl_add_u32 v{vRes}, v{T}, 3, v{vRes}")
        A(f"s_lshl_b32 s34, s{sRU}, 15")
        A(f"s_lshl_b32 s35, s{sCU}, 6")
        A("s_add_u32 s34, s34, s35")
    else:
        A(f"s_lshl_b32 s34, s{sRU}, 15")
        A(f"s_lshl_b32 s35, s{sCU}, 11")
        A("s_add_u32 s34, s34, s35")
        A(f"s_add_u32 s34, s34, {HF}")
    fin()
    if which == 3:
        for g in range(4):
            A(f"buffer_load_dwordx2 {vr(RES+2*g,2)}, v{vRes}, s[{S_C}:{S_C+3}], s34 offen offset:{16*g}")
    else:
        for g in range(2):
            A(f"buffer_load_dwordx4 {vr(RES+4*g,4)}, v{vL16}, s[{S_WS}:{S_WS+3}], s34 offen offset:{1024*g}")
    for n in range(NS):
        A(f"buffer_load_dwordx4 {vr(AF[n],4)}, v{vL16}, s[{S_WS}:{S_WS+3}], s{sAo} offen offset:{2048*(n&1)}")
        if n & 1 and n + 1 < NS:
            A(f"s_add_u32 s{sAo}, s{sAo}, 4096")
    A(f"v_lshrrev_b32 v{T}, 5, v0")
    A(f"v_lshlrev_b32 v{T}, 2, v{T}")
    A(f"v_bfe_u32 v{T+1}, v0, 2, 2")
    A(f"v_add_u32 v{T}, v{T}, v{T+1}")
    A(f"v_lshlrev_b32 v{T}, 7, v{T}")
    A(f"v_bfe_u32 v{T+1}, v0, 4, 1")
    A(f"v_lshl_add_u32 v{T}, v{T+1}, 5, v{T}")
    A(f"v_and_b32 v{T+1}, 3, v0")
    A(f"v_lshl_add_u32 v{T}, v{T+1}, 3, v{T}")
    A(f"v_bfe_u32 v{T+1}, v0, 3, 1")
    A(f"v_xor_b32 v{T+1}, s{sKH}, v{T+1}")
    A(f"v_lshl_add_u32 v{T}, v{T+1}, 6, v{T}")
    A(f"s_lshl_b32 s32, s{sKH}, 11")
    A(f"v_add_u32 v{vA[0][0]}, s32, v{T}")
    A(f"v_xor_b32 v{vA[1][0]}, 64, v{vA[0][0]}")
    for w in range(1, nwin):
        for k in range(2):
            A(f"v_add_u32 v{vA[k][w]}, {w*65536}, v{vA[k][0]}")
    def reads(n):
        c = n >> 2
        off = (c % SLOTS) * 16384 + (n & 3) * 4096
        out = []
        for k in range(2):
            for sec in range(2):
                o = off + sec * 1024
                out.append(f"ds_read_b64_tr_b16 {vr(WF[n%3][k]+2*sec,2)}, v{vA[k][o>>16]} offset:{o&0xffff}")
        return out
    A("s_barrier")
    stamp(A, 1)
    for l in reads(0) + reads(1): A(l)
    for n in range(NS):
        nx = reads(n + 2) if n + 2 < NS else []
        if nx and (n + 2) % 4 == 0:
            A("s_barrier")
        A(f"s_waitcnt vmcnt({NS-1-n}) lgkmcnt({4 if n < NS-1 else 0})")
        c0 = 0 if n == 0 else None
        A(mfma(acc[0], WF[n % 3][0], AF[n], c0))
        for l in nx[0:2]: A(l)
        A(mfma(acc[1], WF[n % 3][1], AF[n], c0))
        for l in nx[2:4]: A(l)
    stamp(A, 2)
    A(f"s_lshl_b32 s32, s{S_W}, 12")
    A(f"s_add_u32 s32, s32, {SCR}")
    A(f"v_add_u32 v{T}, s32, v{vL16}")
    A(f"s_xor_b32 s32, s32, 0x2000")
    A(f"v_add_u32 v{T+1}, s32, v{vL16}")
    UN = AF[0]
    A("s_nop 7")
    for q in range(4):
        A(f"ds_write_b128 v{T}, {vr(acc[1]+4*q,4)} offset:{1024*q}")
    for r in range(8):
        A(f"v_lshlrev_b32 v{UN+2*r}, 16, v{RES+r}")
        A(f"v_and_b32 v{UN+2*r+1}, 0xffff0000, v{RES+r}")
    A("s_waitcnt lgkmcnt(0)")
    A("s_barrier")
    for q in range(4):
        A(f"ds_read_b128 {vr(acc[1]+4*q,4)}, v{T+1} offset:{1024*q}")
    for r in range(0, 16, 2):
        A(pk_add(acc[0] + r, acc[0] + r, UN + r))
    if which == 3:
        A(f"s_lshl_b32 s34, s{sRU}, 15")
        A(f"s_lshl_b32 s35, s{sCU}, 11")
        A("s_add_u32 s34, s34, s35")
        A(f"s_add_u32 s34, s34, {HF}")
    else:
        A(f"v_and_b32 v{T}, 31, v0")
        A(f"v_lshlrev_b32 v{vRes}, 10, v{T}")
        A(f"v_lshrrev_b32 v{T}, 5, v0")
        A(f"v_lshl_add_u32 v{vRes}, v{T}, 4, v{vRes}")
        A(f"s_lshl_b32 s34, s{sRU}, 15")
        A(f"s_lshl_b32 s35, s{sCU}, 6")
        A("s_add_u32 s34, s34, s35")
    for q in range(4):
        A(f"s_waitcnt lgkmcnt({3-q})")
        A(pk_add(acc[0] + 4 * q, acc[0] + 4 * q, acc[1] + 4 * q))
        A(pk_add(acc[0] + 4 * q + 2, acc[0] + 4 * q + 2, acc[1] + 4 * q + 2))
    for r in range(8):
        A(f"v_cvt_pk_bf16_f32 v{RES+r}, v{acc[0]+2*r}, v{acc[0]+2*r+1}")
    if which == 3:
        for g in range(2):
            A(f"buffer_store_dwordx4 {vr(RES+4*g,4)}, v{vL16}, s[{S_WS}:{S_WS+3}], s34 offen offset:{1024*g}")
    else:
        A("s_nop 1")
        for g in range(2):
            A(f"v_permlane32_swap_b32 v{RES+4*g}, v{RES+4*g+2}")
            A(f"v_permlane32_swap_b32 v{RES+4*g+1}, v{RES+4*g+3}")
        A("s_nop 1")
        for g in range(2):
            A(f"buffer_store_dwordx4 {vr(RES+4*g,4)}, v{vRes}, s[{S_C}:{S_C+3}], s34 offen offset:{32*g}")
    finish(A, 3)
    A("s_endpgm")
    A.label(helper)
    sJ = 29
    A(f"s_sub_u32 s{sJ}, s{S_W}, 4")
    A("v_lshrrev_b32 v2, 3, v0")
    A("v_lshlrev_b32 v2, 10, v2")
    A("v_bfe_u32 v3, v0, 4, 1")
    A("v_lshlrev_b32 v3, 2, v3")
    A("v_and_b32 v4, 7, v0")
    A("v_xor_b32 v3, v3, v4")
    A("v_lshl_add_u32 v2, v3, 4, v2")
    A(f"s_lshl_b32 s30, s{sCB}, 7")
    A(f"s_lshl_b32 s31, s{sJ}, 13")
    A("s_add_u32 s30, s30, s31")
    A("v_add_u32 v2, s30, v2")
    A(f"s_lshl_b32 s32, s{sJ}, 10")
    fin()
    def npieces(c):
        return min(8, NK - 8 * c) * 2 // 4
    def issue(c):
        for q in range(npieces(c)):
            A(f"s_mov_b32 s33, {(c*16 + q*4)*8192}")
            dma(A, 2, S_B, "s33", 32, (c % SLOTS) * 16384 + q * 4096)
    issued = 0
    for c in range(SLOTS):
        issue(c); issued += npieces(c)
    need = 0
    for c in range(NCH):
        need += npieces(c)
        A(f"s_waitcnt vmcnt({issued - need})")
        A("s_barrier")
        if c >= 2 and c - 2 + SLOTS < NCH:
            issue(c - 2 + SLOTS); issued += npieces(c - 2 + SLOTS)
    A("s_barrier")
    A.label(end)
    A("s_endpgm")

def k4(A, name):
    end = name + "_end"
    fin = prologue(A, name, [(72, S_WS, WS_BYTES), (32, S_A, 512 * 2752), (40, S_B, 512 * 2752)], end)
    CH = 12352; SLOTS = 13; SC = SLOTS * CH
    assert SC + 768 <= LDS_ALL
    sRB, sU0 = 27, 28
    A(f"s_lshl_b32 s{sRB}, s25, 1")
    A("s_and_b32 s29, s26, 1")
    A(f"s_add_u32 s{sRB}, s{sRB}, s29")
    A(f"s_lshr_b32 s{sU0}, s26, 1")
    A(f"s_mul_i32 s{sU0}, s{sU0}, {16*0x5556}")
    A(f"s_lshr_b32 s{sU0}, s{sU0}, 16")
    assert all((c * 16 * 0x5556) >> 16 == (16 * c) // 3 for c in range(16))
    vWa = 2
    A("v_lshrrev_b32 v6, 5, v0")
    A("v_lshlrev_b32 v5, 2, v6")
    A("v_bfe_u32 v7, v0, 2, 2")
    A("v_add_u32 v5, v5, v7")
    A(f"v_mul_u32_u24 v{vWa}, 192, v5")
    A("v_bfe_u32 v7, v0, 4, 1")
    A("v_mul_u32_u24 v7, 6176, v7")
    A(f"v_add_u32 v{vWa}, v{vWa}, v7")
    A("v_and_b32 v7, 3, v0")
    A(f"v_lshl_add_u32 v{vWa}, v7, 3, v{vWa}")
    vOnes = 5
    A(f"v_mov_b32 v{vOnes}, 0x3f803f80")
    helper = name + "_helper"
    A(f"s_cmp_ge_u32 s{S_W}, 4")
    A(f"s_cbranch_scc1 {helper}")
    A(f"v_add_u32 v{vWa+1}, 0x10000, v{vWa}")
    A(f"v_add_u32 v{vWa+2}, 0x20000, v{vWa}")
    R = Regs(7)
    vL16 = R.alloc()
    s1 = R.alloc(2, 2); s2 = R.alloc(2, 2); T = R.alloc(2, 2); nm = R.alloc(2, 2); var = R.alloc(2, 2); rl = R.alloc(2, 2)
    acc = [R.alloc(16, 4) for _ in range(6)]
    WF = [R.alloc(4, 4) for _ in range(6)]
    NH = 28
    HFr = [R.alloc(4, 4) for _ in range(NH)]
    sRU, sAo = 29, 30
    A(f"s_lshl_b32 s{sRU}, s{sRB}, 2")
    A(f"s_add_u32 s{sRU}, s{sRU}, s{S_W}")
    A(f"s_lshl_b32 s{sAo}, s{sRU}, 15")
    A(f"s_add_u32 s{sAo}, s{sAo}, {HF}")
    A(f"v_lshlrev_b32 v{vL16}, 4, v0")
    for r in (s1, s1 + 1, s2, s2 + 1):
        A(f"v_mov_b32 v{r}, 0")
    fin()
    def hload(s):
        A(f"buffer_load_dwordx4 {vr(HFr[s % NH],4)}, v{vL16}, s[{S_WS}:{S_WS+3}], s{sAo} offen offset:{1024*(s&3)}")
        if (s & 3) == 3 and s < 31:
            A(f"s_add_u32 s{sAo}, s{sAo}, 4096")
    for s in range(NH): hload(s)
    def reads(s, u):
        c = s >> 1
        out = []
        for sec in range(2):
            o = (c % SLOTS) * CH + (16 * (s & 1) + 8 * sec) * 192 + 32 * u
            out.append(f"ds_read_b64_tr_b16 {vr(WF[u]+2*sec,2)}, v{vWa+(o>>16)} offset:{o&0xffff}")
        return out
    A("s_barrier")
    stamp(A, 1)
    for u in range(6):
        for l in reads(0, u): A(l)
    issued = NH
    for s in range(32):
        H = HFr[s % NH]
        if s % 4 == 3 and s < 31:
            A("s_barrier")
        dots = []
        for r in range(4):
            dots.append(f"v_dot2_f32_bf16 v{s1+(r&1)}, v{H+r}, v{vOnes}, v{s1+(r&1)}")
            dots.append(f"v_dot2_f32_bf16 v{s2+(r&1)}, v{H+r}, v{H+r}, v{s2+(r&1)}")
        for u in range(6):
            lg = 10 if s < 31 else 2 * (5 - u)
            if u == 0:
                A(f"s_waitcnt vmcnt({issued-1-s}) lgkmcnt({lg})")
            else:
                A(f"s_waitcnt lgkmcnt({lg})")
            A(mfma(acc[u], WF[u], H, 0 if s == 0 else None))
            if s < 31:
                for l in reads(s + 1, u): A(l)
            for l in dots[2 * u:2 * u + 2] if u < 4 else []: A(l)
        if s + NH < 32:
            hload(s + NH); issued += 1
    CS = HFr[0]; E = HFr[8]; PK = HFr[12]
    stamp(A, 2)
    ln_stats(A, s1, s2, T, nm, var)
    A(f"v_rsq_f32 v{rl}, v{var}")
    A(f"v_lshlrev_b32 v{T}, 4, v6")
    A(f"v_add_u32 v{T}, {SC}, v{T}")
    A(f"v_mul_f32 v{rl}, {f32(-LOG2E)}, v{rl}")
    A(f"s_mul_i32 s31, s{sRU}, 86")
    A(f"s_add_u32 s31, s31, s{sU0}")
    A("s_lshl_b32 s31, s31, 10")
    A(f"s_add_u32 s31, s31, {GF}")
    A("s_add_u32 s32, s31, 4096")
    A("s_barrier")
    def csreads(u):
        for g in range(4):
            A(f"ds_read_b128 {vr(CS+16*(u&1)+4*g,4)}, v{T} offset:{128*u+32*g}")
    csreads(0)
    for u in range(6):
        a = acc[u]; c = CS + 16 * (u & 1)
        if u < 5: csreads(u + 1)
        A(f"s_waitcnt lgkmcnt({4 if u < 5 else 0})")
        for r in range(0, 16, 2):
            A(pk_fma(a + r, c + r, nm, a + r, bc=(1,)))
        for r in range(0, 8, 2):
            A(pk_mul(E + r, a + r, rl, bc=(1,)))
        for r in range(8):
            A(f"v_exp_f32 v{E+r}, v{E+r}")
        for r in range(0, 8, 2):
            A(pk_mul(a + r, a + r, a + 8 + r))
        for r in range(0, 8, 2):
            A(pk_fma(E + r, E + r, var, var, bc=(1, 2)))
        for r in range(8):
            A(f"v_rcp_f32 v{E+r}, v{E+r}")
        A("s_nop 0")
        for r in range(0, 8, 2):
            A(pk_mul(a + r, a + r, E + r))
        p = PK + 4 * (u & 1)
        for r in range(4):
            A(f"v_cvt_pk_bf16_f32 v{p+r}, v{a+2*r}, v{a+2*r+1}")
        A(f"buffer_store_dwordx4 {vr(p,4)}, v{vL16}, s[{S_WS}:{S_WS+3}], s{31 + (u>>2)} offen offset:{1024*(u&3)}")
    finish(A, 3)
    A("s_endpgm")
    A.label(helper)
    sJ = 29
    vWg = 8
    A(f"s_sub_u32 s{sJ}, s{S_W}, 4")
    A(f"s_and_b32 s30, s{sJ}, 1")
    A(f"s_mul_i32 s31, s30, {16*2752}")
    A(f"s_lshl_b32 s32, s{sU0}, 5")
    A("s_add_u32 s31, s31, s32")
    for r in range(3):
        A(f"v_add_u32 v16, {64*r}, v0")
        div12(A, 16, 17, 18)
        A(f"v_mul_u32_u24 v17, 2752, v17")
        A("v_lshl_add_u32 v17, v18, 4, v17")
        A(f"v_add_u32 v{vWg+r}, s31, v17")
    sM = 33
    A(f"s_mul_i32 s{sM}, s30, 3072")
    A(f"s_lshr_b32 s34, s{sJ}, 1")
    A("s_mul_i32 s32, s34, 6176")
    A(f"s_add_u32 s{sM}, s{sM}, s32")
    fin()
    A("s_cmp_eq_u32 s34, 1")
    A(f"s_cselect_b32 s{S_A}, s{S_B}, s{S_A}")
    A(f"s_cselect_b32 s{S_A+1}, s{S_B+1}, s{S_A+1}")
    def issue(c):
        A(f"s_mov_b32 s35, {c*32*2752}")
        for q in range(3):
            dma(A, vWg + q, S_A, "s35", sM, (c % SLOTS) * CH + q * 1024)
    for c in range(SLOTS): issue(c)
    issued = 3 * SLOTS
    cs = 20; CF = 24
    for r in range(4): A(f"v_mov_b32 v{cs+r}, 0")
    A(f"s_lshl_b32 s36, s{sJ}, 5")
    A(f"v_add_u32 v{vWa}, s36, v{vWa}")
    A(f"v_add_u32 v{vWa+1}, 0x10000, v{vWa}")
    A(f"v_add_u32 v{vWa+2}, 0x20000, v{vWa}")
    for C in range(8):
        A(f"s_waitcnt vmcnt({issued - 6*(C+1)})")
        A("s_barrier")
        if C == 1:
            issue(13); issued += 3
        if C == 2:
            issue(14); issue(15); issued += 6
        for half in range(2):
            for q in range(8):
                s = 4 * C + (q >> 1)
                o = ((s >> 1) % SLOTS) * CH + (16 * (s & 1) + 8 * (q & 1)) * 192 + 128 * half
                A(f"ds_read_b64_tr_b16 {vr(CF+2*q,2)}, v{vWa+(o>>16)} offset:{o&0xffff}")
            A("s_waitcnt lgkmcnt(0)")
            for r in range(16):
                A(f"v_dot2_f32_bf16 v{cs+2*half+(r&1)}, v{CF+r}, v{vOnes}, v{cs+2*half+(r&1)}")
    A("s_nop 2")
    A(f"v_add_f32 v{cs}, v{cs}, v{cs+1}")
    A(f"v_add_f32 v{cs+2}, v{cs+2}, v{cs+3}")
    halfsum(A, cs, cs + 1)
    halfsum(A, cs + 2, cs + 3)
    A("v_and_b32 v16, 31, v0")
    A(f"s_lshl_b32 s36, s{sJ}, 7")
    A(f"s_add_u32 s36, s36, {SC}")
    A("v_lshl_add_u32 v16, v16, 2, s36")
    A(f"ds_write_b32 v16, v{cs}")
    A(f"ds_write_b32 v16, v{cs+2} offset:512")
    A("s_waitcnt lgkmcnt(0)")
    A("s_barrier")
    A.label(end)
    A("s_endpgm")


def main():
    ref = open(f"cdna_kernels/{NAME}.s.ref").read().splitlines()
    head = []
    for l in ref:
        if l.startswith("; Override") or "@launch" in l or l.startswith("; grid="):
            continue
        if not l.startswith(";"):
            break
        head.append(l)
    names = ["qkv_kernel", "attn_kernel", "oproj_kernel", "ffn1_kernel", "ffn2_kernel"]
    for n in names:
        head.append(f"; @launch kernel={n} grid=(256,1,1) block=(512,1,1) lds={LDS_ALL}")
    A = Asm()
    A.raw('.amdgcn_target "amdgcn-amd-amdhsa--gfx950"')
    A.raw(".text")
    k1(A, names[0])
    k2(A, names[1])
    gemm64(A, names[2], 3)
    k4(A, names[3])
    gemm64(A, names[4], 5)
    out = "\n".join(head) + "\n" + A.text()
    for n in names:
        out += descriptor(n)
    path = sys.argv[1] if len(sys.argv) > 1 else f"cdna_kernels/{NAME}.s"
    open(path, "w").write(out)

if __name__ == "__main__":
    main()
```

```python
import sys, os, struct
sys.path.insert(0, os.path.dirname(os.path.abspath(__file__)))
from asmlib import *

NAME = "sequential_preLN__softmax_full_mha__glu_gated_swiglu__prompt"
KNAME = NAME + "_kernel"
E = os.environ.get
FS = int(E("FS", 64))
NONCE = 0
FL1 = 0x1000
FL2 = FL1 + 1024 * FS
FL3 = FL2 + 1024 * FS
FL4 = FL3 + 1024 * FS
assert FL4 + 3072 * FS <= 0x100000
QKV = 0x100000
OF = 0x700000
HF = 0x900000
GF = 0xB00000
ST2 = 0x1080000
TS = 0x1100000
WS_BYTES = 0x1200000
LOG2E = 1.4426950408889634
def f32(x):
    return hex(struct.unpack("<I", struct.pack("<f", x))[0])

S_T = 4
S_WS, S_X, S_WQ, S_WO, S_W1, S_W3, S_W2, S_OUT, S_DBG = 8, 12, 16, 20, 24, 28, 32, 36, 40
S_W, S_XCD, S_J = 44, 45, 46
S_TO = 47
vL16, vT, vP, RES = 1, 2, 4, 8
LDS_ALL = 163840
SCR = 161280
SC1, ST1, SC4 = SCR, SCR + 512, SCR + 1536
RING = 32896; SEG = 16640; TILE = 2080
WOB = 95744
BLK = 16448
XCH3 = SCR - 16384
STG = RING + 3 * SEG
assert STG + 8224 + 4096 <= WOB
XCH5 = 65728
STAMP = int(E("STAMP", 0))
TOLIM = 20000

class Q:
    def __init__(self, kind, A):
        self.kind, self.A, self.q = kind, A, []
        self.max = 63 if kind == "vmcnt" else 15
    def issue(self, tag, ins):
        self.A(ins); self.q.append(tag)
    def need(self, tags):
        idx = [i for i, t in enumerate(self.q) if t in tags]
        if not idx: return None
        n = len(self.q) - 1 - max(idx)
        n = min(n, self.max)
        self.q = self.q[len(self.q) - n:] if n else []
        return n
    def wait(self, tags):
        n = self.need(tags)
        if n is not None: self.A(f"s_waitcnt {self.kind}({n})")
    def drain(self):
        self.A(f"s_waitcnt {self.kind}(0)"); self.q = []

def wait2(A, VM, vt, LG, lt):
    a = VM.need(vt); b = LG.need(lt)
    s = []
    if a is not None: s.append(f"vmcnt({a})")
    if b is not None: s.append(f"lgkmcnt({b})")
    if s: A("s_waitcnt " + " ".join(s))

NST = [0]
def stamp(A, n):
    if STAMP:
        assert n < 11
        A(f"{'s_memtime' if STAMP == 2 else 's_memrealtime'} s[{80+2*n}:{81+2*n}]")
def dump_stamps(A, role, n):
    if not STAMP: return
    lab = A.newlabel("st")
    stamp(A, n)
    A(f"s_and_b32 s79, s{S_W}, 3")
    A("s_cmp_lg_u32 s79, 0")
    A(f"s_cbranch_scc1 {lab}")
    A("s_waitcnt lgkmcnt(0)")
    A("s_lshl_b32 s79, s2, 7")
    A(f"s_add_u32 s79, s79, {TS + role*64}")
    A("s_mov_b64 exec, 1")
    for i in range(n + 1):
        A(f"v_mov_b32 v4, s{80+2*i}")
        A(f"buffer_store_dword v4, off, s[{S_WS}:{S_WS+3}], s79 offset:{4*i}")
    A("s_waitcnt vmcnt(0)")
    A.label(lab)

def SR(n): return f"s[{n}:{n+3}]"

def dma(A, VM, tag, voff, srdn, soff, m0base, m0add):
    A(f"s_add_u32 m0, s{m0base}, {m0add}")
    A("s_nop 0")
    VM.issue(tag, f"buffer_load_dwordx4 v{voff}, {SR(srdn)}, {soff} offen lds")

def poll(A, voff, soff):
    l = A.newlabel("poll"); d = A.newlabel("pd")
    A(f"s_mov_b32 s{S_TO}, {TOLIM}")
    A.label(l)
    A(f"buffer_load_dwordx2 v[{vP}:{vP+1}], v{voff}, {SR(S_WS)}, s{soff} offen sc1")
    A("s_waitcnt vmcnt(0)")
    A(f"v_cmp_ne_u64 vcc, s[{S_T}:{S_T+1}], v[{vP}:{vP+1}]")
    A(f"s_cbranch_vccz {d}")
    A(f"s_sub_u32 s{S_TO}, s{S_TO}, 1")
    A(f"s_cbranch_scc0 {l}")
    A.label(d)

OOL = []
def poll_issue(A, VM, voff, soff):
    VM.issue("flag", f"buffer_load_dwordx2 v[{vP}:{vP+1}], v{voff}, {SR(S_WS)}, s{soff} offen sc1")
def poll_check(A, voff, soff):
    s = A.newlabel("slow"); r = A.newlabel("back")
    A(f"v_cmp_ne_u64 vcc, s[{S_T}:{S_T+1}], v[{vP}:{vP+1}]")
    A(f"s_cbranch_vccnz {s}")
    A.label(r)
    def ool(B):
        B.label(s)
        poll(B, voff, soff)
        B(f"s_branch {r}")
    OOL.append(ool)

def publish(A, soff):
    A("s_mov_b64 exec, 1")
    A(f"buffer_store_dwordx2 v[{vT}:{vT+1}], off, {SR(S_WS)}, s{soff} sc1")
    A("s_mov_b64 exec, -1")

def div12(A, idx, kr, wi):
    A(f"v_mul_u32_u24 v{kr}, 171, v{idx}")
    A(f"v_lshrrev_b32 v{kr}, 11, v{kr}")
    A(f"v_mul_u32_u24 v{wi}, 12, v{kr}")
    A(f"v_sub_u32 v{wi}, v{idx}, v{wi}")
assert all((i * 171) >> 11 == i // 12 for i in range(192))
assert all((i * 171) >> 9 == i // 3 for i in range(48))

def halfsum(A, r, t):
    A(f"v_mov_b32 v{t}, v{r}")
    A("s_nop 1")
    A(f"v_permlane32_swap_b32 v{r}, v{t}")
    A("s_nop 1")
    A(f"v_add_f32 v{r}, v{r}, v{t}")

def ln_final(s1, s2, t, nmean, var):
    return [f"v_mov_b32 v{t}, v{s1}", f"v_mov_b32 v{t+1}, v{s2}", "s_nop 1",
            f"v_permlane32_swap_b32 v{s1}, v{t}", f"v_permlane32_swap_b32 v{s2}, v{t+1}", "s_nop 1",
            f"v_add_f32 v{s1}, v{s1}, v{t}", f"v_add_f32 v{s2}, v{s2}, v{t+1}",
            f"v_mul_f32 v{nmean}, {f32(-1.0/512)}, v{s1}", f"v_mul_f32 v{s2}, {f32(1.0/512)}, v{s2}",
            f"v_fma_f32 v{var}, -v{nmean}, v{nmean}, v{s2}", f"v_max_f32 v{var}, 0, v{var}",
            f"v_add_f32 v{var}, {f32(1e-5)}, v{var}"]

def pk_fma(d, a, b, c, bc=()):
    hi = [0 if i in bc else 1 for i in range(3)]
    s = f"v_pk_fma_f32 {vr(d,2)}, {vr(a,2)}, {vr(b,2)}, {vr(c,2)}"
    if bc: s += f" op_sel_hi:[{hi[0]},{hi[1]},{hi[2]}]"
    return s
def pk_mul(d, a, b, bc=()):
    hi = [0 if i in bc else 1 for i in range(2)]
    s = f"v_pk_mul_f32 {vr(d,2)}, {vr(a,2)}, {vr(b,2)}"
    if bc: s += f" op_sel_hi:[{hi[0]},{hi[1]}]"
    return s
def pk_add(d, a, b):
    return f"v_pk_add_f32 {vr(d,2)}, {vr(a,2)}, {vr(b,2)}"

def swap23(A, d, t):
    A(f"v_and_b32 v{d}, 0x33, v0")
    A(f"v_bfe_u32 v{t}, v0, 2, 1")
    A(f"v_lshl_or_b32 v{d}, v{t}, 3, v{d}")
    A(f"v_bfe_u32 v{t}, v0, 3, 1")
    A(f"v_lshl_or_b32 v{d}, v{t}, 2, v{d}")
    A(f"v_lshlrev_b32 v{d}, 4, v{d}")

POS2 = [3 * BLK + 4096 * n for n in range(20)] + [9 * BLK + 4096 * n for n in range(3)] + \
       [8 * BLK + 4096 * n for n in range(4)] + [4096 * n for n in range(12)] + [3 * BLK + 4096 * n for n in range(4)]
assert len(POS2) == 43 and POS2[19] + 4096 <= 8 * BLK and POS2[22] + 4096 <= SCR and POS2[3] + 4096 <= 4 * BLK
def slot13(b): return (b if b < 9 else b - 9) * BLK

WB, XB = 0, 5 * 12288
sRB, sCB = 48, 49

def prologue(A):
    A.raw(f".globl {KNAME}")
    A.raw(".p2align 8")
    A.raw(f".type {KNAME},@function")
    A.label(KNAME)
    A("s_cmp_ge_u32 s2, 256")
    A("s_cbranch_scc1 L_end")
    stamp(A, 0)
    ptrs = [(72, S_WS, WS_BYTES), (0, S_X, 2048 * 1024), (8, S_WQ, 512 * 3072), (16, S_WO, 512 * 1024),
            (32, S_W1, 512 * 2752), (40, S_W3, 512 * 2752), (48, S_W2, 1376 * 1024), (56, S_OUT, 2048 * 1024), (64, S_DBG, 256)]
    for n, (off, d, nb) in enumerate(ptrs):
        A(f"s_load_dwordx2 s[{56+2*n}:{57+2*n}], s[0:1], {off}")
    A("v_lshrrev_b32 v1, 6, v0")
    A("v_and_b32 v0, 63, v0")
    A(f"v_readfirstlane_b32 s{S_W}, v1")
    A(f"s_and_b32 s{S_XCD}, s2, 7")
    A(f"s_lshr_b32 s{S_J}, s2, 3")
    A(f"v_lshlrev_b32 v{vL16}, 4, v0")
    A(f"s_and_b32 s{sRB}, s{S_XCD}, 3")
    A(f"s_lshl_b32 s{sRB}, s{sRB}, 2")
    A(f"s_and_b32 s50, s{S_J}, 3")
    A(f"s_add_u32 s{sRB}, s{sRB}, s50")
    A(f"s_lshr_b32 s{sCB}, s{S_XCD}, 2")
    A(f"s_lshl_b32 s{sCB}, s{sCB}, 3")
    A(f"s_lshr_b32 s50, s{S_J}, 2")
    A(f"s_add_u32 s{sCB}, s{sCB}, s50")
    def fin():
        A("s_waitcnt lgkmcnt(0)")
        A(f"s_load_dwordx2 s[6:7], s[56:57], {NONCE}")
        for n, (off, d, nb) in enumerate(ptrs):
            srd(A, d, 56 + 2 * n, nb)
    return fin

def make_T(A, vg=True):
    A(f"s_mul_i32 s{S_T}, s6, 0x9e3779b1")
    A(f"s_add_u32 s{S_T}, s{S_T}, 0x7f4a7c15")
    A(f"s_mul_i32 s{S_T+1}, s7, 0x85ebca6d")
    A(f"s_add_u32 s{S_T+1}, s{S_T+1}, 0x165667b1")
    if vg:
        A(f"v_mov_b32 v{vT}, s{S_T}")
        A(f"v_mov_b32 v{vT+1}, s{S_T+1}")

def k1_wa(A, vWa, t0, t1):
    A(f"v_lshrrev_b32 v{t0}, 5, v0")
    A(f"v_lshlrev_b32 v{t0}, 3, v{t0}")
    A(f"v_bfe_u32 v{t1}, v0, 2, 2")
    A(f"v_add_u32 v{t0}, v{t0}, v{t1}")
    A(f"v_mul_u32_u24 v{vWa}, 192, v{t0}")
    A(f"v_bfe_u32 v{t1}, v0, 4, 1")
    A(f"v_lshl_add_u32 v{vWa}, v{t1}, 5, v{vWa}")
    A(f"v_and_b32 v{t1}, 3, v0")
    A(f"v_lshl_add_u32 v{vWa}, v{t1}, 3, v{vWa}")

def c_k1(A, fin):
    R = Regs(8)
    vWa = R.alloc(); vOnes = R.alloc(); vt = R.alloc(); vh = R.alloc(); vAt = R.alloc(); tm = R.alloc(3)
    vXa = R.alloc(4); vXb = R.alloc(4)
    s1 = R.alloc(2, 2); s2 = R.alloc(2, 2)
    acc = [R.alloc(16, 4) for _ in range(3)]
    XF = [R.alloc(4, 4) for _ in range(3)]
    WF = [[R.alloc(4, 4) for _ in range(3)] for _ in range(3)]
    T = R.alloc(4, 2); nm = R.alloc(2, 2); rs = R.alloc(2, 2); rq = R.alloc(2, 2); csv = R.alloc(6, 2)
    CS = R.alloc(48, 4); VS = R.alloc(32, 4); PK = R.alloc(24, 4)
    vA = R.alloc(4); vVo = R.alloc()
    k1_wa(A, vWa, tm, tm + 1)
    A(f"v_mov_b32 v{vOnes}, 0x3f803f80")
    A(f"v_and_b32 v{vt}, 31, v0")
    A(f"v_lshrrev_b32 v{vh}, 5, v0")
    A(f"v_bfe_u32 v{tm}, v0, 1, 3")
    A(f"s_lshl_b32 s50, s{S_W}, 12")
    A(f"s_add_u32 s50, s50, {XB}")
    A(f"v_lshlrev_b32 v{tm+1}, 7, v{vt}")
    A(f"v_add_u32 v{tm+1}, s50, v{tm+1}")
    for i in range(4):
        A(f"v_or_b32 v{vXa+i}, {2*i}, v{vh}")
        A(f"v_xor_b32 v{vXa+i}, v{vXa+i}, v{tm}")
        A(f"v_lshl_add_u32 v{vXa+i}, v{vXa+i}, 4, v{tm+1}")
        A(f"v_add_u32 v{vXb+i}, 0x10000, v{vXa+i}")
    for r in (s1, s1 + 1, s2, s2 + 1):
        A(f"v_mov_b32 v{r}, 0")
    A(f"s_lshl_b32 s50, s{S_W}, 8")
    A(f"s_add_u32 s50, s50, {ST1}")
    A(f"v_lshl_add_u32 v{vA}, v0, 2, s50")
    A(f"v_lshl_add_u32 v{vA+1}, v{vh}, 4, s50")
    A(f"v_lshlrev_b32 v{vA+2}, 4, v{vh}")
    A(f"v_add_u32 v{vA+2}, {SC1}, v{vA+2}")
    A(f"v_lshlrev_b32 v{vA+3}, 2, v{vt}")
    A(f"v_add_u32 v{vA+3}, {SC1}, v{vA+3}")
    A(f"v_and_b32 v{vVo}, 15, v0")
    A(f"v_lshlrev_b32 v{vVo}, 4, v{vVo}")
    A(f"v_lshl_or_b32 v{vVo}, v{vh}, 8, v{vVo}")
    A(f"v_bfe_u32 v{tm}, v0, 4, 1")
    A(f"v_lshl_or_b32 v{vVo}, v{tm}, 16, v{vVo}")
    sRU, sB, sF, sFl = 50, 51, 54, 57
    fin()
    A(f"s_lshl_b32 s{sRU}, s{sRB}, 2")
    A(f"s_add_u32 s{sRU}, s{sRU}, s{S_W}")
    A(f"s_mul_i32 s58, s{sCB}, 3")
    A(f"s_lshl_b32 s59, s{sRU}, 10")
    A(f"s_add_u32 s59, s59, {QKV}")
    for u in range(3):
        A(f"s_lshl_b32 s{sB+u}, s58, 17")
        A(f"s_add_u32 s{sB+u}, s{sB+u}, s59")
        A("s_cmp_lt_u32 s58, 16")
        A(f"s_cselect_b32 s{sF+u}, {f32(0.25*LOG2E)}, 1.0")
        A("s_add_u32 s58, s58, 1")
    A(f"s_lshl_b32 s{sFl}, s{sCB}, 6")
    A(f"s_lshl_b32 s58, s{S_W}, 4")
    A(f"s_add_u32 s{sFl}, s{sFl}, s58")
    A(f"s_add_u32 s{sFl}, s{sFl}, s{sRB}")
    A(f"s_mul_i32 s{sFl}, s{sFl}, {FS}")
    A(f"s_add_u32 s{sFl}, s{sFl}, {FL1}")
    A("s_waitcnt lgkmcnt(0)")
    make_T(A)
    A(f"v_mov_b32 v{vAt}, 1")
    def reads(s):
        c, sub, b = s >> 2, s & 3, s % 3
        slot = c % 5
        out = []
        if slot < 4: out.append(f"ds_read_b128 {vr(XF[b],4)}, v{vXa+sub} offset:{slot*16384}")
        else: out.append(f"ds_read_b128 {vr(XF[b],4)}, v{vXb+sub}")
        for u in range(3):
            for sec in range(2):
                off = WB + slot * 12288 + (16 * sub + 4 * sec) * 192 + 64 * u
                out.append(f"ds_read_b64_tr_b16 {vr(WF[b][u]+2*sec,2)}, v{vWa} offset:{off}")
        return out
    A("s_barrier")
    stamp(A, 1)
    for l in reads(0) + reads(1): A(l)
    lab = A.newlabel("noat")
    A(f"s_cmp_lg_u32 s{S_W}, 0")
    A(f"s_cbranch_scc1 {lab}")
    A("s_mov_b64 exec, 1")
    A(f"buffer_atomic_add v{vAt}, off, {SR(S_DBG)}, 0 sc0")
    A("s_mov_b64 exec, -1")
    A.label(lab)
    A(f"s_cmp_eq_u32 s{sCB}, 10")
    A("s_cbranch_scc1 L_k1_v1")
    A(f"s_cmp_gt_u32 s{sCB}, 10")
    A("s_cbranch_scc1 L_k1_v3")
    for name, pat in (("L_k1_v0", (0, 0, 0)), ("L_k1_v1", (0, 0, 1)), ("L_k1_v3", (1, 1, 1))):
        A.label(name)
        for s in range(32):
            b = s % 3
            nx = reads(s + 2) if s + 2 < 32 else []
            if nx and (s + 2) % 4 == 0: A("s_barrier")
            A(f"s_waitcnt lgkmcnt({7 if s < 31 else 0})")
            dots = []
            for r in range(4):
                dots.append(f"v_dot2_f32_bf16 v{s1+(r&1)}, v{XF[b]+r}, v{vOnes}, v{s1+(r&1)}")
                dots.append(f"v_dot2_f32_bf16 v{s2+(r&1)}, v{XF[b]+r}, v{XF[b]+r}, v{s2+(r&1)}")
            c0 = 0 if s == 0 else None
            for u in range(3):
                A(mfma(acc[u], XF[b], WF[b][u], c0) if pat[u] else mfma(acc[u], WF[b][u], XF[b], c0))
                for l in (nx[0:4], nx[4:7], dots)[u]: A(l)
        stamp(A, 2)
        A("s_nop 2")
        A(f"v_add_f32 v{s1}, v{s1}, v{s1+1}")
        A(f"v_add_f32 v{s2}, v{s2}, v{s2+1}")
        for l in ln_final(s1, s2, T, nm, rs): A(l)
        A(f"v_rsq_f32 v{rs}, v{rs}")
        if any(pat):
            A("v_cmp_gt_u32 vcc, 32, v0")
            A("s_nop 1")
            A(f"v_cndmask_b32 v{T}, v{nm}, v{rs}, vcc")
            A(f"ds_write_b32 v{vA}, v{T}")
            A("s_waitcnt lgkmcnt(0)")
            for g in range(4):
                A(f"ds_read_b128 {vr(VS+4*g,4)}, v{vA+1} offset:{32*g}")
                A(f"ds_read_b128 {vr(VS+16+4*g,4)}, v{vA+1} offset:{128+32*g}")
            A("s_waitcnt lgkmcnt(0)")
        A("s_barrier")
        LG = Q("lgkmcnt", A)
        for u in range(3):
            if pat[u]:
                LG.issue(u, f"ds_read_b32 v{csv+2*u}, v{vA+3} offset:{128*u}")
            else:
                for g in range(4):
                    LG.issue(u, f"ds_read_b128 {vr(CS+16*u+4*g,4)}, v{vA+2} offset:{128*u+32*g}")
        for u in range(3):
            a = acc[u]
            if not pat[u]: A(f"v_mul_f32 v{rq}, s{sF+u}, v{rs}")
            LG.wait([u])
            for r in range(0, 16, 2):
                A(pk_fma(a + r, VS + 16 + r, csv + 2 * u, a + r, bc=(1,)) if pat[u] else pk_fma(a + r, CS + 16 * u + r, nm, a + r, bc=(1,)))
            for r in range(0, 16, 2):
                A(pk_mul(a + r, a + r, VS + r) if pat[u] else pk_mul(a + r, a + r, rq, bc=(1,)))
            for r in range(8):
                A(f"v_cvt_pk_bf16_f32 v{PK+8*u+r}, v{a+2*r}, v{a+2*r+1}")
            if pat[u]:
                A(f"buffer_store_dwordx4 {vr(PK+8*u,4)}, v{vVo}, {SR(S_WS)}, s{sB+u} offen sc1")
                A(f"buffer_store_dwordx4 {vr(PK+8*u+4,4)}, v{vVo}, {SR(S_WS)}, s{sB+u} offen offset:512 sc1")
            else:
                A(f"s_add_u32 s58, s{sB+u}, 0x10000")
                A(f"buffer_store_dwordx4 {vr(PK+8*u,4)}, v{vL16}, {SR(S_WS)}, s{sB+u} offen sc1")
                A(f"buffer_store_dwordx4 {vr(PK+8*u+4,4)}, v{vL16}, {SR(S_WS)}, s58 offen sc1")
        if name != "L_k1_v3": A("s_branch L_k1_done")
    A.label("L_k1_done")
    A("s_waitcnt vmcnt(0)")
    publish(A, sFl)
    lab = A.newlabel("nonn")
    A(f"v_readfirstlane_b32 s58, v{vAt}")
    A(f"s_cmp_lg_u32 s{S_W}, 0")
    A(f"s_cbranch_scc1 {lab}")
    A("s_cmp_lg_u32 s58, 255")
    A(f"s_cbranch_scc1 {lab}")
    A(f"s_mov_b32 s58, {NONCE}")
    publish(A, 58)
    A.label(lab)
    stamp(A, 3)

def attn_ids(A, sHead, sQB):
    A(f"s_lshl_b32 s{sHead}, s{S_XCD}, 2")
    A(f"s_and_b32 s{sQB}, s{S_J}, 3")
    A(f"s_add_u32 s{sHead}, s{sHead}, s{sQB}")
    A(f"s_lshr_b32 s{sQB}, s{S_J}, 2")

def g64_ids(A, sRU, sKH, sCU, t):
    A(f"s_lshl_b32 s{sRU}, s{S_XCD}, 2")
    A(f"s_and_b32 s{t}, s{S_J}, 3")
    A(f"s_add_u32 s{sRU}, s{sRU}, s{t}")
    A(f"s_lshl_b32 s{sRU}, s{sRU}, 1")
    A(f"s_and_b32 s{t}, s{S_W}, 1")
    A(f"s_add_u32 s{sRU}, s{sRU}, s{t}")
    A(f"s_lshr_b32 s{sKH}, s{S_W}, 1")
    A(f"s_lshr_b32 s{sCU}, s{S_J}, 2")
    A(f"s_lshl_b32 s{sCU}, s{sCU}, 1")
    A(f"s_add_u32 s{sCU}, s{sCU}, s{sKH}")
sRU5, sKH5, sCU5 = 60, 61, 62

def c_attn(A):
    sHead, sQB, sRU, sSlot, sTrip = 48, 49, 50, 51, 52
    R = Regs(16)
    vIdx = R.alloc(); vVl = R.alloc(); vK = R.alloc(2); vV = R.alloc(2); T = R.alloc(2, 2)
    Qa = R.alloc(4, 4); Qb = R.alloc(4, 4)
    Na = R.alloc(16, 4); Nb = R.alloc(16, 4)
    Oa = R.alloc(16, 4); Ob = R.alloc(16, 4)
    Sa = R.alloc(16, 4); Sb = R.alloc(16, 4)
    K = [R.alloc(4, 4), R.alloc(4, 4)]
    V = [R.alloc(8, 4), R.alloc(8, 4)]
    attn_ids(A, sHead, sQB)
    A(f"s_lshl_b32 s{sRU}, s{sQB}, 3")
    A(f"s_lshl_b32 s53, s{S_W}, 1")
    A(f"s_add_u32 s{sRU}, s{sRU}, s53")
    A(f"s_lshr_b32 s53, s{sHead}, 1")
    A("s_mul_i32 s53, s53, 171")
    A("s_lshr_b32 s53, s53, 9")
    A("s_lshl_b32 s53, s53, 6")
    A(f"s_and_b32 s54, s{sRU}, 3")
    A("s_lshl_b32 s54, s54, 4")
    A("s_add_u32 s53, s53, s54")
    A(f"s_lshr_b32 s54, s{sRU}, 2")
    A("s_add_u32 s53, s53, s54")
    A(f"s_mul_i32 s53, s53, {FS}")
    A(f"s_add_u32 s53, s53, {FL1}")
    A(f"v_and_b32 v{T}, 1, v0")
    A(f"v_mul_u32_u24 v{T}, {16*FS}, v{T}")
    A(f"s_lshl_b32 s54, s{sHead}, 16")
    A(f"s_lshl_b32 s55, s{sRU}, 10")
    A("s_add_u32 s54, s54, s55")
    A(f"s_add_u32 s54, s54, {QKV}")
    g64_ids(A, sRU5, sKH5, sCU5, 55)
    A(f"v_and_b32 v{T+1}, 31, v0")
    A(f"v_lshlrev_b32 v{vK}, 10, v{T+1}")
    A(f"v_lshrrev_b32 v{T+1}, 5, v0")
    A(f"v_lshl_add_u32 v{vK}, v{T+1}, 3, v{vK}")
    A(f"s_lshl_b32 s55, s{sRU5}, 15")
    A(f"s_lshl_b32 s56, s{sCU5}, 6")
    A("s_add_u32 s55, s55, s56")
    A(f"v_mov_b32 v{vIdx}, 0xdddddddd")
    A(f"v_and_b32 v{vVl}, 15, v0")
    A(f"v_lshlrev_b32 v{vVl}, 4, v{vVl}")
    A(f"v_lshl_add_u32 v{vVl}, v{T+1}, 8, v{vVl}")
    A(f"v_and_b32 v{T+1}, 16, v0")
    A(f"v_cmp_eq_u32 vcc, 0, v{T+1}")
    A(f"v_mov_b32 v{T+1}, 512")
    for r in range(16):
        A(f"v_mov_b32 v{Oa+r}, 0")
        A(f"v_mov_b32 v{Ob+r}, 0")
        if r >= 8: A(f"v_mov_b32 v{Sb+r}, 0")
        if r < 4: A(f"v_mov_b32 v{V[1]+4+r}, 0")
    A(f"v_cndmask_b32 v{vVl}, v{T+1}, v{vVl}, vcc")
    for q in range(2):
        A(f"v_add_u32 v{vV+q}, {RING+q*SEG}, v{vVl}")
    A(f"s_mov_b32 s{sSlot}, {RING+SEG}")
    A(f"s_mov_b32 s{sTrip}, 0")
    poll(A, T, 53)
    A(f"buffer_load_dwordx4 {vr(Qa,4)}, v{vL16}, {SR(S_WS)}, s54 offen sc1")
    A(f"buffer_load_dwordx4 {vr(Qb,4)}, v{vL16}, {SR(S_WS)}, s54 offen offset:1024 sc1")
    for g in range(4):
        A(f"buffer_load_dwordx2 {vr(RES+2*g,2)}, v{vK}, {SR(S_X)}, s55 offen offset:{16*g}")
    for q in range(2):
        A(f"v_add_u32 v{vK+q}, {RING+q*SEG}, v{vL16}")
    A("s_barrier")
    stamp(A, 4)
    A(f"ds_read_b128 {vr(K[0],4)}, v{vK} offset:1056")
    A(f"ds_read_b128 {vr(V[0],4)}, v{vV}")
    A(f"ds_read_b128 {vr(V[0]+4,4)}, v{vV} offset:528")
    A(f"ds_read_b128 {vr(K[1],4)}, v{vK} offset:{TILE+1056}")
    A("s_waitcnt vmcnt(4) lgkmcnt(3)")
    A(mfma(Na, K[0], Qa, 0))
    A(mfma(Nb, K[0], Qb, 0))
    A("s_nop 7")
    A("s_nop 2")
    def rowmax(N):
        A(f"v_max3_f32 v{T}, v{N}, v{N+1}, v{N+2}")
        A(f"v_max3_f32 v{T+1}, v{N+3}, v{N+4}, v{N+5}")
        for r in range(6, 14, 4):
            A(f"v_max3_f32 v{T}, v{N+r}, v{N+r+1}, v{T}")
            A(f"v_max3_f32 v{T+1}, v{N+r+2}, v{N+r+3}, v{T+1}")
        A(f"v_max3_f32 v{T}, v{N+14}, v{N+15}, v{T}")
        A(f"v_max_f32 v{T}, v{T}, v{T+1}")
        A(f"v_mov_b32 v{T+1}, v{T}")
        A("s_nop 1")
        A(f"v_permlane32_swap_b32 v{T}, v{T+1}")
        A("s_nop 1")
        A(f"v_max_f32 v{T}, v{T}, v{T+1}")
        A(f"v_sub_f32 v{T}, 0, v{T}")
        for r in range(16):
            A(f"v_mov_b32 v{N+r}, v{T}")
    rowmax(Na)
    A("s_nop 1")
    A(mfma(Sa, K[0], Qa, Na))
    rowmax(Nb)
    def ex(S, lo, hi):
        for r in range(lo, hi): A(f"v_exp_f32 v{S+r}, v{S+r}")
    A.raw(".p2align 6")
    A.label("L_attn")
    p1, p2, p3 = 2, 7, 12
    for q in range(2):
        for t in range(8):
            c = t & 1; n = c ^ 1
            va, vo = (vV + q, TILE * (t + 1)) if t + 1 < 8 else (vV + (q ^ 1), 0)
            ka, ko = (vK + q, TILE * (t + 2)) if t + 2 < 8 else (vK + (q ^ 1), TILE * (t + 2 - 8))
            ex(Sa, 0, p1)
            A(smfmac(Ob, V[n] + 4, Sb + 8, vIdx))
            A(f"ds_read_b128 {vr(V[n],4)}, v{va} offset:{vo}")
            ex(Sa, p1, p2)
            A(mfma(Sb, K[c], Qb, Nb))
            A(f"ds_read_b128 {vr(V[n]+4,4)}, v{va} offset:{vo+528}")
            ex(Sa, p2, p3)
            A("s_waitcnt lgkmcnt(2)")
            A(smfmac(Oa, V[c], Sa, vIdx))
            if t == 6: A("s_barrier")
            A(f"ds_read_b128 {vr(K[c],4)}, v{ka} offset:{ko+1056}")
            ex(Sa, p3, 16)
            ex(Sb, 0, p1)
            A(smfmac(Oa, V[c] + 4, Sa + 8, vIdx))
            if t == 7:
                A(f"s_add_u32 s{sSlot}, s{sSlot}, {SEG}")
                A(f"s_cmp_eq_u32 s{sSlot}, {RING+3*SEG}")
                A(f"s_cselect_b32 s{sSlot}, {RING}, s{sSlot}")
            ex(Sb, p1, p2)
            A(mfma(Sa, K[n], Qa, Na))
            if t == 7:
                A(f"v_add_u32 v{vK+q}, s{sSlot}, v{vL16}")
                A(f"v_add_u32 v{vV+q}, s{sSlot}, v{vVl}")
            ex(Sb, p2, p3)
            A(smfmac(Ob, V[c], Sb, vIdx))
            if t == 7 and q == 1:
                A(f"s_add_u32 s{sTrip}, s{sTrip}, 1")
                A(f"s_cmp_lt_u32 s{sTrip}, 4")
            ex(Sb, p3, 16)
    A("s_cbranch_scc1 L_attn")
    A("s_nop 1")
    A(smfmac(Ob, V[1] + 4, Sb + 8, vIdx))
    A("s_waitcnt lgkmcnt(0)")
    A("s_barrier")
    stamp(A, 5)
    A(f"s_lshl_b32 s53, s{sRU}, 15")
    A(f"s_lshl_b32 s54, s{sHead}, 10")
    A("s_add_u32 s53, s53, s54")
    A(f"s_add_u32 s53, s53, {OF}")
    A("s_add_u32 s55, s53, 0x8000")
    A(f"s_lshl_b32 s54, s{sRU}, 4")
    A(f"s_and_b32 s56, s{sHead}, 1")
    A("s_lshl_b32 s56, s56, 4")
    A("s_add_u32 s54, s54, s56")
    A(f"s_lshr_b32 s56, s{sHead}, 1")
    A("s_add_u32 s54, s54, s56")
    A(f"s_mul_i32 s54, s54, {FS}")
    A(f"s_add_u32 s54, s54, {FL2}")
    A(f"v_mov_b32 v{T}, {f32(2.0**30)}")
    for nm_, O, Qx, so in (("a", Oa, Qa, 53), ("b", Ob, Qb, 55)):
        A(f"v_cmp_nge_f32 vcc, v{T}, v{O+8}")
        A(f"s_cbranch_vccnz L_fb_{nm_}")
        A.label(f"L_fz_{nm_}")
        A(f"v_rcp_f32 v{vK}, v{O+8}")
        A("s_nop 0")
        for r in range(0, 8, 2):
            A(pk_mul(O + r, O + r, vK, bc=(1,)))
        for r in range(4):
            A(f"v_cvt_pk_bf16_f32 v{O+12+r}, v{O+2*r}, v{O+2*r+1}")
        A(f"buffer_store_dwordx4 {vr(O+12,4)}, v{vL16}, {SR(S_WS)}, s{so} offen sc1")
        def ool(B, nm_=nm_, O=O, Qx=Qx):
            B.label(f"L_fb_{nm_}")
            swap23(B, vK, vK + 1)
            B(f"s_lshl_b32 s57, s{sHead}, 16")
            B(f"s_add_u32 s57, s57, {QKV + 0x200000}")
            B("s_mov_b32 s58, s57")
            B(f"v_mov_b32 v{Nb}, 0xff800000")
            B(f"s_mov_b32 s{sTrip}, 0")
            B.label(f"L_fb1_{nm_}")
            B(f"buffer_load_dwordx4 {vr(K[0],4)}, v{vK}, {SR(S_WS)}, s58 offen sc1")
            B("s_waitcnt vmcnt(0)")
            B(mfma(Sa, K[0], Qx, 0))
            B("s_nop 7")
            B("s_nop 7")
            for r in range(0, 16, 2):
                B(f"v_max3_f32 v{Nb}, v{Sa+r}, v{Sa+r+1}, v{Nb}")
            B("s_add_u32 s58, s58, 1024")
            B(f"s_add_u32 s{sTrip}, s{sTrip}, 1")
            B(f"s_cmp_lt_u32 s{sTrip}, 64")
            B(f"s_cbranch_scc1 L_fb1_{nm_}")
            B(f"v_mov_b32 v{Nb+1}, v{Nb}")
            B("s_nop 1")
            B(f"v_permlane32_swap_b32 v{Nb}, v{Nb+1}")
            B("s_nop 1")
            B(f"v_max_f32 v{Nb}, v{Nb}, v{Nb+1}")
            B(f"v_sub_f32 v{Nb}, 0, v{Nb}")
            for r in range(16):
                B(f"v_mov_b32 v{Na+r}, v{Nb}")
                B(f"v_mov_b32 v{O+r}, 0")
            for r in range(8):
                B(f"v_mov_b32 v{V[0]+r}, 0x3f803f80")
            B("s_mov_b32 s58, s57")
            B(f"s_mov_b32 s{sTrip}, 0")
            B("s_mov_b32 s64, 0x0000ffff")
            B("s_mov_b32 s65, 0x0000ffff")
            B.label(f"L_fb2_{nm_}")
            B("s_add_u32 s59, s58, 0x200000")
            B(f"buffer_load_dwordx4 {vr(K[0],4)}, v{vK}, {SR(S_WS)}, s58 offen sc1")
            B("s_mov_b64 exec, s[64:65]")
            B(f"buffer_load_dwordx4 {vr(V[0],4)}, v{vVl}, {SR(S_WS)}, s59 offen sc1")
            B(f"buffer_load_dwordx4 {vr(V[0]+4,4)}, v{vVl}, {SR(S_WS)}, s59 offen offset:512 sc1")
            B("s_mov_b64 exec, -1")
            B("s_waitcnt vmcnt(0)")
            B(mfma(Sa, K[0], Qx, Na))
            B("s_nop 7")
            B("s_nop 7")
            for r in range(16): B(f"v_exp_f32 v{Sa+r}, v{Sa+r}")
            B("s_nop 1")
            B(smfmac(O, V[0], Sa, vIdx))
            B(smfmac(O, V[0] + 4, Sa + 8, vIdx))
            B("s_nop 7")
            B("s_add_u32 s58, s58, 1024")
            B(f"s_add_u32 s{sTrip}, s{sTrip}, 1")
            B(f"s_cmp_lt_u32 s{sTrip}, 64")
            B(f"s_cbranch_scc1 L_fb2_{nm_}")
            B("s_nop 7")
            B("s_nop 7")
            B(f"s_branch L_fz_{nm_}")
        OOL.append(ool)
    return 54

def g64_addr(A, keep, send, t, base):
    A(f"v_lshrrev_b32 v{t}, 5, v0")
    A(f"v_lshlrev_b32 v{t}, 2, v{t}")
    A(f"v_bfe_u32 v{t+1}, v0, 2, 2")
    A(f"v_add_u32 v{t}, v{t}, v{t+1}")
    A(f"v_lshlrev_b32 v{t}, 7, v{t}")
    A(f"v_bfe_u32 v{t+1}, v0, 4, 1")
    A(f"v_lshl_add_u32 v{t}, v{t+1}, 5, v{t}")
    A(f"v_and_b32 v{t+1}, 3, v0")
    A(f"v_lshl_add_u32 v{t}, v{t+1}, 3, v{t}")
    A(f"v_bfe_u32 v{t+1}, v0, 3, 1")
    A(f"v_xor_b32 v{t+1}, s{sKH5}, v{t+1}")
    A(f"v_lshl_add_u32 v{t}, v{t+1}, 6, v{t}")
    A(f"v_xor_b32 v{t+1}, 64, v{t}")
    A(f"s_lshl_b32 s59, s{sKH5}, 11")
    if base: A(f"s_add_u32 s59, s59, {base}")
    A(f"v_add_u32 v{keep}, s59, v{t}")
    A(f"v_add_u32 v{send}, s59, v{t+1}")

def exchange(A, acc, UN, T, xch):
    A(f"s_lshl_b32 s59, s{S_W}, 12")
    A(f"s_add_u32 s58, s59, {xch}")
    A(f"v_add_u32 v{T}, s58, v{vL16}")
    A("s_xor_b32 s59, s59, 0x2000")
    A(f"s_add_u32 s59, s59, {xch}")
    A(f"v_add_u32 v{T+1}, s59, v{vL16}")
    for r in range(4):
        A(f"v_lshlrev_b32 v{UN+2*r}, 16, v{RES+r}")
        A(f"v_and_b32 v{UN+2*r+1}, 0xffff0000, v{RES+r}")
    for q in range(4):
        A(f"ds_write_b128 v{T}, {vr(acc[1]+4*q,4)} offset:{1024*q}")
    for r in range(4, 8):
        A(f"v_lshlrev_b32 v{UN+2*r}, 16, v{RES+r}")
        A(f"v_and_b32 v{UN+2*r+1}, 0xffff0000, v{RES+r}")
    A("s_waitcnt lgkmcnt(0)")
    A("s_barrier")
    for q in range(4):
        A(f"ds_read_b128 {vr(acc[1]+4*q,4)}, v{T+1} offset:{1024*q}")
    for r in range(0, 16, 2):
        A(pk_add(acc[0] + r, acc[0] + r, UN + r))

def c_k3(A, sPub):
    R = Regs(16)
    T = R.alloc(4, 2); vA = R.alloc(2); vFo = R.alloc(); vSo = R.alloc()
    acc = [R.alloc(16, 4), R.alloc(16, 4)]
    WF = [[R.alloc(4, 4) for _ in range(2)] for _ in range(3)]
    R.n = 160
    AF = [R.alloc(4, 4) for _ in range(16)]
    A(f"s_lshl_b32 s48, s{sRU5}, 15")
    A(f"s_lshl_b32 s49, s{sKH5}, 10")
    A("s_add_u32 s48, s48, s49")
    A(f"s_add_u32 s48, s48, {OF}")
    A(f"s_lshr_b32 s49, s{sRU5}, 1")
    A("s_lshl_b32 s49, s49, 1")
    A(f"s_add_u32 s49, s49, s{sKH5}")
    A(f"s_mul_i32 s49, s49, {16*FS}")
    A(f"s_add_u32 s49, s49, {FL2}")
    A(f"v_and_b32 v{vFo}, 15, v0")
    A(f"v_mul_u32_u24 v{vFo}, {FS}, v{vFo}")
    g64_addr(A, vA, vA + 1, T, WOB)
    A("s_waitcnt vmcnt(0)")
    publish(A, sPub)
    def reads(n):
        out = []
        for k in range(2):
            for sec in range(2):
                out.append(f"ds_read_b64_tr_b16 {vr(WF[n%3][k]+2*sec,2)}, v{vA+k} offset:{n*4096+sec*1024}")
        return out
    for l in reads(0) + reads(1): A(l)
    poll(A, vFo, 49)
    NS = 16
    for n in range(NS):
        A(f"buffer_load_dwordx4 {vr(AF[n],4)}, v{vL16}, {SR(S_WS)}, s48 offen offset:{2048*(n&1)} sc1")
        if n & 1 and n + 1 < NS: A("s_add_u32 s48, s48, 4096")
    stamp(A, 6)
    A(f"s_lshl_b32 s50, s{sRU5}, 15")
    A(f"s_lshl_b32 s51, s{sCU5}, 11")
    A("s_add_u32 s50, s50, s51")
    A(f"s_add_u32 s50, s50, {HF}")
    A(f"s_lshl_b32 s51, s{sRU5}, 4")
    A(f"s_add_u32 s51, s51, s{sCU5}")
    A(f"s_mul_i32 s52, s51, {FS}")
    A(f"s_add_u32 s52, s52, {FL3}")
    A("s_lshl_b32 s51, s51, 8")
    A(f"s_add_u32 s51, s51, {ST2}")
    A(f"v_and_b32 v{vSo}, 31, v0")
    A(f"v_lshlrev_b32 v{vSo}, 3, v{vSo}")
    for n in range(NS):
        nx = reads(n + 2) if n + 2 < NS else []
        A(f"s_waitcnt vmcnt({NS-1-n}) lgkmcnt({4 if n < NS-1 else 0})")
        c0 = 0 if n == 0 else None
        A(mfma(acc[0], WF[n % 3][0], AF[n], c0))
        for l in nx[0:2]: A(l)
        A(mfma(acc[1], WF[n % 3][1], AF[n], c0))
        for l in nx[2:4]: A(l)
    A("s_barrier")
    UN = AF[0]
    exchange(A, acc, UN, T, XCH3)
    a = acc[0]
    for q in range(4):
        A(f"s_waitcnt lgkmcnt({3-q})")
        A(pk_add(a + 4 * q, a + 4 * q, acc[1] + 4 * q))
        A(pk_add(a + 4 * q + 2, a + 4 * q + 2, acc[1] + 4 * q + 2))
    for r in range(8):
        A(f"v_cvt_pk_bf16_f32 v{RES+r}, v{a+2*r}, v{a+2*r+1}")
    for g in range(2):
        A(f"buffer_store_dwordx4 {vr(RES+4*g,4)}, v{vL16}, {SR(S_WS)}, s50 offen offset:{1024*g} sc1")
    sq = acc[1]
    for r in range(0, 16, 2):
        A(pk_mul(sq + r, a + r, a + r))
    for w in (8, 4, 2):
        for r in range(0, w, 2):
            A(pk_add(a + r, a + r, a + w + r))
            A(pk_add(sq + r, sq + r, sq + w + r))
    A(f"v_add_f32 v{T}, v{a}, v{a+1}")
    A(f"v_add_f32 v{T+1}, v{sq}, v{sq+1}")
    A(f"v_mov_b32 v{T+2}, v{T}")
    A(f"v_mov_b32 v{T+3}, v{T+1}")
    A("s_nop 1")
    A(f"v_permlane32_swap_b32 v{T}, v{T+2}")
    A(f"v_permlane32_swap_b32 v{T+1}, v{T+3}")
    A("s_nop 1")
    A(pk_add(T, T, T + 2))
    A(f"buffer_store_dwordx2 {vr(T,2)}, v{vSo}, {SR(S_WS)}, s51 offen sc1")
    return 52

def c_k45(A, sPub):
    H = [16 + 4 * i for i in range(32)]
    acc = [[144, 160], [176, 192]]
    WF = [[208 + 8 * b + 4 * u for u in range(2)] for b in range(3)]
    CS, EE = 232, 240
    nm, var, rl = 248, 250, 252
    vWa = [249, 251, 253]; vCS, vFo = 254, 255
    PK = vP
    sRU, sC, sAo, sSo, sGo, sF4, sG5, sP5 = 48, 49, 50, 51, 53, 56, 57, 63
    A(f"s_lshl_b32 s{sRU}, s{S_XCD}, 1")
    A(f"s_and_b32 s58, s{S_J}, 1")
    A(f"s_add_u32 s{sRU}, s{sRU}, s58")
    A(f"s_lshl_b32 s{sRU}, s{sRU}, 2")
    A(f"s_add_u32 s{sRU}, s{sRU}, s{S_W}")
    A(f"s_lshr_b32 s{sC}, s{S_J}, 1")
    A(f"s_lshl_b32 s{sAo}, s{sRU}, 15")
    A(f"s_add_u32 s{sAo}, s{sAo}, {HF}")
    A(f"s_lshl_b32 s{sSo}, s{sRU}, 12")
    A(f"s_add_u32 s{sSo}, s{sSo}, {ST2}")
    A(f"s_mul_i32 s58, s{sRU}, {86*1024}")
    A(f"s_add_u32 s58, s58, {GF}")
    for p in range(3):
        A(f"s_add_u32 s59, s{sC}, {16*p}")
        if p == 2: A("s_min_u32 s59, s59, 42")
        A("s_lshl_b32 s59, s59, 11")
        A(f"s_add_u32 s{sGo+p}, s58, s59")
    A(f"s_lshl_b32 s{sF4}, s{sRU}, 4")
    A(f"s_mul_i32 s64, s{sF4}, {FS}")
    A(f"s_add_u32 s64, s64, {FL3}")
    A(f"s_add_u32 s{sF4}, s{sF4}, s{sC}")
    A(f"s_mul_i32 s{sF4}, s{sF4}, {FS}")
    A(f"s_add_u32 s{sF4}, s{sF4}, {FL4}")
    A(f"s_mul_i32 s{sG5}, s{sRU5}, {86*1024}")
    A(f"s_lshl_b32 s58, s{sKH5}, 10")
    A(f"s_add_u32 s{sG5}, s{sG5}, s58")
    A(f"s_add_u32 s{sG5}, s{sG5}, {GF}")
    A(f"s_mul_i32 s{sP5}, s{sRU5}, {16*FS}")
    A(f"s_add_u32 s{sP5}, s{sP5}, {FL4}")
    A(f"v_and_b32 v{vFo}, 15, v0")
    A(f"v_mul_u32_u24 v{vFo}, {FS}, v{vFo}")
    t = CS
    A(f"v_lshrrev_b32 v{t}, 5, v0")
    A(f"v_lshlrev_b32 v{vCS}, 4, v{t}")
    A(f"v_add_u32 v{vCS}, {SC4}, v{vCS}")
    A(f"v_lshlrev_b32 v{t+2}, 11, v{t}")
    A(f"v_and_b32 v{t+1}, 31, v0")
    A(f"v_lshl_add_u32 v{t+2}, v{t+1}, 3, v{t+2}")
    A(f"v_lshlrev_b32 v{t}, 2, v{t}")
    A(f"v_bfe_u32 v{t+1}, v0, 2, 2")
    A(f"v_add_u32 v{t}, v{t}, v{t+1}")
    A(f"v_lshlrev_b32 v{t}, 6, v{t}")
    A(f"v_bfe_u32 v{t+1}, v0, 4, 1")
    A(f"v_mul_u32_u24 v{t+1}, 8224, v{t+1}")
    A(f"v_add_u32 v{t}, v{t}, v{t+1}")
    A(f"v_and_b32 v{t+1}, 3, v0")
    A(f"v_lshl_add_u32 v{vWa[0]}, v{t+1}, 3, v{t}")
    A(f"v_add_u32 v{vWa[1]}, 0x10000, v{vWa[0]}")
    A(f"v_add_u32 v{vWa[2]}, 0x20000, v{vWa[0]}")
    g64_addr(A, 6, 7, 208, 0)
    A("s_waitcnt vmcnt(0)")
    publish(A, sPub)
    stamp(A, 7)
    poll(A, vFo, 64)
    VM = Q("vmcnt", A); LG = Q("lgkmcnt", A)
    SD = acc[1][0]
    for s in range(32):
        VM.issue(("H", s), f"buffer_load_dwordx4 {vr(H[s],4)}, v{vL16}, {SR(S_WS)}, s{sAo} offen offset:{1024*(s&3)} sc1")
        if (s & 3) == 3 and s < 31: A(f"s_add_u32 s{sAo}, s{sAo}, 4096")
        if s == 7:
            for i in range(8):
                VM.issue("st", f"buffer_load_dwordx2 {vr(SD+2*i,2)}, v{t+2}, {SR(S_WS)}, s{sSo} offen offset:{256*i} sc1")
    A("s_barrier")
    stamp(A, 8)
    def reads(S):
        p, s = divmod(S, 32)
        out = []
        for u in range(2):
            for sec in range(2):
                o = slot13(4 * p + (s >> 3)) + (s & 7) * 1024 + sec * 512 + 32 * u
                out.append((("W", S), f"ds_read_b64_tr_b16 {vr(WF[S%3][u]+2*sec,2)}, v{vWa[o>>16]} offset:{o&0xffff}"))
        return out
    for tg, l in reads(0) + reads(1): LG.issue(tg, l)

    def V(s, c=4): return (c, lambda: A(s))
    def stats_items():
        it = [(0, lambda: VM.wait(["st"]))]
        for w in (8, 4, 2):
            for r in range(w): it.append(V(f"v_add_f32 v{SD+r}, v{SD+r}, v{SD+w+r}"))
        for l in ln_final(SD, SD + 1, SD + 2, nm, var): it.append(V(l))
        it.append(V(f"v_rsq_f32 v{rl}, v{var}", 8))
        it.append(V("s_nop 0"))
        it.append(V(f"v_mul_f32 v{rl}, {f32(-LOG2E)}, v{rl}"))
        return it
    def cs_reads(U, tag):
        for g in range(2): LG.issue(tag, f"ds_read_b128 {vr(CS+4*g,4)}, v{vCS} offset:{128*U+32*g}")
        for g in range(2): LG.issue(tag, f"ds_read_b128 {vr(EE+4*g,4)}, v{vCS} offset:{128*U+64+32*g}")
    def epi_items(p, u):
        a = acc[p & 1][u]; U = 2 * p + u
        it = [(16, lambda: cs_reads(U, ("cs", U))), (40, lambda: None), (4, lambda: LG.wait([("cs", U)]))]
        for r in range(8): it.append(V(f"v_fma_f32 v{a+r}, v{CS+r}, v{nm}, v{a+r}"))
        for r in range(8): it.append(V(f"v_fma_f32 v{a+8+r}, v{EE+r}, v{nm}, v{a+8+r}"))
        for r in range(8):
            it.append(V(f"v_mul_f32 v{EE+r}, v{a+r}, v{rl}"))
        for r in range(8):
            it.append(V(f"v_exp_f32 v{EE+r}, v{EE+r}", 8))
            it.append(V(f"v_mul_f32 v{a+r}, v{a+r}, v{a+8+r}"))
        for r in range(8): it.append(V(f"v_fma_f32 v{EE+r}, v{EE+r}, v{var}, v{var}"))
        for r in range(8):
            it.append(V(f"v_rcp_f32 v{EE+r}, v{EE+r}", 8))
            if r >= 2: it.append(V(f"v_mul_f32 v{a+r-2}, v{a+r-2}, v{EE+r-2}"))
        it.append(V(f"v_mul_f32 v{a+6}, v{a+6}, v{EE+6}"))
        it.append(V(f"v_cvt_pk_bf16_f32 v{a+8}, v{a}, v{a+1}"))
        it.append(V(f"v_mul_f32 v{a+7}, v{a+7}, v{EE+7}"))
        for r in range(1, 4): it.append(V(f"v_cvt_pk_bf16_f32 v{a+8+r}, v{a+2*r}, v{a+2*r+1}"))
        it.append((4, lambda: VM.issue(("G", U), f"buffer_store_dwordx4 {vr(a+8,4)}, v{vL16}, {SR(S_WS)}, s{sGo+p} offen offset:{1024*u} sc1")))
        return it
    AF = H + [144 + 4 * i for i in range(8)] + [232, 236, 240]
    def gload(n):
        VM.issue(("A", n), f"buffer_load_dwordx4 {vr(AF[n],4)}, v{vL16}, {SR(S_WS)}, s{sG5} offen offset:{2048*(n&1)} sc1")
        if n & 1: A(f"s_add_u32 s{sG5}, s{sG5}, 4096")
    BUD = [int(x) for x in E("BUD", "15,15,15").split(",")]
    EV = [int(x) for x in E("EV", "11,17,23,0,4,10,18,24").split(",")]
    vA5 = [[6, 249, 251], [7, 253, 254]]
    for p in range(3):
        bud = BUD[p]
        if p == 0: items = [(28 * bud, lambda: None)] + stats_items()
        else: items = [(2 * bud, lambda: None)] + epi_items(p - 1, 0) + epi_items(p - 1, 1)
        credit = 0
        ng = 0
        for s in range(32):
            S = 32 * p + s
            nx = reads(S + 2) if S + 2 < 96 else []
            if p and s == 0: A("s_barrier")
            wait2(A, VM, [("H", s)] if p == 0 else [], LG, [("W", S)])
            for u in range(2):
                A(mfma(acc[p & 1][u], WF[S % 3][u], H[s], 0 if s == 0 else None))
                for tg, l in nx[2 * u:2 * u + 2]: LG.issue(tg, l)
                credit += bud
                if p == 2:
                    if u == 1 and s == EV[0]:
                        VM.wait([("G", 0), ("G", 1)])
                        publish(A, sF4); VM.q.append("pub")
                        A(f"s_add_u32 s{sF4}, s{sF4}, {1024*FS}")
                        credit -= 12
                    if u == 1 and s == EV[1]:
                        poll_issue(A, VM, vFo, sP5); credit -= 4
                    if u == 0 and s == EV[2]:
                        VM.wait(["flag"])
                        poll_check(A, vFo, sP5)
                        A(f"s_add_u32 s{sP5}, s{sP5}, {1024*FS}")
                        credit -= 8
                    if s >= EV[2] and ng < 16 and ng < s:
                        gload(ng); ng += 1; credit -= 4
                while items and (items[0][0] <= credit or (s == 31 and u == 1)):
                    c, f = items.pop(0)
                    f(); credit -= c
        assert not items
    while ng < 16:
        gload(ng); ng += 1
    C2 = H[28]; E2 = H[26]
    cs_reads(4, ("cs", 4))
    for g in range(4): LG.issue(("cs", 5), f"ds_read_b128 {vr(C2+4*g,4)}, v{vCS} offset:{128*5+32*g}")
    for k in range(2):
        for w in (1, 2): A(f"v_add_u32 v{vA5[k][w]}, {w*65536}, v{vA5[k][0]}")
    A("s_barrier")
    stamp(A, 9)
    def reads5(n):
        out = []
        for k in range(2):
            for sec in range(2):
                o = POS2[n] + sec * 1024
                out.append((("W5", n), f"ds_read_b64_tr_b16 {vr(WF[n%3][k]+2*sec,2)}, v{vA5[k][o>>16]} offset:{o&0xffff}"))
        return out
    for u in range(2):
        a = acc[0][u]; c = (CS, C2)[u]; e = (CS, E2)[u]
        LG.wait([("cs", 4 + u)])
        if u == 1:
            for tg, l in reads5(0) + reads5(1): LG.issue(tg, l)
        for r in range(0, 16, 2): A(pk_fma(a + r, c + r, nm, a + r, bc=(1,)))
        for r in range(0, 8, 2): A(pk_mul(e + r, a + r, rl, bc=(1,)))
        for r in range(8): A(f"v_exp_f32 v{e+r}, v{e+r}")
        for r in range(0, 8, 2): A(pk_mul(a + r, a + r, a + 8 + r))
        for r in range(0, 8, 2): A(pk_fma(e + r, e + r, var, var, bc=(1, 2)))
        for r in range(8): A(f"v_rcp_f32 v{e+r}, v{e+r}")
        A("s_nop 0")
        for r in range(0, 8, 2): A(pk_mul(a + r, a + r, e + r))
        for r in range(4): A(f"v_cvt_pk_bf16_f32 v{a+8+r}, v{a+2*r}, v{a+2*r+1}")
        VM.issue(("G", 4 + u), f"buffer_store_dwordx4 {vr(a+8,4)}, v{vL16}, {SR(S_WS)}, s{sGo+2} offen offset:{1024*u} sc1")
    acc5 = acc[1]
    NS = 43
    for n in range(NS):
        nx = reads5(n + 2) if n + 2 < NS else []
        if n in (21, 37): A("s_barrier")
        if n == EV[3]:
            VM.wait([("G", 2), ("G", 3)])
            publish(A, sF4); VM.q.append("pub")
            A(f"s_add_u32 s{sF4}, s{sF4}, {1024*FS}")
        wait2(A, VM, [("A", n)], LG, [("W5", n)])
        for u in range(2):
            A(mfma(acc5[u], WF[n % 3][u], AF[n], 0 if n == 0 else None))
            for tg, l in nx[2 * u:2 * u + 2]: LG.issue(tg, l)
            if u == 1 and n in (EV[4], EV[6]): poll_issue(A, VM, vFo, sP5)
            if u == 0 and n in (EV[5], EV[7]):
                VM.wait(["flag"])
                if n == EV[5]:
                    assert VM.need([("G", 4), ("G", 5)]) is None
                    publish(A, sF4); VM.q.append("pub")
                poll_check(A, vFo, sP5)
                if n == EV[5]: A(f"s_add_u32 s{sP5}, s{sP5}, {1024*FS}")
            if (n >= EV[5] and ng < 32) or (n >= EV[7] and ng < NS):
                gload(ng); ng += 1
                if (ng < 32 or 32 < ng < NS) and ng <= n + int(E("GA", 8)):
                    gload(ng); ng += 1
    T = H[8]
    exchange(A, acc5, H[0], T, XCH5)
    A(f"v_and_b32 v{T}, 31, v0")
    A(f"v_lshlrev_b32 v{T+1}, 10, v{T}")
    A(f"v_lshrrev_b32 v{T}, 5, v0")
    A(f"v_lshl_add_u32 v{T+1}, v{T}, 4, v{T+1}")
    A(f"s_lshl_b32 s58, s{sRU5}, 15")
    A(f"s_lshl_b32 s59, s{sCU5}, 6")
    A("s_add_u32 s58, s58, s59")
    a = acc5[0]
    for q in range(4):
        A(f"s_waitcnt lgkmcnt({3-q})")
        A(pk_add(a + 4 * q, a + 4 * q, acc5[1] + 4 * q))
        A(pk_add(a + 4 * q + 2, a + 4 * q + 2, acc5[1] + 4 * q + 2))
    for r in range(8):
        A(f"v_cvt_pk_bf16_f32 v{RES+r}, v{a+2*r}, v{a+2*r+1}")
    A("s_nop 1")
    for g in range(2):
        A(f"v_permlane32_swap_b32 v{RES+4*g}, v{RES+4*g+2}")
        A(f"v_permlane32_swap_b32 v{RES+4*g+1}, v{RES+4*g+3}")
    A("s_nop 1")
    for g in range(2):
        A(f"buffer_store_dwordx4 {vr(RES+4*g,4)}, v{T+1}, {SR(S_OUT)}, s58 offen offset:{32*g}")
    if STAMP: A("s_waitcnt vmcnt(0)")
    dump_stamps(A, 0, 10)
    A("s_endpgm")

def mfma16(d, a, b, c=None):
    c = vr(d, 4) if c is None else "0"
    return f"v_mfma_f32_16x16x32_bf16 {vr(d,4)}, {vr(a,4)}, {vr(b,4)}, {c}"

def helper(A, fin):
    VM = Q("vmcnt", A); LG = Q("lgkmcnt", A)
    sJ, sMX, sMW = 50, 51, 52
    ONE = 44; ACC = 20
    vXg, vWg, vWa, vAdd = 8, 12, 15, 16
    t = 2
    A(f"s_sub_u32 s{sJ}, s{S_W}, 4")
    A(f"s_lshl_b32 s53, s{sRB}, 17")
    A(f"s_lshl_b32 s54, s{sJ}, 15")
    A("s_add_u32 s53, s53, s54")
    A(f"v_lshrrev_b32 v{t}, 3, v0")
    A(f"v_lshlrev_b32 v{t}, 10, v{t}")
    A(f"v_add_u32 v{t}, s53, v{t}")
    A(f"v_and_b32 v{t+1}, 7, v0")
    A(f"v_lshrrev_b32 v{t+2}, 4, v0")
    A(f"v_xor_b32 v{t+1}, v{t+1}, v{t+2}")
    A(f"v_lshl_add_u32 v{vXg}, v{t+1}, 4, v{t}")
    A(f"v_xor_b32 v{vXg+1}, 64, v{vXg}")
    A(f"v_add_u32 v{vXg+1}, 0x2000, v{vXg+1}")
    A(f"v_add_u32 v{vXg+2}, 0x4000, v{vXg}")
    A(f"v_add_u32 v{vXg+3}, 0x4000, v{vXg+1}")
    A(f"s_mul_i32 s53, s{sJ}, {16*3072}")
    A(f"s_mul_i32 s54, s{sCB}, 192")
    A("s_add_u32 s53, s53, s54")
    for r in range(3):
        A(f"v_add_u32 v{t}, {64*r}, v0")
        div12(A, t, t + 1, t + 2)
        A(f"v_mul_u32_u24 v{t+1}, 3072, v{t+1}")
        A(f"v_lshl_add_u32 v{t+1}, v{t+2}, 4, v{t+1}")
        A(f"v_add_u32 v{vWg+r}, s53, v{t+1}")
    A(f"s_lshl_b32 s{sMX}, s{sJ}, 12")
    A(f"s_mul_i32 s{sMW}, s{sJ}, 3072")
    fin()
    def issue(c):
        slot = c % 5
        A(f"s_movk_i32 s53, {c*128}")
        A(f"s_mov_b32 s54, {c*64*3072}")
        for q in range(4):
            dma(A, VM, ("c", c), vXg + q, S_X, "s53", sMX, XB + slot * 16384 + q * 1024)
            if q < 3: dma(A, VM, ("c", c), vWg + q, S_WQ, "s54", sMW, WB + slot * 12288 + q * 1024)
    D1 = int(E("D1", 3))
    for c in range(D1): issue(c)
    k1_wa(A, vWa, t, t + 1)
    A(f"v_add_u32 v{vWa}, s{sMW}, v{vWa}")
    A("s_mov_b32 vcc_lo, 0x00100001")
    A("s_mov_b32 vcc_hi, 0x00100001")
    A(f"v_mov_b32 v{t}, 0")
    A(f"v_mov_b32 v{t+1}, 0x3f803f80")
    for r in range(4):
        A(f"v_cndmask_b32 v{ONE+r}, v{t}, v{t+1}, vcc")
        A(f"v_mov_b32 v{4+r}, 0")
    A(f"v_add_u32 v{t}, {SCR}, v{vL16}")
    A(f"ds_write_b128 v{t}, v[4:7]")
    A(f"ds_write_b128 v{t}, v[4:7] offset:1536")
    A(f"v_lshlrev_b32 v{vAdd}, 2, v0")
    A(f"v_add_u32 v{vAdd}, {SCR}, v{vAdd}")
    A("s_waitcnt lgkmcnt(0)")
    make_T(A, False)
    CF = 48
    for c in range(8):
        VM.wait([("c", c)])
        A("s_barrier")
        if c == 0: stamp(A, 1)
        slot = c % 5
        for u in range(3):
            for sec in range(2):
                A(f"ds_read_b64_tr_b16 {vr(CF+4*u+2*sec,2)}, v{vWa} offset:{WB + slot*12288 + 4*sec*192 + 64*u}")
        if c + D1 < 8: issue(c + D1)
        A("s_waitcnt lgkmcnt(0)")
        for u in range(3): A(mfma16(ACC + 4 * u, ONE, CF + 4 * u, 0 if c == 0 else None))
    sHead, sK, sFl = 53, 54, 55
    vKg, vVg, vKd, vVd, vFl = 8, 9, 10, 11, 12
    attn_ids(A, sHead, 56)
    swap23(A, vKg, t)
    A(f"v_add_u32 v{vVg}, 0x200000, v{vL16}")
    A("s_mov_b32 exec_hi, 0")
    for u in range(3): A(f"ds_add_f32 v{vAdd}, v{ACC+4*u} offset:{SC1-SCR+128*u}")
    A("s_mov_b32 exec_hi, -1")
    A(f"s_mul_i32 s56, s{sJ}, {TILE}")
    A(f"s_add_u32 s57, s56, {RING+1056}")
    A(f"v_add_u32 v{vKd}, s57, v{vL16}")
    A(f"v_lshrrev_b32 v{t}, 5, v0")
    A(f"v_lshlrev_b32 v{t}, 4, v{t}")
    A(f"s_add_u32 s57, s56, {RING}")
    A(f"v_add3_u32 v{vVd}, v{vL16}, v{t}, s57")
    A("s_waitcnt lgkmcnt(0)")
    A("s_barrier")
    stamp(A, 2)
    A(f"v_lshrrev_b32 v{t}, 4, v0")
    A(f"v_min_u32 v{t}, 2, v{t}")
    A(f"v_mul_u32_u24 v{t}, {SEG}, v{t}")
    A(f"v_bfe_u32 v{t+1}, v0, 1, 3")
    A(f"v_mul_u32_u24 v{t+1}, {TILE}, v{t+1}")
    A(f"v_add_u32 v{t}, v{t}, v{t+1}")
    A(f"v_and_b32 v{t+1}, 1, v0")
    A(f"v_mul_u32_u24 v{t+1}, 528, v{t+1}")
    A(f"v_add_u32 v{t}, v{t}, v{t+1}")
    for r in range(4): A(f"v_mov_b32 v{ACC+r}, 0x3f803f80")
    A(f"ds_write_b128 v{t}, {vr(ACC,4)} offset:{RING+512}")
    A(f"s_lshr_b32 s56, s{sHead}, 1")
    A("s_add_u32 s57, s56, 16")
    A("s_mul_i32 s57, s57, 171")
    A("s_lshr_b32 s57, s57, 9")
    A("s_add_u32 s56, s56, 32")
    A("s_mul_i32 s56, s56, 171")
    A("s_lshr_b32 s56, s56, 9")
    A("s_sub_u32 s56, s56, s57")
    A(f"s_mul_i32 s56, s56, {64*FS}")
    A("s_lshl_b32 s57, s57, 2")
    A(f"s_add_u32 s57, s57, s{sJ}")
    A(f"s_mul_i32 s{sFl}, s57, {16*FS}")
    A(f"s_add_u32 s{sFl}, s{sFl}, {FL1}")
    A(f"v_bfe_u32 v{t}, v0, 4, 1")
    A(f"v_mul_lo_u32 v{t}, v{t}, s56")
    A(f"v_and_b32 v{vFl}, 15, v0")
    A(f"v_mad_u32_u24 v{vFl}, v{vFl}, {FS}, v{t}" if FS <= 64 else "ERR")
    A(f"s_lshl_b32 s{sK}, s{sHead}, 16")
    A(f"s_lshl_b32 s56, s{sJ}, 10")
    A(f"s_add_u32 s{sK}, s{sK}, s56")
    A(f"s_add_u32 s{sK}, s{sK}, {QKV + 0x200000}")
    vW13, vG64 = 13, 14
    sPair, sM1 = 57, 60
    A(f"v_lshrrev_b32 v{t}, 2, v0")
    A(f"v_mul_u32_u24 v{t}, 2752, v{t}")
    A(f"v_and_b32 v{t+1}, 3, v0")
    A(f"v_lshl_add_u32 v{t}, v{t+1}, 4, v{t}")
    A(f"s_mul_i32 s56, s{sJ}, {16*2752}")
    A(f"v_add_u32 v{vW13}, s56, v{t}")
    A(f"v_lshrrev_b32 v{t}, 3, v0")
    A(f"v_lshlrev_b32 v{t}, 10, v{t}")
    A(f"v_bfe_u32 v{t+1}, v0, 4, 1")
    A(f"v_lshlrev_b32 v{t+1}, 2, v{t+1}")
    A(f"v_and_b32 v{vG64}, 7, v0")
    A(f"v_xor_b32 v{t+1}, v{t+1}, v{vG64}")
    A(f"v_lshl_add_u32 v{t}, v{t+1}, 4, v{t}")
    A(f"s_lshr_b32 s56, s{S_J}, 2")
    A("s_lshl_b32 s56, s56, 7")
    A(f"s_lshl_b32 s{sM1}, s{sJ}, 13")
    A(f"s_add_u32 s56, s56, s{sM1}")
    A(f"v_add_u32 v{vG64}, s56, v{t}")
    A(f"s_lshl_b32 s{sM1}, s{sJ}, 10")
    A(f"s_lshr_b32 s56, s{S_J}, 1")
    for p in range(3):
        A(f"s_add_u32 s{sPair+p}, s56, {16*p}")
        if p == 2: A(f"s_min_u32 s{sPair+p}, s{sPair+p}, 42")
        A(f"s_lshl_b32 s{sPair+p}, s{sPair+p}, 6")
    quad = lambda q: 48 + 4 * q
    def kvload(i):
        VM.issue(("kv", i >> 1), f"buffer_load_dwordx4 {vr(quad(20+2*i),4)}, v{vKg}, {SR(S_WS)}, s{sK} offen sc1")
        VM.issue(("kv", i >> 1), f"buffer_load_dwordx4 {vr(quad(21+2*i),4)}, v{vVg}, {SR(S_WS)}, s{sK} offen sc1")
        if i < 15: A(f"s_add_u32 s{sK}, s{sK}, 4096")
    def kvwrite(s):
        VM.wait([("kv", s)])
        for i in (2 * s, 2 * s + 1):
            o = (s % 3) * SEG + 4 * (i & 1) * TILE
            A(f"ds_write_b128 v{vKd}, {vr(quad(20+2*i),4)} offset:{o}")
            A(f"ds_write_b128 v{vVd}, {vr(quad(21+2*i),4)} offset:{o}")
    def w13src(b, qh):
        p, kb = divmod(b, 4)
        A(f"s_add_u32 s61, s{sPair+p}, {(128*kb+64*qh)*2752}")
    def w13dma(b):
        for qh in range(2):
            w13src(b, qh)
            for mat in range(2):
                dma(A, VM, ("b", b), vW13, (S_W1, S_W3)[mat], "s61", sM1, slot13(b) + mat * 8224 + qh * 4096)
    BQ = lambda b, qh, mat: quad(20 + 4 * (b - 4) + 2 * qh + mat)
    def w13load(b):
        for qh in range(2):
            w13src(b, qh)
            for mat in range(2):
                VM.issue(("b", b), f"buffer_load_dwordx4 {vr(BQ(b,qh,mat),4)}, v{vW13}, {SR((S_W1, S_W3)[mat])}, s61 offen")
    W2Q = lambda n: quad(n) if n < 20 else quad(20 + n - 23)
    def w2load(n):
        A(f"s_mov_b32 s61, {n*32768}")
        VM.issue(("w2", n), f"buffer_load_dwordx4 {vr(W2Q(n),4)}, v{vG64}, {SR(S_W2)}, s61 offen")
    def g64dma(tag, srdn, n, pos):
        A(f"s_mov_b32 s61, {n*32768}")
        dma(A, VM, tag, vG64, srdn, "s61", sM1, pos)
    def bar():
        A("s_waitcnt lgkmcnt(0)"); LG.q = []
        A("s_barrier")
    poll(A, vFl, sFl)
    stamp(A, 3)
    KV0 = int(E("KV0", 6))
    for i in range(KV0): kvload(i)
    kvwrite(0)
    bar()
    stamp(A, 4)
    for i in range(KV0, 16): kvload(i)
    kvwrite(1)
    bar()
    VM.drain()
    kvwrite(2)
    for n in range(16): g64dma("wo", S_WO, n, WOB + 4096 * n)
    bar()
    kvwrite(3)
    w13dma(0); w13dma(1)
    for n in range(4): w2load(n)
    bar()
    kvwrite(4)
    for n in range(4, 16): w2load(n)
    bar()
    kvwrite(5)
    for n in range(16, 20): w2load(n)
    w13load(4); w13load(5)
    bar()
    kvwrite(6)
    w13load(6); w13load(7); w13load(8)
    bar()
    kvwrite(7)
    w13load(9); w13load(10)
    A("s_waitcnt lgkmcnt(0)")
    w13load(11)
    bar()
    vWr, vTr = [8, 9, 10], [11, 12, 15]
    A(f"v_add_u32 v{vWr[0]}, s{sM1}, v{vL16}")
    A(f"v_lshrrev_b32 v{t}, 5, v0")
    A(f"v_lshlrev_b32 v{t}, 2, v{t}")
    A(f"v_bfe_u32 v{t+1}, v0, 2, 2")
    A(f"v_add_u32 v{t}, v{t}, v{t+1}")
    A(f"v_lshlrev_b32 v{t}, 6, v{t}")
    A(f"v_bfe_u32 v{t+1}, v0, 4, 1")
    A(f"v_mul_u32_u24 v{t+1}, 8224, v{t+1}")
    A(f"v_add3_u32 v{t}, v{t}, v{t+1}, s{sM1}")
    A(f"v_and_b32 v{t+1}, 3, v0")
    A(f"v_lshl_add_u32 v{vTr[0]}, v{t+1}, 3, v{t}")
    for w in (1, 2):
        A(f"v_add_u32 v{vWr[w]}, {w*65536}, v{vWr[0]}")
        A(f"v_add_u32 v{vTr[w]}, {w*65536}, v{vTr[0]}")
    A(f"v_mov_b32 v3, v{vAdd}")
    vAdd = 3
    bar()
    w13dma(2)
    VM.wait(["wo"])
    bar()
    stamp(A, 5)
    w13dma(3)
    def ldsw(tag, pos, r):
        LG.issue(tag, f"ds_write_b128 v{vWr[pos>>16]}, {vr(r,4)} offset:{pos&0xffff}")
    def blockw(b):
        VM.wait([("b", b)])
        for qh in range(2):
            for mat in range(2): ldsw(("bw", b), slot13(b) + mat * 8224 + qh * 4096, BQ(b, qh, mat))
    first = set()
    def run_jobs(jobs, bufs):
        def issue_job(k):
            b, qh, st = jobs[k]
            VM.wait([("b", b)])
            base = STG if st else slot13(b) + qh * 4096
            if st:
                for mat in range(2): ldsw("stg", STG + mat * 8224, BQ(b, qh, mat))
            for u in range(2):
                for sec in range(2):
                    o = base + sec * 512 + 32 * u
                    LG.issue(("j", k), f"ds_read_b64_tr_b16 {vr(bufs[k % len(bufs)][u]+2*sec,2)}, v{vTr[o>>16]} offset:{o&0xffff}")
        for k in range(min(len(bufs) - 1, len(jobs))): issue_job(k)
        for k in range(len(jobs)):
            if k + len(bufs) - 1 < len(jobs): issue_job(k + len(bufs) - 1)
            LG.wait([("j", k)])
            g = jobs[k][0] // 4
            for u in range(2): A(mfma16(ACC + 8 * g + 4 * u, ONE, bufs[k % len(bufs)][u], None if g in first else 0))
            first.add(g)
    blockw(4)
    LG.wait([("bw", 4)])
    bufs = [(4, 16), (BQ(4, 0, 0), BQ(4, 0, 1)), (BQ(4, 1, 0), BQ(4, 1, 1))]
    run_jobs([(b, qh, b >= 8) for b in (4, 0, 1, 8, 9, 10, 11) for qh in range(2)], bufs)
    stamp(A, 6)
    bar()
    A("s_barrier")
    for b in (5, 6, 7): blockw(b)
    run_jobs([(b, qh, False) for b in (5, 6, 7, 2, 3) for qh in range(2)], bufs)
    A("s_nop 7")
    A("s_mov_b32 exec_hi, 0")
    for U in range(6): A(f"ds_add_f32 v{vAdd}, v{ACC+4*U} offset:{SC4-SCR+128*U}")
    A("s_mov_b32 exec_hi, -1")
    stamp(A, 7)
    bar()
    blockw(8)
    for n in range(20, 23): g64dma("w2d", S_W2, n, POS2[n])
    bar()
    def w2w(n):
        VM.wait([("w2", n)])
        ldsw("w2", POS2[n], W2Q(n))
    for b in (9, 10, 11): blockw(b)
    for n in range(4): w2w(n)
    for n in range(23, 43): w2load(n)
    bar()
    for n in range(4, 20): w2w(n)
    VM.wait(["w2d"])
    bar()
    for n in range(23, 39): w2w(n)
    stamp(A, 8)
    bar()
    for n in range(39, 43): w2w(n)
    bar()
    A("s_barrier")
    dump_stamps(A, 1, 9)

def descriptor():
    return f""".section .rodata,"a"
.p2align 6
.amdhsa_kernel {KNAME}
  .amdhsa_next_free_vgpr 256
  .amdhsa_next_free_sgpr 102
  .amdhsa_accum_offset 256
  .amdhsa_group_segment_fixed_size 0
  .amdhsa_kernarg_size 80
  .amdhsa_user_sgpr_count 2
  .amdhsa_user_sgpr_kernarg_segment_ptr 1
  .amdhsa_system_sgpr_workgroup_id_x 1
.end_amdhsa_kernel
"""

def main():
    ref = open(f"cdna_kernels/{NAME}.s.ref").read().splitlines()
    head = []
    for l in ref:
        if l.startswith("; Override") or "@launch" in l or l.startswith("; grid="): continue
        if not l.startswith(";"): break
        head.append(l)
    head.append(f"; @launch grid=(256,1,1) block=(512,1,1) lds={LDS_ALL}")
    A = Asm()
    A.raw('.amdgcn_target "amdgcn-amd-amdhsa--gfx950"')
    A.raw(".text")
    fin = prologue(A)
    A(f"s_cmp_ge_u32 s{S_W}, 4")
    A("s_cbranch_scc1 L_helper")
    c_k1(A, fin)
    f = c_attn(A)
    f = c_k3(A, f)
    c_k45(A, f)
    A.label("L_helper")
    helper(A, fin)
    A.label("L_end")
    A("s_endpgm")
    i = 0
    while i < len(OOL):
        OOL[i](A); i += 1
    out = "\n".join(head) + "\n" + A.text() + descriptor()
    path = sys.argv[1] if len(sys.argv) > 1 else f"cdna_kernels/{NAME}.s"
    open(path, "w").write(out)

if __name__ == "__main__":
    main()
```

```python
import sys, os, struct
sys.path.insert(0, os.path.dirname(os.path.abspath(__file__)))
from asmlib import *

NAME = "sequential_preLN__softmax_full_mha__glu_gated_swiglu__prompt"
KNAME = NAME + "_kernel"
E = os.environ.get
FS = int(E("FS", 16))
NONCE = 0
FL1 = 0x1000
FL2 = FL1 + 256 * FS
FL3 = FL2 + 256 * FS
DUMMY = 0x40000
assert FL3 + 1024 * FS <= DUMMY
QKV = 0x100000
OF = 0x700000
HF = 0x900000
GF = 0xB00000
ST2 = 0x1060000
TS = 0x1100000
WS_BYTES = 0x1200000
LOG2E = 1.4426950408889634
def f32(x):
    return hex(struct.unpack("<I", struct.pack("<f", x))[0])

S_T = 4
S_WS, S_X, S_WQ, S_WO, S_W1, S_W3, S_W2, S_OUT, S_DBG = 8, 12, 16, 20, 24, 28, 32, 36, 40
S_W, S_XCD, S_J = 44, 45, 46
S_TO = 47
S_TX = 6
S_MODE = 66
PSTG = 82816
vL16, vP, RES = 1, 4, 8
LDS_ALL = 163840
SCR = 161280
SC1, ST1, SC4 = SCR, SCR + 512, SCR + 1536
RING = 32896; SEG = 16640; TILE = 2080
WOB = 95744
BLK = 16448
XCH3 = SCR - 16384
XCH5 = 65728
STAMP = int(E("STAMP", 0))
TOLIM = 20000

class Q:
    def __init__(self, kind, A):
        self.kind, self.A, self.q = kind, A, []
        self.max = 63 if kind == "vmcnt" else 15
    def issue(self, tag, ins):
        self.A(ins); self.q.append(tag)
    def need(self, tags):
        idx = [i for i, t in enumerate(self.q) if t in tags]
        if not idx: return None
        n = len(self.q) - 1 - max(idx)
        n = min(n, self.max)
        self.q = self.q[len(self.q) - n:] if n else []
        return n
    def wait(self, tags):
        n = self.need(tags)
        if n is not None: self.A(f"s_waitcnt {self.kind}({n})")
    def drain(self):
        self.A(f"s_waitcnt {self.kind}(0)"); self.q = []

def wait2(A, VM, vt, LG, lt):
    a = VM.need(vt); b = LG.need(lt)
    s = []
    if a is not None: s.append(f"vmcnt({a})")
    if b is not None: s.append(f"lgkmcnt({b})")
    if s: A("s_waitcnt " + " ".join(s))

STS = [E("STS0", "start,b0,k1end,k1pub,bai,be,oflag,hpub,hflag,b41,b42,b43,fin,b51,b52,end").split(","),
       E("STS1", "start,iss,b0,bcs,kviss,kvflag,bai,be,cs1,cs2,w41,w42,w43,w51,end").split(",")]
ROLE = [0]
def stamp(A, name):
    if STAMP and name in STS[ROLE[0]]:
        n = STS[ROLE[0]].index(name)
        A(f"{'s_memtime' if STAMP == 2 else 's_memrealtime'} s[{100-2*n}:{101-2*n}]")
def dump_stamps(A):
    if not STAMP: return
    role = ROLE[0]
    lab = A.newlabel("st")
    stamp(A, "end")
    A(f"s_and_b32 s69, s{S_W}, 3")
    A("s_cmp_lg_u32 s69, 0")
    A(f"s_cbranch_scc1 {lab}")
    A("s_waitcnt lgkmcnt(0)")
    A("s_lshl_b32 s69, s2, 7")
    A(f"s_add_u32 s69, s69, {TS + role*64}")
    A("s_mov_b64 exec, 1")
    for i in range(len(STS[role])):
        A(f"v_mov_b32 v4, s{100-2*i}")
        A(f"buffer_store_dword v4, off, s[{S_WS}:{S_WS+3}], s69 offset:{4*i}")
    A("s_waitcnt vmcnt(0)")
    A.label(lab)

def SR(n): return f"s[{n}:{n+3}]"

def dma(A, VM, tag, voff, srdn, soff, m0base, m0add):
    A(f"s_add_u32 m0, s{m0base}, {m0add}")
    A("s_nop 0")
    VM.issue(tag, f"buffer_load_dwordx4 v{voff}, {SR(srdn)}, {soff} offen lds")

OOL = []
def sent_reduce(regs, t):
    out = []
    regs = list(regs)
    if len(regs) > 1:
        if len(regs) == 2: out.append(f"v_max_u32 v{t}, v{regs[0]}, v{regs[1]}"); regs = []
        else: out.append(f"v_max3_u32 v{t}, v{regs[0]}, v{regs[1]}, v{regs[2]}"); regs = regs[3:]
        while regs:
            if len(regs) == 1: out.append(f"v_max_u32 v{t}, v{t}, v{regs[0]}"); regs = []
            else: out.append(f"v_max3_u32 v{t}, v{t}, v{regs[0]}, v{regs[1]}"); regs = regs[2:]
        r = t
    else: r = regs[0]
    out.append(f"v_cmp_eq_u32 vcc, -1, v{r}")
    return out
def sent_branch(A, group, pending, t=vP):
    s = A.newlabel("slow"); r = A.newlabel("back"); l = A.newlabel("rl"); g = A.newlabel("gu")
    A(f"s_cbranch_vccnz {s}")
    A.label(r)
    pending = list(pending)
    def ool(B):
        B.label(s)
        B("s_waitcnt vmcnt(0)")
        B.label(l)
        for reg, ins in pending:
            k = B.newlabel("sk")
            B(f"v_cmp_eq_u32 vcc, -1, v{reg}")
            B(f"s_cbranch_vccz {k}")
            for i in ins: B(i)
            B.label(k)
        B("s_waitcnt vmcnt(0)")
        B(f"s_sub_u32 s{S_TO}, s{S_TO}, 1")
        B(f"s_cbranch_scc1 {g}")
        for i in sent_reduce(group, t): B(i)
        B(f"s_cbranch_vccnz {l}")
        B(f"s_branch {r}")
        B.label(g)
        B(f"s_mov_b32 s{S_TO}, 0")
        B(f"s_branch {r}")
    OOL.append(ool)
def sent_check(A, group, pending, t=vP):
    for i in sent_reduce(group, t): A(i)
    sent_branch(A, group, pending, t)
S_TMP = 3
def ws_load(n, dst, voff, sbase, off):
    x = "" if n == 1 else f"x{n}"
    return [f"s_add_u32 s{S_TMP}, s{sbase}, {off}",
            f"buffer_load_dword{x} {vr(dst,n)}, v{voff}, {SR(S_WS)}, s{S_TMP} offen sc1"]
class Ld:
    def __init__(self, A, VM, sbase, scur, sc):
        self.A, self.VM, self.sbase, self.scur, self.hi = A, VM, sbase, scur, None
        self.sc = " sc1" if E("SC", "qohg").find(sc) >= 0 else ""
        self.pend = {}
    def load(self, tag, n, dst, voff, off):
        hi = off & ~4095
        if hi == 0: so = self.sbase
        else:
            if hi != self.hi: self.A(f"s_add_u32 s{self.scur}, s{self.sbase}, {hi}"); self.hi = hi
            so = self.scur
        x = "" if n == 1 else f"x{n}"
        o = f" offset:{off & 4095}" if off & 4095 else ""
        self.VM.issue(tag, f"buffer_load_dword{x} {vr(dst,n)}, v{voff}, {SR(S_WS)}, s{so} offen{o}{self.sc}")
        self.pend.setdefault(tag, []).append((dst + n - 1, ws_load(n, dst, voff, self.sbase, off)))
def group_check(tags, lds):
    pend = [x for L in lds for v in L.pend.values() for x in v]
    grp = []
    for L in lds:
        for t in tags:
            if t in L.pend: grp += [r for r, _ in L.pend.pop(t)]
    return grp, pend
def clamp(r): return f"v_min_u32 v{r}, -2, v{r}"

def flag_store(A, soff, vt, st=S_T):
    A("s_mov_b64 exec, 1")
    A(f"v_mov_b32 v{vt}, s{st}")
    A(f"v_mov_b32 v{vt+1}, s{st+1}")
    A(f"buffer_store_dwordx2 {vr(vt,2)}, off, {SR(S_WS)}, s{soff} sc1")
    A("s_mov_b64 exec, -1")
def flag_addr(A, va, sw, base):
    A(f"s_mul_i32 s{S_TMP}, s{sw}, {64*FS}")
    A(f"s_add_u32 s{S_TMP}, s{S_TMP}, {base}")
    A(f"v_mul_u32_u24 v{va}, {FS}, v0")
    A(f"v_add_u32 v{va}, s{S_TMP}, v{va}")
def flag_load(vd, va, sc=" sc1"):
    return f"buffer_load_dwordx2 {vr(vd,2)}, v{va}, {SR(S_WS)}, 0 offen{sc}"
def flag_check(A, vd, va):
    s = A.newlabel("fs"); r = A.newlabel("fb"); g = A.newlabel("fg")
    test = f"v_cmp_ne_u64 vcc, s[{S_T}:{S_T+1}], {vr(vd,2)}"
    A(test)
    A(f"s_cbranch_vccnz {s}")
    A.label(r)
    def ool(B):
        B.label(s)
        B(flag_load(vd, va))
        B("s_waitcnt vmcnt(0)")
        B(f"s_sub_u32 s{S_TO}, s{S_TO}, 1")
        B(f"s_cbranch_scc1 {g}")
        B(test)
        B(f"s_cbranch_vccnz {s}")
        B(f"s_branch {r}")
        B.label(g)
        B(f"s_mov_b32 s{S_TO}, 0")
        B(f"s_branch {r}")
    OOL.append(ool)
def make_T(A):
    A(f"s_mul_i32 s{S_T}, s6, 0x9e3779b1")
    A(f"s_add_u32 s{S_T}, s{S_T}, 0x7f4a7c15")
    A(f"s_mul_i32 s{S_T+1}, s7, 0x85ebca6d")
    A(f"s_add_u32 s{S_T+1}, s{S_T+1}, 0x165667b1")
    A(f"s_getreg_b32 s{S_TX+1}, hwreg(HW_REG_XCC_ID, 0, 4)")
    if E("FAKEX"): A(f"s_bfe_u32 s{S_TX+1}, s2, 0x10003")
    A(f"s_mov_b32 s{S_TX}, s{S_T}")
    A(f"s_xor_b32 s{S_TX+1}, s{S_TX+1}, s{S_T+1}")
def group_flag_addr(A, va):
    A(f"s_mul_i32 s{S_TMP}, s{S_XCD}, {32*FS}")
    A(f"s_add_u32 s{S_TMP}, s{S_TMP}, {FL1}")
    A(f"v_and_b32 v{va}, 31, v0")
    A(f"v_mul_u32_u24 v{va}, {FS}, v{va}")
    A(f"v_add_u32 v{va}, s{S_TMP}, v{va}")
def lstore(A, VM, tag, ins):
    s = A.newlabel("wt"); r = A.newlabel("wb")
    A(f"s_cmp_lg_u32 s{S_MODE}, 0")
    A(f"s_cbranch_scc1 {s}")
    for i in ins:
        if VM is not None and i.startswith("buffer"): VM.issue(tag, i)
        else: A(i)
    A.label(r)
    def ool(B):
        B.label(s)
        for i in ins: B(i + (" sc1" if i.startswith("buffer") else ""))
        B(f"s_branch {r}")
    OOL.append(ool)
def group_check1(A, vd, va, repoison):
    s = A.newlabel("gs"); r = A.newlabel("gb"); g = A.newlabel("gg"); l2 = A.newlabel("g2"); rt = A.newlabel("gr")
    A(f"v_cmp_ne_u64 vcc, s[{S_TX}:{S_TX+1}], {vr(vd,2)}")
    A(f"s_cbranch_vccnz {s}")
    A.label(r)
    def ool(B):
        B.label(s)
        B(f"v_xor_b32 v{vd+1}, s{S_T+1}, v{vd+1}")
        B(f"v_xor_b32 v{vd}, s{S_T}, v{vd}")
        B(f"v_lshrrev_b32 v{vd+1}, 4, v{vd+1}")
        B(f"v_or_b32 v{vd}, v{vd}, v{vd+1}")
        B(f"v_cmp_ne_u32 vcc, 0, v{vd}")
        B(f"s_cbranch_vccnz {rt}")
        B(f"s_mov_b32 s{S_MODE}, 1")
        for i in repoison: B(i + " sc1")
        B("s_waitcnt vmcnt(0)")
        B(f"s_lshl_b32 s58, s{S_XCD}, 5")
        B(f"s_add_u32 s58, s58, s{S_J}")
        B("s_lshl_b32 s58, s58, 2")
        B(f"s_add_u32 s58, s58, s{S_W}")
        B(f"s_mul_i32 s58, s58, {FS}")
        B(f"s_add_u32 s58, s58, {FL3}")
        flag_store(B, 58, vd)
        B(f"s_mul_i32 s58, s{S_XCD}, {128*FS}")
        B(f"s_add_u32 s58, s58, {FL3}")
        B(f"s_add_u32 s59, s58, {64*FS}")
        B(f"v_mul_u32_u24 v{va}, {FS}, v0")
        B.label(l2)
        B(f"buffer_load_dwordx2 {vr(vd,2)}, v{va}, {SR(S_WS)}, s58 offen sc1")
        B(f"buffer_load_dwordx2 {vr(2,2)}, v{va}, {SR(S_WS)}, s59 offen sc1")
        B("s_waitcnt vmcnt(0)")
        B(f"s_sub_u32 s{S_TO}, s{S_TO}, 1")
        B(f"s_cbranch_scc1 {g}")
        B(f"v_cmp_ne_u64 vcc, s[{S_T}:{S_T+1}], {vr(vd,2)}")
        B(f"s_cbranch_vccnz {l2}")
        B(f"v_cmp_ne_u64 vcc, s[{S_T}:{S_T+1}], {vr(2,2)}")
        B(f"s_cbranch_vccnz {l2}")
        B(f"s_branch {r}")
        B.label(rt)
        B(flag_load(vd, va))
        B("s_waitcnt vmcnt(0)")
        B(f"s_sub_u32 s{S_TO}, s{S_TO}, 1")
        B(f"s_cbranch_scc1 {g}")
        B(f"v_cmp_ne_u64 vcc, s[{S_TX}:{S_TX+1}], {vr(vd,2)}")
        B(f"s_cbranch_vccnz {s}")
        B(f"s_branch {r}")
        B.label(g)
        B(f"s_mov_b32 s{S_TO}, 0")
        B(f"s_branch {r}")
    OOL.append(ool)
SCF = " sc1" if E("SCF", "1") == "1" else ""
class only:
    def __init__(self, A, reg, val): self.A, self.reg, self.val = A, reg, val
    def __enter__(self):
        self.l = self.A.newlabel("only")
        self.A(f"s_cmp_lg_u32 s{self.reg}, {self.val}")
        self.A(f"s_cbranch_scc1 {self.l}")
    def __exit__(self, *a): self.A.label(self.l)

def div12(A, idx, kr, wi):
    A(f"v_mul_u32_u24 v{kr}, 171, v{idx}")
    A(f"v_lshrrev_b32 v{kr}, 11, v{kr}")
    A(f"v_mul_u32_u24 v{wi}, 12, v{kr}")
    A(f"v_sub_u32 v{wi}, v{idx}, v{wi}")
assert all((i * 171) >> 11 == i // 12 for i in range(192))
assert all((i * 171) >> 9 == i // 3 for i in range(48))

def halfsum(A, r, t):
    A(f"v_mov_b32 v{t}, v{r}")
    A("s_nop 1")
    A(f"v_permlane32_swap_b32 v{r}, v{t}")
    A("s_nop 1")
    A(f"v_add_f32 v{r}, v{r}, v{t}")

def ln_final(s1, s2, t, nmean, var):
    return [f"v_mov_b32 v{t}, v{s1}", f"v_mov_b32 v{t+1}, v{s2}", "s_nop 1",
            f"v_permlane32_swap_b32 v{s1}, v{t}", f"v_permlane32_swap_b32 v{s2}, v{t+1}", "s_nop 1",
            f"v_add_f32 v{s1}, v{s1}, v{t}", f"v_add_f32 v{s2}, v{s2}, v{t+1}",
            f"v_mul_f32 v{nmean}, {f32(-1.0/512)}, v{s1}", f"v_mul_f32 v{s2}, {f32(1.0/512)}, v{s2}",
            f"v_fma_f32 v{var}, -v{nmean}, v{nmean}, v{s2}", f"v_max_f32 v{var}, 0, v{var}",
            f"v_add_f32 v{var}, {f32(1e-5)}, v{var}"]

def pk_fma(d, a, b, c, bc=()):
    hi = [0 if i in bc else 1 for i in range(3)]
    s = f"v_pk_fma_f32 {vr(d,2)}, {vr(a,2)}, {vr(b,2)}, {vr(c,2)}"
    if bc: s += f" op_sel_hi:[{hi[0]},{hi[1]},{hi[2]}]"
    return s
def pk_mul(d, a, b, bc=()):
    hi = [0 if i in bc else 1 for i in range(2)]
    s = f"v_pk_mul_f32 {vr(d,2)}, {vr(a,2)}, {vr(b,2)}"
    if bc: s += f" op_sel_hi:[{hi[0]},{hi[1]}]"
    return s
def pk_add(d, a, b):
    return f"v_pk_add_f32 {vr(d,2)}, {vr(a,2)}, {vr(b,2)}"

def swap23(A, d, t):
    A(f"v_and_b32 v{d}, 0x33, v0")
    A(f"v_bfe_u32 v{t}, v0, 2, 1")
    A(f"v_lshl_or_b32 v{d}, v{t}, 3, v{d}")
    A(f"v_bfe_u32 v{t}, v0, 3, 1")
    A(f"v_lshl_or_b32 v{d}, v{t}, 2, v{d}")
    A(f"v_lshlrev_b32 v{d}, 4, v{d}")

POS2 = [3 * BLK + 4096 * n for n in range(20)] + [9 * BLK + 4096 * n for n in range(3)] + \
       [8 * BLK + 4096 * n for n in range(4)] + [4096 * n for n in range(12)] + [3 * BLK + 4096 * n for n in range(4)]
assert len(POS2) == 43 and POS2[19] + 4096 <= 8 * BLK and POS2[22] + 4096 <= SCR and POS2[3] + 4096 <= 4 * BLK
def slot13(b): return (b if b < 9 else b - 9) * BLK

WB, XB = 0, 5 * 12288
sRB, sCB = 48, 49

def prologue(A):
    A.raw(f".globl {KNAME}")
    A.raw(".p2align 8")
    A.raw(f".type {KNAME},@function")
    A.label(KNAME)
    A("s_cmp_ge_u32 s2, 256")
    A("s_cbranch_scc1 L_end")
    stamp(A, "start")
    ptrs = [(72, S_WS, WS_BYTES), (0, S_X, 2048 * 1024), (8, S_WQ, 512 * 3072), (16, S_WO, 512 * 1024),
            (32, S_W1, 512 * 2752), (40, S_W3, 512 * 2752), (48, S_W2, 1376 * 1024), (56, S_OUT, 2048 * 1024), (64, S_DBG, 256)]
    ptrs = ptrs[1:3] + ptrs[0:1] + ptrs[3:]
    for n, (off, d, nb) in enumerate(ptrs):
        A(f"s_load_dwordx2 s[{d}:{d+1}], s[0:1], {off}")
    A("v_lshrrev_b32 v1, 6, v0")
    A("v_and_b32 v0, 63, v0")
    A(f"v_readfirstlane_b32 s{S_W}, v1")
    A(f"s_and_b32 s{S_XCD}, s2, 7")
    A(f"s_lshr_b32 s{S_J}, s2, 3")
    A(f"v_lshlrev_b32 v{vL16}, 4, v0")
    A(f"s_lshr_b32 s{sRB}, s{S_J}, 1")
    A(f"s_and_b32 s{sCB}, s{S_J}, 1")
    A(f"s_lshl1_add_u32 s{sCB}, s{S_XCD}, s{sCB}")
    A(f"s_mov_b32 s{S_MODE}, 0")
    for n, (off, d, nb) in enumerate(ptrs):
        A(f"s_mov_b32 s{d+2}, {hex(nb)}")
        A(f"s_mov_b32 s{d+3}, 0x00020000")
    A(f"s_mov_b32 s{S_TO}, {TOLIM}")
    def fin():
        A("s_waitcnt lgkmcnt(0)")
        A(f"s_load_dwordx2 s[6:7], s[{S_WS}:{S_WS+1}], {NONCE}")
    return fin

def k1_wa(A, vWa, t0, t1):
    A(f"v_lshrrev_b32 v{t0}, 5, v0")
    A(f"v_lshlrev_b32 v{t0}, 3, v{t0}")
    A(f"v_bfe_u32 v{t1}, v0, 2, 2")
    A(f"v_add_u32 v{t0}, v{t0}, v{t1}")
    A(f"v_mul_u32_u24 v{vWa}, 192, v{t0}")
    A(f"v_bfe_u32 v{t1}, v0, 4, 1")
    A(f"v_lshl_add_u32 v{vWa}, v{t1}, 5, v{vWa}")
    A(f"v_and_b32 v{t1}, 3, v0")
    A(f"v_lshl_add_u32 v{vWa}, v{t1}, 3, v{vWa}")

def c_k1(A, fin):
    R = Regs(8)
    vWa = R.alloc(); vOnes = R.alloc(); vt = R.alloc(); vh = R.alloc(); tm = R.alloc(3)
    vXa = R.alloc(4); vXb = R.alloc(4)
    s1 = R.alloc(2, 2); s2 = R.alloc(2, 2)
    acc = [R.alloc(16, 4) for _ in range(3)]
    XF = [R.alloc(4, 4) for _ in range(3)]
    WF = [[R.alloc(4, 4) for _ in range(3)] for _ in range(3)]
    T = R.alloc(4, 2); nm = R.alloc(2, 2); rs = R.alloc(2, 2); rq = R.alloc(2, 2); csv = R.alloc(6, 2)
    CS = R.alloc(48, 4); VS = R.alloc(32, 4); PK = R.alloc(24, 4)
    vA = R.alloc(4); vVo = R.alloc()
    k1_wa(A, vWa, tm, tm + 1)
    A(f"v_mov_b32 v{vOnes}, 0x3f803f80")
    A(f"v_and_b32 v{vt}, 31, v0")
    A(f"v_lshrrev_b32 v{vh}, 5, v0")
    A(f"v_bfe_u32 v{tm}, v0, 1, 3")
    A(f"s_lshl_b32 s50, s{S_W}, 12")
    A(f"s_add_u32 s50, s50, {XB}")
    A(f"v_lshlrev_b32 v{tm+1}, 7, v{vt}")
    A(f"v_add_u32 v{tm+1}, s50, v{tm+1}")
    for i in range(4):
        A(f"v_or_b32 v{vXa+i}, {2*i}, v{vh}")
        A(f"v_xor_b32 v{vXa+i}, v{vXa+i}, v{tm}")
        A(f"v_lshl_add_u32 v{vXa+i}, v{vXa+i}, 4, v{tm+1}")
        A(f"v_add_u32 v{vXb+i}, 0x10000, v{vXa+i}")
    for r in (s1, s1 + 1, s2, s2 + 1):
        A(f"v_mov_b32 v{r}, 0")
    A(f"s_lshl_b32 s50, s{S_W}, 8")
    A(f"s_add_u32 s50, s50, {ST1}")
    A(f"v_lshl_add_u32 v{vA}, v0, 2, s50")
    A(f"v_lshl_add_u32 v{vA+1}, v{vh}, 4, s50")
    A(f"v_lshlrev_b32 v{vA+2}, 4, v{vh}")
    A(f"v_add_u32 v{vA+2}, {SC1}, v{vA+2}")
    A(f"v_lshlrev_b32 v{vA+3}, 2, v{vt}")
    A(f"v_add_u32 v{vA+3}, {SC1}, v{vA+3}")
    A(f"v_and_b32 v{vVo}, 15, v0")
    A(f"v_lshlrev_b32 v{vVo}, 4, v{vVo}")
    A(f"v_lshl_or_b32 v{vVo}, v{vh}, 8, v{vVo}")
    A(f"v_bfe_u32 v{tm}, v0, 4, 1")
    A(f"v_lshl_or_b32 v{vVo}, v{tm}, 16, v{vVo}")
    sRU, sB = 50, 51
    for r in range(4): A(f"v_mov_b32 v{CS+r}, -1")
    group_flag_addr(A, 6)
    A(f"s_lshl_b32 s{sRU}, s{sRB}, 2")
    A(f"s_add_u32 s{sRU}, s{sRU}, s{S_W}")
    A(f"s_lshl_b32 s60, s{sCB}, 17")
    A(f"s_lshl_b32 s61, s{sRU}, 10")
    A("s_add_u32 s60, s60, s61")
    for i, o in enumerate((0, 0x10000, 0x200000, 0x210000, 0x400000)):
        A(f"s_add_u32 s{sB+i}, s60, {QKV + o}")
    def qkv_store(u, g, r):
        if u == 2: return f"buffer_store_dwordx4 {vr(r,4)}, v{vVo}, {SR(S_WS)}, s{sB+4} offen offset:{512*g}"
        return f"buffer_store_dwordx4 {vr(r,4)}, v{vL16}, {SR(S_WS)}, s{sB+2*u+g} offen"
    fin()
    def poison1():
        for u in range(0 if E("NOP1") else 3):
            for g in range(2): A(qkv_store(u, g, CS))
    PZ = int(E("PZ", 0))
    if PZ == 0: poison1()
    A(f"s_lshl_b32 s57, s{S_XCD}, 5")
    A(f"s_add_u32 s57, s57, s{S_J}")
    A(f"s_mul_i32 s57, s57, {FS}")
    A(f"s_add_u32 s57, s57, {FL1}")
    A("s_waitcnt lgkmcnt(0)")
    make_T(A)
    def reads(s):
        c, sub, b = s >> 2, s & 3, s % 3
        slot = c % 5
        out = []
        if slot < 4: out.append(f"ds_read_b128 {vr(XF[b],4)}, v{vXa+sub} offset:{slot*16384}")
        else: out.append(f"ds_read_b128 {vr(XF[b],4)}, v{vXb+sub}")
        for u in range(3):
            for sec in range(2):
                off = WB + slot * 12288 + (16 * sub + 4 * sec) * 192 + 64 * u
                out.append(f"ds_read_b64_tr_b16 {vr(WF[b][u]+2*sec,2)}, v{vWa} offset:{off}")
        return out
    A("s_barrier")
    stamp(A, "b0")
    for l in reads(0) + reads(1): A(l)
    if PZ == 1: poison1()
    PB, PC = int(E("PB", 3)), int(E("PC", 6))
    for pat in ((0, 0, 1),):
        for s in range(32):
            b = s % 3
            nx = reads(s + 2) if s + 2 < 32 else []
            if nx and (s + 2) % 4 == 0:
                stamp(A, f"k1a{(s+2)//4}")
                if (s + 2) // 4 == PB: A("s_waitcnt vmcnt(0)")
                A("s_barrier")
                stamp(A, f"k1b{(s+2)//4}")
                if (s + 2) // 4 == PB:
                    with only(A, S_W, 0): flag_store(A, 57, 2, S_TX)
                if (s + 2) // 4 == PC: A(flag_load(4, 6, SCF))
                if (s + 2) // 4 == PZ - 1: poison1()
            A(f"s_waitcnt lgkmcnt({7 if s < 31 else 0})")
            dots = []
            for r in range(4):
                dots.append(f"v_dot2_f32_bf16 v{s1+(r&1)}, v{XF[b]+r}, v{vOnes}, v{s1+(r&1)}")
                dots.append(f"v_dot2_f32_bf16 v{s2+(r&1)}, v{XF[b]+r}, v{XF[b]+r}, v{s2+(r&1)}")
            c0 = 0 if s == 0 else None
            for u in range(3):
                A(mfma(acc[u], XF[b], WF[b][u], c0) if pat[u] else mfma(acc[u], WF[b][u], XF[b], c0))
                for l in (nx[0:4], nx[4:7], [] if E("NODOT") else dots)[u]: A(l)
        stamp(A, "k1end")
        A("s_nop 2")
        A(f"v_add_f32 v{s1}, v{s1}, v{s1+1}")
        A(f"v_add_f32 v{s2}, v{s2}, v{s2+1}")
        for l in ln_final(s1, s2, T, nm, rs): A(l)
        A(f"v_rsq_f32 v{rs}, v{rs}")
        if any(pat):
            A("v_cmp_gt_u32 vcc, 32, v0")
            A("s_nop 1")
            A(f"v_cndmask_b32 v{T}, v{nm}, v{rs}, vcc")
            A(f"ds_write_b32 v{vA}, v{T}")
            A("s_waitcnt lgkmcnt(0)")
            for g in range(4):
                A(f"ds_read_b128 {vr(VS+4*g,4)}, v{vA+1} offset:{32*g}")
                A(f"ds_read_b128 {vr(VS+16+4*g,4)}, v{vA+1} offset:{128+32*g}")
            A("s_waitcnt lgkmcnt(0)")
        A("s_waitcnt vmcnt(0)")
        group_check1(A, 4, 6, [qkv_store(u, g, CS) for u in range(3) for g in range(2)])
        stamp(A, "acs")
        A("s_barrier")
        stamp(A, "bcs")
        LG = Q("lgkmcnt", A)
        order = (1, 2, 0)
        for u in order:
            if pat[u]:
                LG.issue(u, f"ds_read_b32 v{csv+2*u}, v{vA+3} offset:{128*u}")
            else:
                for g in range(4):
                    LG.issue(u, f"ds_read_b128 {vr(CS+16*u+4*g,4)}, v{vA+2} offset:{128*u+32*g}")
        A(f"v_mul_f32 v{rq}, {f32(0.25*LOG2E)}, v{rs}")
        for u in order:
            a = acc[u]
            LG.wait([u])
            for r in range(0, 16, 2):
                A(pk_fma(a + r, VS + 16 + r, csv + 2 * u, a + r, bc=(1,)) if pat[u] else pk_fma(a + r, CS + 16 * u + r, nm, a + r, bc=(1,)))
            for r in range(0, 16, 2):
                A(pk_mul(a + r, a + r, VS + r) if pat[u] else pk_mul(a + r, a + r, rs if u else rq, bc=(1,)))
            for r in range(8):
                A(f"v_cvt_pk_bf16_f32 v{PK+8*u+r}, v{a+2*r}, v{a+2*r+1}")
            for g in range(2): A(clamp(PK + 8 * u + 4 * g + 3))
            lstore(A, None, None, [qkv_store(u, g, PK + 8 * u + 4 * g) for g in range(2)])
    stamp(A, "k1pub")

def attn_ids(A, sHead, sQB):
    A(f"s_lshl_b32 s{sHead}, s{S_XCD}, 2")
    A(f"s_and_b32 s{sQB}, s{S_J}, 3")
    A(f"s_add_u32 s{sHead}, s{sHead}, s{sQB}")
    A(f"s_lshr_b32 s{sQB}, s{S_J}, 2")

def g64_ids(A, sRU, sKH, sCU, t, S_W=S_W):
    A(f"s_lshl_b32 s{sRU}, s{S_XCD}, 2")
    A(f"s_and_b32 s{t}, s{S_J}, 3")
    A(f"s_add_u32 s{sRU}, s{sRU}, s{t}")
    A(f"s_lshl_b32 s{sRU}, s{sRU}, 1")
    A(f"s_and_b32 s{t}, s{S_W}, 1")
    A(f"s_add_u32 s{sRU}, s{sRU}, s{t}")
    A(f"s_lshr_b32 s{sKH}, s{S_W}, 1")
    A(f"s_lshr_b32 s{sCU}, s{S_J}, 2")
    A(f"s_lshl_b32 s{sCU}, s{sCU}, 1")
    A(f"s_add_u32 s{sCU}, s{sCU}, s{sKH}")
sRU5, sKH5, sCU5 = 60, 61, 62

def c_attn(A):
    sHead, sQB, sRU, sSlot, sTrip = 48, 49, 50, 51, 52
    R = Regs(16)
    vIdx = R.alloc(); vVl = R.alloc(); vK = R.alloc(2); vV = R.alloc(2); T = R.alloc(2, 2)
    Qa = R.alloc(4, 4); Qb = R.alloc(4, 4)
    Na = R.alloc(16, 4); Nb = R.alloc(16, 4)
    Oa = R.alloc(16, 4); Ob = R.alloc(16, 4)
    Sa = R.alloc(16, 4); Sb = R.alloc(16, 4)
    K = [R.alloc(4, 4), R.alloc(4, 4)]
    V = [R.alloc(8, 4), R.alloc(8, 4)]
    attn_ids(A, sHead, sQB)
    A(f"s_lshl_b32 s{sRU}, s{sQB}, 3")
    A(f"s_lshl_b32 s53, s{S_W}, 1")
    A(f"s_add_u32 s{sRU}, s{sRU}, s53")
    A(f"s_lshl_b32 s54, s{sHead}, 16")
    A(f"s_lshl_b32 s55, s{sRU}, 10")
    A("s_add_u32 s54, s54, s55")
    A(f"s_add_u32 s54, s54, {QKV}")
    g64_ids(A, sRU5, sKH5, sCU5, 55)
    A(f"v_and_b32 v{T+1}, 31, v0")
    A(f"v_lshlrev_b32 v{vK}, 10, v{T+1}")
    A(f"v_lshrrev_b32 v{T+1}, 5, v0")
    A(f"v_lshl_add_u32 v{vK}, v{T+1}, 3, v{vK}")
    A(f"s_lshl_b32 s55, s{sRU5}, 15")
    A(f"s_lshl_b32 s56, s{sCU5}, 6")
    A("s_add_u32 s55, s55, s56")
    A(f"v_mov_b32 v{vIdx}, 0xdddddddd")
    A(f"v_and_b32 v{vVl}, 15, v0")
    A(f"v_lshlrev_b32 v{vVl}, 4, v{vVl}")
    A(f"v_lshl_add_u32 v{vVl}, v{T+1}, 8, v{vVl}")
    A(f"v_and_b32 v{T+1}, 16, v0")
    A(f"v_cmp_eq_u32 vcc, 0, v{T+1}")
    A(f"v_mov_b32 v{T+1}, 512")
    for r in range(16):
        A(f"v_mov_b32 v{Oa+r}, 0")
        A(f"v_mov_b32 v{Ob+r}, 0")
        if r >= 8: A(f"v_mov_b32 v{Sb+r}, 0")
        if r < 4: A(f"v_mov_b32 v{V[1]+4+r}, 0")
    A(f"v_cndmask_b32 v{vVl}, v{T+1}, v{vVl}, vcc")
    for q in range(2):
        A(f"v_add_u32 v{vV+q}, {RING+q*SEG}, v{vVl}")
    A(f"s_mov_b32 s{sSlot}, {RING+SEG}")
    A(f"s_mov_b32 s{sTrip}, 0")
    for g in range(4):
        A(f"buffer_load_dwordx2 {vr(RES+2*g,2)}, v{vK}, {SR(S_X)}, s55 offen offset:{16*g}")
    VM = Q("vmcnt", A)
    LQ = Ld(A, VM, 54, None, "q")
    LQ.load("q", 4, Qa, vL16, 0)
    LQ.load("q", 4, Qb, vL16, 1024)
    for q in range(2):
        A(f"v_add_u32 v{vK+q}, {RING+q*SEG}, v{vL16}")
    VM.drain()
    sent_check(A, *group_check(["q"], [LQ]))
    stamp(A, "qflag")
    A("s_barrier")
    stamp(A, "bai")
    A(f"ds_read_b128 {vr(K[0],4)}, v{vK} offset:1056")
    A(f"ds_read_b128 {vr(V[0],4)}, v{vV}")
    A(f"ds_read_b128 {vr(V[0]+4,4)}, v{vV} offset:528")
    A(f"ds_read_b128 {vr(K[1],4)}, v{vK} offset:{TILE+1056}")
    A("s_waitcnt lgkmcnt(3)")
    A(mfma(Na, K[0], Qa, 0))
    A(mfma(Nb, K[0], Qb, 0))
    A("s_nop 7")
    A("s_nop 2")
    def rowmax(N):
        A(f"v_max3_f32 v{T}, v{N}, v{N+1}, v{N+2}")
        A(f"v_max3_f32 v{T+1}, v{N+3}, v{N+4}, v{N+5}")
        for r in range(6, 14, 4):
            A(f"v_max3_f32 v{T}, v{N+r}, v{N+r+1}, v{T}")
            A(f"v_max3_f32 v{T+1}, v{N+r+2}, v{N+r+3}, v{T+1}")
        A(f"v_max3_f32 v{T}, v{N+14}, v{N+15}, v{T}")
        A(f"v_max_f32 v{T}, v{T}, v{T+1}")
        A(f"v_mov_b32 v{T+1}, v{T}")
        A("s_nop 1")
        A(f"v_permlane32_swap_b32 v{T}, v{T+1}")
        A("s_nop 1")
        A(f"v_max_f32 v{T}, v{T}, v{T+1}")
        A(f"v_sub_f32 v{T}, 0, v{T}")
        for r in range(16):
            A(f"v_mov_b32 v{N+r}, v{T}")
    rowmax(Na)
    A("s_nop 1")
    A(mfma(Sa, K[0], Qa, Na))
    rowmax(Nb)
    def ex(S, lo, hi):
        for r in range(lo, hi): A(f"v_exp_f32 v{S+r}, v{S+r}")
    A.raw(".p2align 6")
    A.label("L_attn")
    p1, p2, p3 = 2, 7, 12
    for q in range(2):
        for t in range(8):
            c = t & 1; n = c ^ 1
            va, vo = (vV + q, TILE * (t + 1)) if t + 1 < 8 else (vV + (q ^ 1), 0)
            ka, ko = (vK + q, TILE * (t + 2)) if t + 2 < 8 else (vK + (q ^ 1), TILE * (t + 2 - 8))
            ex(Sa, 0, p1)
            A(smfmac(Ob, V[n] + 4, Sb + 8, vIdx))
            A(f"ds_read_b128 {vr(V[n],4)}, v{va} offset:{vo}")
            ex(Sa, p1, p2)
            A(mfma(Sb, K[c], Qb, Nb))
            A(f"ds_read_b128 {vr(V[n]+4,4)}, v{va} offset:{vo+528}")
            ex(Sa, p2, p3)
            A("s_waitcnt lgkmcnt(2)")
            A(smfmac(Oa, V[c], Sa, vIdx))
            if t == 6: A("s_barrier")
            A(f"ds_read_b128 {vr(K[c],4)}, v{ka} offset:{ko+1056}")
            ex(Sa, p3, 16)
            ex(Sb, 0, p1)
            A(smfmac(Oa, V[c] + 4, Sa + 8, vIdx))
            if t == 7:
                A(f"s_add_u32 s{sSlot}, s{sSlot}, {SEG}")
                A(f"s_cmp_eq_u32 s{sSlot}, {RING+3*SEG}")
                A(f"s_cselect_b32 s{sSlot}, {RING}, s{sSlot}")
            ex(Sb, p1, p2)
            A(mfma(Sa, K[n], Qa, Na))
            if t == 7:
                A(f"v_add_u32 v{vK+q}, s{sSlot}, v{vL16}")
                A(f"v_add_u32 v{vV+q}, s{sSlot}, v{vVl}")
            ex(Sb, p2, p3)
            A(smfmac(Ob, V[c], Sb, vIdx))
            if t == 7 and q == 1:
                A(f"s_add_u32 s{sTrip}, s{sTrip}, 1")
                A(f"s_cmp_lt_u32 s{sTrip}, 4")
            ex(Sb, p3, 16)
    A("s_cbranch_scc1 L_attn")
    A("s_nop 1")
    A(smfmac(Ob, V[1] + 4, Sb + 8, vIdx))
    A("s_waitcnt lgkmcnt(0)")
    A("s_barrier")
    stamp(A, "be")
    A(f"s_lshl_b32 s53, s{sRU}, 15")
    A(f"s_lshl_b32 s54, s{sHead}, 10")
    A("s_add_u32 s53, s53, s54")
    A(f"s_add_u32 s53, s53, {OF}")
    A("s_add_u32 s55, s53, 0x8000")
    A(f"v_mov_b32 v{T}, {f32(2.0**30)}")
    for nm_, O, Qx, so in (("a", Oa, Qa, 53), ("b", Ob, Qb, 55)):
        A(f"v_cmp_nge_f32 vcc, v{T}, v{O+8}")
        A(f"s_cbranch_vccnz L_fb_{nm_}")
        A.label(f"L_fz_{nm_}")
        A(f"v_rcp_f32 v{vK}, v{O+8}")
        A("s_nop 0")
        for r in range(0, 8, 2):
            A(pk_mul(O + r, O + r, vK, bc=(1,)))
        for r in range(4):
            A(f"v_cvt_pk_bf16_f32 v{O+12+r}, v{O+2*r}, v{O+2*r+1}")
        A(clamp(O + 15))
        A(f"buffer_store_dwordx4 {vr(O+12,4)}, v{vL16}, {SR(S_WS)}, s{so} offen sc1")
        def ool(B, nm_=nm_, O=O, Qx=Qx):
            B.label(f"L_fb_{nm_}")
            swap23(B, vK, vK + 1)
            B(f"s_lshl_b32 s57, s{sHead}, 16")
            B(f"s_add_u32 s57, s57, {QKV + 0x200000}")
            B("s_mov_b32 s58, s57")
            B(f"v_mov_b32 v{Nb}, 0xff800000")
            B(f"s_mov_b32 s{sTrip}, 0")
            B.label(f"L_fb1_{nm_}")
            B(f"buffer_load_dwordx4 {vr(K[0],4)}, v{vK}, {SR(S_WS)}, s58 offen sc1")
            B("s_waitcnt vmcnt(0)")
            B(mfma(Sa, K[0], Qx, 0))
            B("s_nop 7")
            B("s_nop 7")
            for r in range(0, 16, 2):
                B(f"v_max3_f32 v{Nb}, v{Sa+r}, v{Sa+r+1}, v{Nb}")
            B("s_add_u32 s58, s58, 1024")
            B(f"s_add_u32 s{sTrip}, s{sTrip}, 1")
            B(f"s_cmp_lt_u32 s{sTrip}, 64")
            B(f"s_cbranch_scc1 L_fb1_{nm_}")
            B(f"v_mov_b32 v{Nb+1}, v{Nb}")
            B("s_nop 1")
            B(f"v_permlane32_swap_b32 v{Nb}, v{Nb+1}")
            B("s_nop 1")
            B(f"v_max_f32 v{Nb}, v{Nb}, v{Nb+1}")
            B(f"v_sub_f32 v{Nb}, 0, v{Nb}")
            for r in range(16):
                B(f"v_mov_b32 v{Na+r}, v{Nb}")
                B(f"v_mov_b32 v{O+r}, 0")
            for r in range(8):
                B(f"v_mov_b32 v{V[0]+r}, 0x3f803f80")
            B("s_mov_b32 s58, s57")
            B(f"s_mov_b32 s{sTrip}, 0")
            B("s_mov_b32 s64, 0x0000ffff")
            B("s_mov_b32 s65, 0x0000ffff")
            B.label(f"L_fb2_{nm_}")
            B("s_add_u32 s59, s58, 0x200000")
            B(f"buffer_load_dwordx4 {vr(K[0],4)}, v{vK}, {SR(S_WS)}, s58 offen sc1")
            B("s_mov_b64 exec, s[64:65]")
            B(f"buffer_load_dwordx4 {vr(V[0],4)}, v{vVl}, {SR(S_WS)}, s59 offen sc1")
            B(f"buffer_load_dwordx4 {vr(V[0]+4,4)}, v{vVl}, {SR(S_WS)}, s59 offen offset:512 sc1")
            B("s_mov_b64 exec, -1")
            B("s_waitcnt vmcnt(0)")
            B(mfma(Sa, K[0], Qx, Na))
            B("s_nop 7")
            B("s_nop 7")
            for r in range(16): B(f"v_exp_f32 v{Sa+r}, v{Sa+r}")
            B("s_nop 1")
            B(smfmac(O, V[0], Sa, vIdx))
            B(smfmac(O, V[0] + 4, Sa + 8, vIdx))
            B("s_nop 7")
            B("s_add_u32 s58, s58, 1024")
            B(f"s_add_u32 s{sTrip}, s{sTrip}, 1")
            B(f"s_cmp_lt_u32 s{sTrip}, 64")
            B(f"s_cbranch_scc1 L_fb2_{nm_}")
            B("s_nop 7")
            B("s_nop 7")
            B(f"s_branch L_fz_{nm_}")
        OOL.append(ool)
    stamp(A, "opub")

def g64_addr(A, keep, send, t, base):
    A(f"v_lshrrev_b32 v{t}, 5, v0")
    A(f"v_lshlrev_b32 v{t}, 2, v{t}")
    A(f"v_bfe_u32 v{t+1}, v0, 2, 2")
    A(f"v_add_u32 v{t}, v{t}, v{t+1}")
    A(f"v_lshlrev_b32 v{t}, 7, v{t}")
    A(f"v_bfe_u32 v{t+1}, v0, 4, 1")
    A(f"v_lshl_add_u32 v{t}, v{t+1}, 5, v{t}")
    A(f"v_and_b32 v{t+1}, 3, v0")
    A(f"v_lshl_add_u32 v{t}, v{t+1}, 3, v{t}")
    A(f"v_bfe_u32 v{t+1}, v0, 3, 1")
    A(f"v_xor_b32 v{t+1}, s{sKH5}, v{t+1}")
    A(f"v_lshl_add_u32 v{t}, v{t+1}, 6, v{t}")
    A(f"v_xor_b32 v{t+1}, 64, v{t}")
    A(f"s_lshl_b32 s59, s{sKH5}, 11")
    if base: A(f"s_add_u32 s59, s59, {base}")
    A(f"v_add_u32 v{keep}, s59, v{t}")
    A(f"v_add_u32 v{send}, s59, v{t+1}")

def exchange(A, acc, UN, T, xch):
    A(f"s_lshl_b32 s59, s{S_W}, 12")
    A(f"s_add_u32 s58, s59, {xch}")
    A(f"v_add_u32 v{T}, s58, v{vL16}")
    A("s_xor_b32 s59, s59, 0x2000")
    A(f"s_add_u32 s59, s59, {xch}")
    A(f"v_add_u32 v{T+1}, s59, v{vL16}")
    for r in range(4):
        A(f"v_lshlrev_b32 v{UN+2*r}, 16, v{RES+r}")
        A(f"v_and_b32 v{UN+2*r+1}, 0xffff0000, v{RES+r}")
    for q in range(4):
        A(f"ds_write_b128 v{T}, {vr(acc[1]+4*q,4)} offset:{1024*q}")
    for r in range(4, 8):
        A(f"v_lshlrev_b32 v{UN+2*r}, 16, v{RES+r}")
        A(f"v_and_b32 v{UN+2*r+1}, 0xffff0000, v{RES+r}")
    A("s_waitcnt lgkmcnt(0)")
    A("s_barrier")
    for q in range(4):
        A(f"ds_read_b128 {vr(acc[1]+4*q,4)}, v{T+1} offset:{1024*q}")
    for r in range(0, 16, 2):
        A(pk_add(acc[0] + r, acc[0] + r, UN + r))

def c_k3(A):
    R = Regs(16)
    T = R.alloc(4, 2); vA = R.alloc(2); vSo = R.alloc()
    acc = [R.alloc(16, 4), R.alloc(16, 4)]
    WF = [[R.alloc(4, 4) for _ in range(2)] for _ in range(3)]
    R.n = 160
    AF = [R.alloc(4, 4) for _ in range(16)]
    A(f"s_lshl_b32 s48, s{sRU5}, 15")
    A(f"s_lshl_b32 s49, s{sKH5}, 10")
    A("s_add_u32 s48, s48, s49")
    A(f"s_add_u32 s48, s48, {OF}")
    g64_addr(A, vA, vA + 1, T, WOB)
    def reads(n):
        out = []
        for k in range(2):
            for sec in range(2):
                out.append(f"ds_read_b64_tr_b16 {vr(WF[n%3][k]+2*sec,2)}, v{vA+k} offset:{n*4096+sec*1024}")
        return out
    for l in reads(0) + reads(1): A(l)
    NS = 16
    VM = Q("vmcnt", A)
    LO = Ld(A, VM, 48, 49, "o")
    for n in range(NS): LO.load(n, 4, AF[n], vL16, 2048 * n)
    stamp(A, "oiss")
    A(f"s_lshl_b32 s50, s{sRU5}, 15")
    A(f"s_lshl_b32 s51, s{sCU5}, 11")
    A("s_add_u32 s50, s50, s51")
    A(f"s_add_u32 s50, s50, {HF}")
    A(f"s_lshl_b32 s51, s{sRU5}, 4")
    A(f"s_add_u32 s51, s51, s{sCU5}")
    A("s_lshl_b32 s51, s51, 8")
    A(f"s_add_u32 s51, s51, {ST2}")
    A(f"v_and_b32 v{vSo}, 31, v0")
    A(f"v_lshlrev_b32 v{vSo}, 3, v{vSo}")
    G3 = [int(x) for x in E("G3", "0,2,4,8,12,16").split(",")]
    for n in range(NS):
        nx = reads(n + 2) if n + 2 < NS else []
        if n in G3:
            g = list(range(n, G3[G3.index(n) + 1]))
            VM.wait(g)
            sent_check(A, *group_check(g, [LO]))
            if n == 0: stamp(A, "oflag")
        A(f"s_waitcnt lgkmcnt({4 if n < NS-1 else 0})")
        c0 = 0 if n == 0 else None
        A(mfma(acc[0], WF[n % 3][0], AF[n], c0))
        for l in nx[0:2]: A(l)
        A(mfma(acc[1], WF[n % 3][1], AF[n], c0))
        for l in nx[2:4]: A(l)
    stamp(A, "a30")
    A("s_barrier")
    stamp(A, "b30")
    UN = AF[0]
    exchange(A, acc, UN, T, XCH3)
    a = acc[0]
    for q in range(4):
        A(f"s_waitcnt lgkmcnt({3-q})")
        A(pk_add(a + 4 * q, a + 4 * q, acc[1] + 4 * q))
        A(pk_add(a + 4 * q + 2, a + 4 * q + 2, acc[1] + 4 * q + 2))
    for r in range(8):
        A(f"v_cvt_pk_bf16_f32 v{RES+r}, v{a+2*r}, v{a+2*r+1}")
    for g in range(2): A(clamp(RES + 4 * g + 3))
    lstore(A, None, None, [f"buffer_store_dwordx4 {vr(RES+4*g,4)}, v{vL16}, {SR(S_WS)}, s50 offen offset:{1024*g}" for g in range(2)])
    sq = acc[1]
    for r in range(0, 16, 2):
        A(pk_mul(sq + r, a + r, a + r))
    for w in (8, 4, 2):
        for r in range(0, w, 2):
            A(pk_add(a + r, a + r, a + w + r))
            A(pk_add(sq + r, sq + r, sq + w + r))
    A(f"v_add_f32 v{T}, v{a}, v{a+1}")
    A(f"v_add_f32 v{T+1}, v{sq}, v{sq+1}")
    A(f"v_mov_b32 v{T+2}, v{T}")
    A(f"v_mov_b32 v{T+3}, v{T+1}")
    A("s_nop 1")
    A(f"v_permlane32_swap_b32 v{T}, v{T+2}")
    A(f"v_permlane32_swap_b32 v{T+1}, v{T+3}")
    A("s_nop 1")
    A(pk_add(T, T, T + 2))
    A(clamp(T + 1))
    lstore(A, None, None, [f"buffer_store_dwordx2 {vr(T,2)}, v{vSo}, {SR(S_WS)}, s51 offen"])
    stamp(A, "hpub")

def k4_ids(A, sRU, sC, sw):
    A(f"s_and_b32 s58, s{S_J}, 1")
    A(f"s_lshl1_add_u32 s{sRU}, s{S_XCD}, s58")
    A(f"s_lshl2_add_u32 s{sRU}, s{sRU}, s{sw}")
    A(f"s_lshr_b32 s{sC}, s{S_J}, 1")
def g_offsets(A, sRU, sC, sGo, t=58):
    A(f"s_mul_i32 s{t}, s{sRU}, {86*1024}")
    A(f"s_lshl_b32 s{t+1}, s{sC}, 11")
    A(f"s_add_u32 s{t}, s{t}, s{t+1}")
    for p in range(3): A(f"s_add_u32 s{sGo+p}, s{t}, {GF + 16*2048*p}")
    A(f"s_lshl_b32 s{t}, s{sC}, 6")
    A(f"s_add_u32 s{t}, s{t}, s{sRU}")
    A(f"s_lshl_b32 s{t}, s{t}, 11")
    A(f"s_add_u32 s{t}, s{t}, {(DUMMY - 11*64*2048) & 0xffffffff}")
    A(f"s_cmp_gt_u32 s{sC}, 10")
    A(f"s_cselect_b32 s{sGo+2}, s{t}, s{sGo+2}")

def c_k45(A):
    H = [16 + 4 * i for i in range(32)]
    acc = [[144, 160], [176, 192]]
    WF = [[208 + 8 * b + 4 * u for u in range(2)] for b in range(3)]
    CS, EE = 232, 240
    nm, var, rl = 248, 250, 252
    vWa = [249, 251, 253]; vCS, vSt = 254, 255
    sRU, sC, sAo, sSo, sGo, sCur, sG5 = 48, 49, 50, 51, 53, 56, 57
    k4_ids(A, sRU, sC, S_W)
    A(f"s_lshl_b32 s{sAo}, s{sRU}, 15")
    A(f"s_add_u32 s{sAo}, s{sAo}, {HF}")
    A(f"s_lshl_b32 s{sSo}, s{sRU}, 12")
    A(f"s_add_u32 s{sSo}, s{sSo}, {ST2}")
    VM = Q("vmcnt", A); LG = Q("lgkmcnt", A)
    LH = Ld(A, VM, sAo, sCur, "h"); LS = Ld(A, VM, sSo, None, "h"); LGn = Ld(A, VM, sG5, sCur, "g")
    SD = acc[1][0]
    HP, HE = int(E("HP", 12)), int(E("HE", 1))
    def hload(s): LH.load(("H", s), 4, H[s], vL16, 1024 * s)
    def hfirst():
        for s in range(HP): hload(s)
        stamp(A, "hiss")
    if HE: hfirst()
    g_offsets(A, sRU, sC, sGo)
    A(f"s_mul_i32 s{sG5}, s{sRU5}, {86*1024}")
    A(f"s_lshl_b32 s58, s{sKH5}, 10")
    A(f"s_add_u32 s{sG5}, s{sG5}, s58")
    A(f"s_add_u32 s{sG5}, s{sG5}, {GF}")
    t = CS
    A(f"v_lshrrev_b32 v{t}, 5, v0")
    A(f"v_lshlrev_b32 v{vCS}, 4, v{t}")
    A(f"v_add_u32 v{vCS}, {SC4}, v{vCS}")
    A(f"v_lshlrev_b32 v{vSt}, 11, v{t}")
    A(f"v_and_b32 v{t+1}, 31, v0")
    A(f"v_lshl_add_u32 v{vSt}, v{t+1}, 3, v{vSt}")
    A(f"v_lshlrev_b32 v{t}, 2, v{t}")
    A(f"v_bfe_u32 v{t+1}, v0, 2, 2")
    A(f"v_add_u32 v{t}, v{t}, v{t+1}")
    A(f"v_lshlrev_b32 v{t}, 6, v{t}")
    A(f"v_bfe_u32 v{t+1}, v0, 4, 1")
    A(f"v_mul_u32_u24 v{t+1}, 8224, v{t+1}")
    A(f"v_add_u32 v{t}, v{t}, v{t+1}")
    A(f"v_and_b32 v{t+1}, 3, v0")
    A(f"v_lshl_add_u32 v{vWa[0]}, v{t+1}, 3, v{t}")
    A(f"v_add_u32 v{vWa[1]}, 0x10000, v{vWa[0]}")
    A(f"v_add_u32 v{vWa[2]}, 0x20000, v{vWa[0]}")
    g64_addr(A, 6, 7, 208, 0)
    if not HE: hfirst()
    for i in range(8): LS.load("st", 2, SD + 2 * i, vSt, 256 * i)
    stamp(A, "a40")
    A("s_barrier")
    stamp(A, "b40")
    def reads(S):
        p, s = divmod(S, 32)
        out = []
        for u in range(2):
            for sec in range(2):
                o = slot13(4 * p + (s >> 3)) + (s & 7) * 1024 + sec * 512 + 32 * u
                out.append((("W", S), f"ds_read_b64_tr_b16 {vr(WF[S%3][u]+2*sec,2)}, v{vWa[o>>16]} offset:{o&0xffff}"))
        return out
    for tg, l in reads(0) + reads(1): LG.issue(tg, l)

    def V(s, c=4): return (c, lambda: None if E("NOFILL") else A(s))
    def stats_items():
        it = [(0, lambda: VM.wait(["st"]))]
        red = sent_reduce([SD + 2 * i + 1 for i in range(8)], vP + 1)
        for l in red[:-1]: it.append(V(l))
        it.append((8, lambda: (A(red[-1]), sent_branch(A, *group_check(["st"], [LH, LS]), t=vP + 1))))
        for w in (8, 4, 2):
            for r in range(w): it.append(V(f"v_add_f32 v{SD+r}, v{SD+r}, v{SD+w+r}"))
        for l in ln_final(SD, SD + 1, SD + 2, nm, var): it.append(V(l))
        it.append(V(f"v_rsq_f32 v{rl}, v{var}", 8))
        it.append(V("s_nop 0"))
        it.append(V(f"v_mul_f32 v{rl}, {f32(-LOG2E)}, v{rl}"))
        return it
    def cs_reads(U, tag):
        for g in range(2): LG.issue(tag, f"ds_read_b128 {vr(CS+4*g,4)}, v{vCS} offset:{128*U+32*g}")
        for g in range(2): LG.issue(tag, f"ds_read_b128 {vr(EE+4*g,4)}, v{vCS} offset:{128*U+64+32*g}")
    def epi_items(p, u):
        a = acc[p & 1][u]; U = 2 * p + u
        it = [(16, lambda: cs_reads(U, ("cs", U))), (int(E("CSW", 24)), lambda: None), (0, lambda: LG.wait([("cs", U)]))]
        for r in range(8): it.append(V(f"v_fma_f32 v{a+r}, v{CS+r}, v{nm}, v{a+r}"))
        for r in range(8): it.append(V(f"v_fma_f32 v{a+8+r}, v{EE+r}, v{nm}, v{a+8+r}"))
        for r in range(8):
            it.append(V(f"v_mul_f32 v{EE+r}, v{a+r}, v{rl}"))
        for r in range(8):
            it.append(V(f"v_exp_f32 v{EE+r}, v{EE+r}", 8))
            it.append(V(f"v_mul_f32 v{a+r}, v{a+r}, v{a+8+r}"))
        for r in range(8): it.append(V(f"v_fma_f32 v{EE+r}, v{EE+r}, v{var}, v{var}"))
        for r in range(8):
            it.append(V(f"v_rcp_f32 v{EE+r}, v{EE+r}", 8))
            if r >= 2: it.append(V(f"v_mul_f32 v{a+r-2}, v{a+r-2}, v{EE+r-2}"))
        it.append(V(f"v_mul_f32 v{a+6}, v{a+6}, v{EE+6}"))
        it.append(V(f"v_cvt_pk_bf16_f32 v{a+8}, v{a}, v{a+1}"))
        it.append(V(f"v_mul_f32 v{a+7}, v{a+7}, v{EE+7}"))
        for r in range(1, 4): it.append(V(f"v_cvt_pk_bf16_f32 v{a+8+r}, v{a+2*r}, v{a+2*r+1}"))
        it.append(V(clamp(a + 11)))
        it.append((8, lambda: lstore(A, VM, ("G", U), [f"buffer_store_dwordx4 {vr(a+8,4)}, v{vL16}, {SR(S_WS)}, s{sGo+p} offen offset:{1024*u}"])))
        return it
    AF = H + [144 + 4 * i for i in range(8)] + [232, 236, 240]
    def gload(n): LGn.load(("A", n), 4, AF[n], vL16, 2048 * n)
    BUD = [int(x) for x in E("BUD", "12,12,12").split(",")]
    G4 = [int(x) for x in E("G4", "0,2,4,8,12,16,20,24,28,32").split(",")]
    G5 = [int(x) for x in E("G5", "0,4,8,12,16,20,24,28,32,36,40,43").split(",")]
    GS0, GS1, GS2, GR2 = [int(x) for x in E("GS", "8,16,12,2").split(",")]
    vA5 = [[6, 249, 251], [7, 253, 254]]
    for p in range(3):
        bud = BUD[p]
        if p == 0: items = [(int(E("STD", 26)) * bud, lambda: None)] + stats_items()
        else: items = [(2 * bud, lambda: None)] + epi_items(p - 1, 0) + epi_items(p - 1, 1)
        credit = 0
        ng = 0
        for s in range(32):
            S = 32 * p + s
            nx = reads(S + 2) if S + 2 < 96 else []
            if p and s == 0:
                stamp(A, f"a4{p}")
                A("s_barrier")
                stamp(A, f"b4{p}")
            if s % 8 == 0 and s: stamp(A, f"p{p}s{s}")
            chk = p == 0 and s in G4
            if chk:
                g = [("H", i) for i in range(s, G4[G4.index(s) + 1])]
                assert all(x in LH.pend for x in g)
                VM.wait(g)
                sent_check(A, *group_check(g, [LH, LS]))
                if s == 0: stamp(A, "hflag")
            LG.wait([("W", S)])
            for u in range(2):
                A(mfma(acc[p & 1][u], WF[S % 3][u], H[s], 0 if s == 0 else None))
                for tg, l in nx[2 * u:2 * u + 2]: LG.issue(tg, l)
                credit = min(credit + bud, bud) if items and items[0][0] <= 8 else credit + bud
                if p == 0 and u == 0 and HP + s < 32:
                    hload(HP + s); credit -= 4
                if p == 2 and s >= GS0 and ng < GS1 and ng < s:
                    gload(ng); ng += 1; credit -= 4
                while items and (items[0][0] <= credit or (s == 31 and u == 1)):
                    c, f = items.pop(0)
                    f(); credit -= c
        assert not items
    while ng < GS1:
        gload(ng); ng += 1
    C2 = acc[1][0]; E2 = acc[1][1]
    cs_reads(4, ("cs", 4))
    for g in range(4): LG.issue(("cs", 5), f"ds_read_b128 {vr(C2+4*g,4)}, v{vCS} offset:{128*5+32*g}")
    for k in range(2):
        for w in (1, 2): A(f"v_add_u32 v{vA5[k][w]}, {w*65536}, v{vA5[k][0]}")
    stamp(A, "a43")
    A("s_barrier")
    stamp(A, "b43")
    def reads5(n):
        out = []
        for k in range(2):
            for sec in range(2):
                o = POS2[n] + sec * 1024
                out.append((("W5", n), f"ds_read_b64_tr_b16 {vr(WF[n%3][k]+2*sec,2)}, v{vA5[k][o>>16]} offset:{o&0xffff}"))
        return out
    for u in range(2):
        a = acc[0][u]; c = (CS, C2)[u]; e = (CS, E2)[u]
        LG.wait([("cs", 4 + u)])
        if u == 1:
            for tg, l in reads5(0) + reads5(1): LG.issue(tg, l)
        for r in range(0, 16, 2): A(pk_fma(a + r, c + r, nm, a + r, bc=(1,)))
        for r in range(0, 8, 2): A(pk_mul(e + r, a + r, rl, bc=(1,)))
        for r in range(8): A(f"v_exp_f32 v{e+r}, v{e+r}")
        for r in range(0, 8, 2): A(pk_mul(a + r, a + r, a + 8 + r))
        for r in range(0, 8, 2): A(pk_fma(e + r, e + r, var, var, bc=(1, 2)))
        for r in range(8): A(f"v_rcp_f32 v{e+r}, v{e+r}")
        A("s_nop 0")
        for r in range(0, 8, 2): A(pk_mul(a + r, a + r, e + r))
        for r in range(4): A(f"v_cvt_pk_bf16_f32 v{a+8+r}, v{a+2*r}, v{a+2*r+1}")
        A(clamp(a + 11))
        lstore(A, VM, ("G", 4 + u), [f"buffer_store_dwordx4 {vr(a+8,4)}, v{vL16}, {SR(S_WS)}, s{sGo+2} offen offset:{1024*u}"])
        for i in range(int(E("GF", 8))):
            if ng < 32: gload(ng); ng += 1
    stamp(A, "fin")
    acc5 = acc[1]
    NS = 43
    for n in range(NS):
        nx = reads5(n + 2) if n + 2 < NS else []
        if n in (21, 37):
            stamp(A, "a51" if n == 21 else "a52")
            A("s_barrier")
            stamp(A, "b51" if n == 21 else "b52")
        if n % 4 == 0: stamp(A, f"k5s{n}")
        if n in G5:
            g = [("A", i) for i in range(n, G5[G5.index(n) + 1])]
            assert all(x in LGn.pend for x in g)
            VM.wait(g)
            sent_check(A, *group_check(g, [LGn]))
        LG.wait([("W5", n)])
        for u in range(2):
            A(mfma(acc5[u], WF[n % 3][u], AF[n], 0 if n == 0 else None))
            for tg, l in nx[2 * u:2 * u + 2]: LG.issue(tg, l)
            if (ng < 32 or (n >= GS2 and ng < NS)) and (GR2 == 2 or u == 0):
                gload(ng); ng += 1
    T = H[8]
    stamp(A, "k5end")
    exchange(A, acc5, H[0], T, XCH5)
    A(f"v_and_b32 v{T}, 31, v0")
    A(f"v_lshlrev_b32 v{T+1}, 10, v{T}")
    A(f"v_lshrrev_b32 v{T}, 5, v0")
    A(f"v_lshl_add_u32 v{T+1}, v{T}, 4, v{T+1}")
    A(f"s_lshl_b32 s58, s{sRU5}, 15")
    A(f"s_lshl_b32 s59, s{sCU5}, 6")
    A("s_add_u32 s58, s58, s59")
    a = acc5[0]
    for q in range(4):
        A(f"s_waitcnt lgkmcnt({3-q})")
        A(pk_add(a + 4 * q, a + 4 * q, acc5[1] + 4 * q))
        A(pk_add(a + 4 * q + 2, a + 4 * q + 2, acc5[1] + 4 * q + 2))
    for r in range(8):
        A(f"v_cvt_pk_bf16_f32 v{RES+r}, v{a+2*r}, v{a+2*r+1}")
    A("s_nop 1")
    for g in range(2):
        A(f"v_permlane32_swap_b32 v{RES+4*g}, v{RES+4*g+2}")
        A(f"v_permlane32_swap_b32 v{RES+4*g+1}, v{RES+4*g+3}")
    A("s_nop 1")
    for g in range(2):
        A(f"buffer_store_dwordx4 {vr(RES+4*g,4)}, v{T+1}, {SR(S_OUT)}, s58 offen offset:{32*g}")
    if STAMP: A("s_waitcnt vmcnt(0)")
    dump_stamps(A)
    A("s_endpgm")

def mfma16(d, a, b, c=None):
    c = vr(d, 4) if c is None else "0"
    return f"v_mfma_f32_16x16x32_bf16 {vr(d,4)}, {vr(a,4)}, {vr(b,4)}, {c}"

def helper(A, fin):
    ROLE[0] = 1
    VM = Q("vmcnt", A); LG = Q("lgkmcnt", A)
    sJ, sMX, sMW = 50, 51, 52
    ONE = 44; ACC = 20
    vXg, vWg, vWa, vAdd = 8, 12, 15, 16
    t = 2
    A(f"s_sub_u32 s{sJ}, s{S_W}, 4")
    A(f"s_lshl_b32 s53, s{sRB}, 17")
    A(f"s_lshl_b32 s54, s{sJ}, 15")
    A("s_add_u32 s53, s53, s54")
    A(f"v_lshrrev_b32 v{t}, 3, v0")
    A(f"v_lshlrev_b32 v{t}, 10, v{t}")
    A(f"v_add_u32 v{t}, s53, v{t}")
    A(f"v_and_b32 v{t+1}, 7, v0")
    A(f"v_lshrrev_b32 v{t+2}, 4, v0")
    A(f"v_xor_b32 v{t+1}, v{t+1}, v{t+2}")
    A(f"v_lshl_add_u32 v{vXg}, v{t+1}, 4, v{t}")
    A(f"v_xor_b32 v{vXg+1}, 64, v{vXg}")
    A(f"v_add_u32 v{vXg+1}, 0x2000, v{vXg+1}")
    A(f"v_add_u32 v{vXg+2}, 0x4000, v{vXg}")
    A(f"v_add_u32 v{vXg+3}, 0x4000, v{vXg+1}")
    A(f"s_mul_i32 s53, s{sJ}, {16*3072}")
    A(f"s_lshl_b32 s54, s{sCB}, 6")
    A("s_add_u32 s53, s53, s54")
    for r in range(3):
        A(f"v_add_u32 v{t}, {64*r}, v0")
        div12(A, t, t + 1, t + 2)
        A(f"v_mul_u32_u24 v{t+1}, 3072, v{t+1}")
        A(f"v_and_b32 v{t}, 3, v{t+2}")
        A(f"v_lshl_add_u32 v{t+1}, v{t}, 4, v{t+1}")
        A(f"v_lshrrev_b32 v{t+2}, 2, v{t+2}")
        A(f"v_lshl_add_u32 v{t+1}, v{t+2}, 10, v{t+1}")
        A(f"v_add_u32 v{vWg+r}, s53, v{t+1}")
    A(f"s_lshl_b32 s{sMX}, s{sJ}, 12")
    A(f"s_mul_i32 s{sMW}, s{sJ}, 3072")
    fin()
    ROT = int(E("ROT", 0))
    if ROT == 1: A(f"s_lshr_b32 s62, s{S_J}, 2")
    if ROT == 2: A(f"s_lshl_b32 s62, s{S_J}, 1")
    if ROT == 3:
        A(f"s_lshr_b32 s62, s{S_J}, 2")
        A(f"s_lshl_b32 s53, s{S_J}, 1")
        A("s_add_u32 s62, s62, s53")
    def issue(c):
        slot = c % 5
        if ROT:
            A(f"s_add_u32 s53, s62, {c}")
            A("s_and_b32 s53, s53, 7")
            A(f"s_mul_i32 s54, s53, {64*3072}")
            A("s_lshl_b32 s53, s53, 7")
        else:
            A(f"s_movk_i32 s53, {c*128}")
            A(f"s_mov_b32 s54, {c*64*3072}")
        for q in range(4):
            if not E("NOX"): dma(A, VM, ("c", c), vXg + q, S_X, "s53", sMX, XB + slot * 16384 + q * 1024)
            if q < 3 and not E("NOW"): dma(A, VM, ("c", c), vWg + q, S_WQ, "s54", sMW, WB + slot * 12288 + q * 1024)
    D1 = int(E("D1", 3))
    for c in range(D1):
        issue(c)
        if c == 0: stamp(A, "iss")
    k1_wa(A, vWa, t, t + 1)
    A(f"s_min_u32 s62, s{sJ}, 2")
    A("s_lshl_b32 s62, s62, 6")
    A(f"v_add_u32 v{vWa}, s62, v{vWa}")
    A("s_mov_b32 vcc_lo, 0x00100001")
    A("s_mov_b32 vcc_hi, 0x00100001")
    A(f"v_mov_b32 v{t}, 0")
    A(f"v_mov_b32 v{t+1}, 0x3f803f80")
    for r in range(4):
        A(f"v_cndmask_b32 v{ONE+r}, v{t}, v{t+1}, vcc")
    A("s_lshl_b32 s62, s62, 1")
    A(f"s_add_u32 s62, s62, {SC1}")
    A(f"v_lshl_add_u32 v{vAdd}, v0, 2, s62")
    A("s_waitcnt lgkmcnt(0)")
    make_T(A)
    CF = 48
    for c in range(8):
        VM.wait([("c", c)])
        stamp(A, f"h1a{c}")
        A("s_barrier")
        if c == 0: stamp(A, "b0")
        slot = c % 5
        for u in range(4):
            for sec in range(2):
                A(f"ds_read_b64_tr_b16 {vr(CF+4*u+2*sec,2)}, v{vWa} offset:{WB + slot*12288 + (16*u+4*sec)*192}")
        if D1 <= c + 3 < 8: issue(c + 3)
        if c == int(E("T0", 7)):
            A("s_lshl_b32 s53, s2, 2")
            A(f"s_add_u32 s53, s53, s{sJ}")
            A("s_mul_i32 s53, s53, 1408")
            A(f"v_lshlrev_b32 v{t}, 6, v0")
            A("s_mov_b64 exec, 0x3fffff")
            for n, sd in enumerate((S_WO, S_W1, S_W3, S_W2)):
                VM.issue("t0", f"buffer_load_dword v{4+n}, v{t}, {SR(sd)}, s53 offen")
            A("s_mov_b64 exec, -1")
        A("s_waitcnt lgkmcnt(0)")
        for u in range(4): A(mfma16(ACC, ONE, CF + 4 * u, 0 if c == 0 and u == 0 else None))
    sHead, sK, sKc = 53, 54, 55
    vKg, vVg, vKd, vVd = 8, 9, 10, 11
    attn_ids(A, sHead, 56)
    swap23(A, vKg, t)
    A(f"v_add_u32 v{vVg}, 0x200000, v{vL16}")
    A("s_mov_b32 exec_hi, 0")
    A(f"ds_write_b32 v{vAdd}, v{ACC}")
    A("s_mov_b32 exec_hi, -1")
    A(f"s_mul_i32 s56, s{sJ}, {TILE}")
    A(f"s_add_u32 s57, s56, {RING+1056}")
    A(f"v_add_u32 v{vKd}, s57, v{vL16}")
    A(f"v_lshrrev_b32 v{t}, 5, v0")
    A(f"v_lshlrev_b32 v{t}, 4, v{t}")
    A(f"s_add_u32 s57, s56, {RING}")
    A(f"v_add3_u32 v{vVd}, v{vL16}, v{t}, s57")
    A(f"s_lshl_b32 s{sK}, s{sHead}, 16")
    A(f"s_lshl_b32 s56, s{sJ}, 10")
    A(f"s_add_u32 s{sK}, s{sK}, s56")
    A(f"s_add_u32 s{sK}, s{sK}, {QKV + 0x200000}")
    A("s_waitcnt lgkmcnt(0)")
    A("s_barrier")
    stamp(A, "bcs")
    A(f"v_lshrrev_b32 v{t}, 4, v0")
    A(f"v_min_u32 v{t}, 2, v{t}")
    A(f"v_mul_u32_u24 v{t}, {SEG}, v{t}")
    A(f"v_bfe_u32 v{t+1}, v0, 1, 3")
    A(f"v_mul_u32_u24 v{t+1}, {TILE}, v{t+1}")
    A(f"v_add_u32 v{t}, v{t}, v{t+1}")
    A(f"v_and_b32 v{t+1}, 1, v0")
    A(f"v_mul_u32_u24 v{t+1}, 528, v{t+1}")
    A(f"v_add_u32 v{t}, v{t}, v{t+1}")
    for r in range(4): A(f"v_mov_b32 v{ACC+r}, 0x3f803f80")
    A(f"ds_write_b128 v{t}, {vr(ACC,4)} offset:{RING+512}")
    vW13, vG64 = 13, 14
    sPair, sM1 = 57, 60
    A(f"v_lshrrev_b32 v{t}, 2, v0")
    A(f"v_mul_u32_u24 v{t}, 2752, v{t}")
    A(f"v_and_b32 v{t+1}, 3, v0")
    A(f"v_lshl_add_u32 v{t}, v{t+1}, 4, v{t}")
    A(f"s_mul_i32 s56, s{sJ}, {16*2752}")
    A(f"v_add_u32 v{vW13}, s56, v{t}")
    A(f"v_lshrrev_b32 v{t}, 3, v0")
    A(f"v_lshlrev_b32 v{t}, 10, v{t}")
    A(f"v_bfe_u32 v{t+1}, v0, 4, 1")
    A(f"v_lshlrev_b32 v{t+1}, 2, v{t+1}")
    A(f"v_and_b32 v{vG64}, 7, v0")
    A(f"v_xor_b32 v{t+1}, v{t+1}, v{vG64}")
    A(f"v_lshl_add_u32 v{t}, v{t+1}, 4, v{t}")
    A(f"s_lshr_b32 s56, s{S_J}, 2")
    A("s_lshl_b32 s56, s56, 7")
    A(f"s_lshl_b32 s{sM1}, s{sJ}, 13")
    A(f"s_add_u32 s56, s56, s{sM1}")
    A(f"v_add_u32 v{vG64}, s56, v{t}")
    A(f"s_lshl_b32 s{sM1}, s{sJ}, 10")
    A(f"s_lshr_b32 s56, s{S_J}, 1")
    for p in range(3):
        A(f"s_add_u32 s{sPair+p}, s56, {16*p}")
        if p == 2: A(f"s_min_u32 s{sPair+p}, s{sPair+p}, 42")
        A(f"s_lshl_b32 s{sPair+p}, s{sPair+p}, 6")
    quad = lambda q: 48 + 4 * q
    LK = Ld(A, VM, sK, sKc, "q")
    def kvload(i):
        LK.load(("kv", i >> 1), 4, quad(20 + 2 * i), vKg, 4096 * i)
        LK.load(("kv", i >> 1), 4, quad(21 + 2 * i), vVg, 4096 * i)
    def kvcheck(segs):
        g = [("kv", s) for s in segs]
        VM.wait(g)
        sent_check(A, *group_check(g, [LK]), t=t)
    def kvwrite(s):
        for i in (2 * s, 2 * s + 1):
            o = (s % 3) * SEG + 4 * (i & 1) * TILE
            A(f"ds_write_b128 v{vKd}, {vr(quad(20+2*i),4)} offset:{o}")
            A(f"ds_write_b128 v{vVd}, {vr(quad(21+2*i),4)} offset:{o}")
    def w13src(b, qh):
        p, kb = divmod(b, 4)
        A(f"s_add_u32 s61, s{sPair+p}, {(128*kb+64*qh)*2752}")
    def w13dma(b):
        for qh in range(2):
            w13src(b, qh)
            for mat in range(2):
                dma(A, VM, ("b", b), vW13, (S_W1, S_W3)[mat], "s61", sM1, slot13(b) + mat * 8224 + qh * 4096)
    BQ0 = {0: 20, 1: 24, 2: 28, 8: 32, 9: 20, 10: 24, 11: 36, 3: 32, 4: 40, 5: 20, 6: 24, 7: 36}
    BQ = lambda b, qh, mat: quad(BQ0[b] + 2 * qh + mat)
    def w13load(b):
        for qh in range(2):
            w13src(b, qh)
            for mat in range(2):
                VM.issue(("r", b), f"buffer_load_dwordx4 {vr(BQ(b,qh,mat),4)}, v{vW13}, {SR((S_W1, S_W3)[mat])}, s61 offen")
    SEL = 32
    first = set()
    def colsum(b):
        VM.wait([("r", b)])
        for qh in range(2):
            for mat in range(2):
                g = b // 4
                A(mfma16(ACC + 4 * g, BQ(b, qh, mat), SEL + 4 * mat, None if g in first else 0))
                first.add(g)
    W2Q = lambda n: quad(n - 23)
    def w2load(n):
        A(f"s_mov_b32 s61, {n*32768}")
        VM.issue(("w2", n), f"buffer_load_dwordx4 {vr(W2Q(n),4)}, v{vG64}, {SR(S_W2)}, s61 offen")
    def g64dma(tag, srdn, n, pos):
        A(f"s_mov_b32 s61, {n*32768}")
        dma(A, VM, tag, vG64, srdn, "s61", sM1, pos)
    nb = [0]
    def bar():
        A("s_waitcnt lgkmcnt(0)"); LG.q = []
        stamp(A, f"ha{nb[0]}")
        A("s_barrier")
        stamp(A, f"hb{nb[0]}")
        nb[0] += 1
    KV0 = int(E("KV0", 6))
    for i in range(KV0): kvload(i)
    stamp(A, "kviss")
    kvcheck([0])
    stamp(A, "kvflag")
    kvwrite(0)
    bar()
    stamp(A, "bai")
    for i in range(KV0, 16): kvload(i)
    kvcheck([1])
    kvwrite(1)
    bar()
    kvcheck(range(2, 8))
    kvwrite(2)
    group_flag_addr(A, 17)
    VM.issue("flag", flag_load(18, 17))
    for n in range(16): g64dma("wo", S_WO, n, WOB + 4096 * n)
    vWr = [12, 15, 16]
    A(f"v_and_b32 v{t}, 1, v0")
    A(f"v_lshlrev_b32 v{t}, 4, v{t}")
    A(f"v_mov_b32 v{t+1}, 0x3f80")
    A(f"v_lshlrev_b32 v{t}, v{t}, v{t+1}")
    for r in range(8): A(f"v_mov_b32 v{SEL+r}, 0")
    for r in range(8):
        A(f"s_mov_b32 exec_lo, {hex((3 << 2*r) * 0x10001)}")
        A(f"s_mov_b32 exec_hi, {hex((3 << 2*r) * 0x10001)}")
        A(f"v_mov_b32 v{SEL+r}, v{t}")
    A("s_mov_b64 exec, -1")
    for r in range(4): A(f"v_mov_b32 v{4+r}, -1")
    A(f"v_add_u32 v{vWr[0]}, s{sM1}, v{vL16}")
    for w in (1, 2):
        A(f"v_add_u32 v{vWr[w]}, {w*65536}, v{vWr[0]}")
    def ldsw(tag, pos, r):
        LG.issue(tag, f"ds_write_b128 v{vWr[pos>>16]}, {vr(r,4)} offset:{pos&0xffff}")
    def blockw(b):
        VM.wait([("r", b)])
        for qh in range(2):
            for mat in range(2): ldsw(("bw", b), slot13(b) + mat * 8224 + qh * 4096, BQ(b, qh, mat))
    bar()
    kvwrite(3)
    w13load(0); w13load(1)
    VM.wait(["flag"])
    A(f"v_cmp_ne_u64 vcc, s[{S_TX}:{S_TX+1}], v[18:19]")
    A(f"s_cmp_lg_u64 vcc, 0")
    A(f"s_cselect_b32 s{S_MODE}, 1, 0")
    def pz(so, off): return f"buffer_store_dwordx4 v[4:7], v{vL16}, {SR(S_WS)}, s{so} offen offset:{off}"
    A("s_lshl_b32 s61, s2, 2")
    A(f"s_add_u32 s61, s61, s{sJ}")
    A("s_lshl_b32 s61, s61, 11")
    A(f"s_add_u32 s61, s61, {OF}")
    for o in (0, 1024): VM.issue("poison", pz(61, o) + " sc1")
    g64_ids(A, 62, 63, 64, 65, sJ)
    A("s_lshl_b32 s61, s62, 4")
    A("s_add_u32 s61, s61, s64")
    A("s_lshl_b32 s62, s61, 11")
    A(f"s_add_u32 s62, s62, {HF}")
    A("s_lshl_b32 s61, s61, 8")
    A(f"s_add_u32 s61, s61, {ST2}")
    lstore(A, VM, "poison", [pz(62, 0), pz(62, 1024), "s_mov_b64 exec, 0xffff", pz(61, 0), "s_mov_b64 exec, -1"])
    A(f"s_and_b32 s61, s{S_J}, 1")
    A(f"s_lshl1_add_u32 s61, s{S_XCD}, s61")
    A(f"s_lshl2_add_u32 s61, s61, s{sJ}")
    A(f"s_lshr_b32 s62, s{S_J}, 1")
    g_offsets(A, 61, 62, 63, 67)
    lstore(A, VM, "poison", [pz(63 + p, o) for p in range(3) for o in (0, 1024)])
    bar()
    kvwrite(4)
    colsum(0); colsum(1); blockw(0); blockw(1)
    w13load(2); w13load(8)
    for n in range(23, 31): w2load(n)
    bar()
    kvwrite(5)
    VM.wait(["poison"])
    w13load(9); w13load(10); w13load(11)
    for n in range(31, 35): w2load(n)
    colsum(2); colsum(8)
    bar()
    A(f"s_mul_i32 s61, s2, {FS}")
    A(f"s_add_u32 s61, s61, {FL2}")
    with only(A, sJ, 0): flag_store(A, 61, t)
    kvwrite(6)
    w13load(3); w13load(4)
    for n in range(35, 43): w2load(n)
    colsum(9); colsum(10); colsum(11)
    bar()
    kvwrite(7)
    w13load(5); w13load(6); w13load(7)
    A(f"s_mul_i32 s61, s{sJ}, {192*1024}")
    A(f"s_lshr_b32 s56, s{S_J}, 2")
    A("s_lshl_b32 s56, s56, 7")
    A("s_add_u32 s61, s61, s56")
    A(f"v_lshlrev_b32 v{t}, 10, v0")
    for i in range(3):
        VM.issue("touch", f"buffer_load_dword v{4+i}, v{t}, {SR(S_W2)}, s61 offen")
        if i < 2: A("s_add_u32 s61, s61, 65536")
    colsum(3); colsum(4)
    bar()
    flag_addr(A, 17, sJ, FL2)
    VM.issue("flag", flag_load(18, 17, SCF))
    colsum(5); colsum(6); colsum(7)
    A(f"s_mul_i32 s61, s{sJ}, 3072")
    A(f"s_add_u32 s61, s61, {PSTG}")
    A(f"v_add_u32 v{t}, s61, v{vL16}")
    A("s_nop 6")
    for p in range(3): A(f"ds_write_b128 v{t}, {vr(ACC+4*p,4)} offset:{1024*p}")
    VM.drain()
    stamp(A, "x3")
    flag_check(A, 18, 17)
    A(f"s_add_u32 s61, s2, s{sJ}")
    with only(A, 61, 0): flag_store(A, 61, t)
    bar()
    bar()
    stamp(A, "be")
    blockw(2)
    blockw(3); blockw(4)
    A(f"s_min_u32 s61, s{sJ}, 2")
    A("s_lshl_b32 s62, s61, 10")
    A(f"s_add_u32 s62, s62, {PSTG}")
    A(f"v_add_u32 v{t}, s62, v{vL16}")
    for j in range(4): A(f"ds_read_b128 {vr(ACC+4*j,4)}, v{t} offset:{3072*j}")
    A(f"v_bfe_u32 v{t}, v0, 3, 1")
    A(f"v_lshlrev_b32 v{t}, 6, v{t}")
    A(f"v_and_b32 v{t+1}, 7, v0")
    A(f"v_lshl_add_u32 v{t}, v{t+1}, 2, v{t}")
    A("s_lshl_b32 s62, s61, 8")
    A(f"s_add_u32 s62, s62, {SC4}")
    A(f"v_add_u32 v{t}, s62, v{t}")
    A("s_waitcnt lgkmcnt(0)"); LG.q = []
    for q in range(4):
        A(f"v_add_f32 v{ACC+q}, v{ACC+q}, v{ACC+4+q}")
        A(f"v_add_f32 v{ACC+8+q}, v{ACC+8+q}, v{ACC+12+q}")
    for q in range(4): A(f"v_add_f32 v{ACC+q}, v{ACC+q}, v{ACC+8+q}")
    for sw in ("v_permlane32_swap_b32", "v_permlane16_swap_b32"):
        for q in range(4): A(f"v_mov_b32 v{ACC+4+q}, v{ACC+q}")
        A("s_nop 1")
        for q in range(4): A(f"{sw} v{ACC+q}, v{ACC+4+q}")
        A("s_nop 1")
        for q in range(4): A(f"v_add_f32 v{ACC+q}, v{ACC+q}, v{ACC+4+q}")
    for q in range(4): A(f"ds_write_b32 v{t}, v{ACC+q} offset:{128*(q>>1) + 32*(q&1)}")
    stamp(A, "cs1")
    bar()
    A("s_barrier")
    for b in (5, 6, 7): blockw(b)
    stamp(A, "cs2")
    bar()
    stamp(A, "w41")
    A("s_barrier")
    def w2w(n):
        VM.wait([("w2", n)])
        ldsw("w2", POS2[n], W2Q(n))
    for b in (8, 9, 10, 11): w13dma(b)
    for n in (0, 1, 2, 3, 20, 21, 22): g64dma("w2d", S_W2, n, POS2[n])
    VM.wait([("b", 11)])
    stamp(A, "w42")
    A("s_barrier")
    for n in range(4, 20): g64dma("w2d", S_W2, n, POS2[n])
    VM.wait(["w2d"])
    stamp(A, "w43")
    A("s_barrier")
    for n in range(23, 39): w2w(n)
    stamp(A, "w51")
    bar()
    for n in range(39, 43): w2w(n)
    bar()
    A("s_barrier")
    dump_stamps(A)

def descriptor():
    return f""".section .rodata,"a"
.p2align 6
.amdhsa_kernel {KNAME}
  .amdhsa_next_free_vgpr 256
  .amdhsa_next_free_sgpr 102
  .amdhsa_accum_offset 256
  .amdhsa_group_segment_fixed_size 0
  .amdhsa_kernarg_size 80
  .amdhsa_user_sgpr_count 2
  .amdhsa_user_sgpr_kernarg_segment_ptr 1
  .amdhsa_system_sgpr_workgroup_id_x 1
.end_amdhsa_kernel
"""

def main():
    ref = open(f"cdna_kernels/{NAME}.s.ref").read().splitlines()
    head = []
    for l in ref:
        if l.startswith("; Override") or "@launch" in l or l.startswith("; grid="): continue
        if not l.startswith(";"): break
        head.append(l)
    head.append(f"; @launch grid=(256,1,1) block=(512,1,1) lds={LDS_ALL}")
    A = Asm()
    A.raw('.amdgcn_target "amdgcn-amd-amdhsa--gfx950"')
    A.raw(".text")
    fin = prologue(A)
    A(f"s_cmp_lt_u32 s{S_W}, 4")
    A("s_cbranch_scc1 L_compute")
    helper(A, fin)
    A.label("L_end")
    A("s_endpgm")
    A.label("L_compute")
    ROLE[0] = 0
    c_k1(A, fin)
    c_attn(A)
    c_k3(A)
    c_k45(A)
    i = 0
    while i < len(OOL):
        OOL[i](A); i += 1
    if STAMP: head.append("; STS " + ",".join(STS[0]) + " " + ",".join(STS[1]))
    out = "\n".join(head) + "\n" + A.text() + descriptor()
    path = sys.argv[1] if len(sys.argv) > 1 else f"cdna_kernels/{NAME}.s"
    open(path, "w").write(out)

if __name__ == "__main__":
    main()
```

```python
import sys, os, struct
sys.path.insert(0, os.path.dirname(os.path.abspath(__file__)))
from asmlib import *

NAME = "sequential_preLN__softmax_full_mha__glu_gated_swiglu__prompt"
KNAME = NAME + "_kernel"
E = os.environ.get
FS = int(E("FS", 16))
NONCE = 0
FL1 = 0x1000
FL2 = FL1 + 256 * FS
FL3 = FL2 + 256 * FS
DUMMY = 0x40000
assert FL3 + 1024 * FS <= DUMMY
QKV = 0x100000
OF = 0x700000
HF = 0x900000
GF = 0xB00000
ST2 = 0x1060000
TS = 0x1100000
WS_BYTES = 0x1200000
LOG2E = 1.4426950408889634
def f32(x):
    return hex(struct.unpack("<I", struct.pack("<f", x))[0])

S_T = 4
S_WS, S_X, S_WQ, S_WO, S_W1, S_W3, S_W2, S_OUT, S_DBG = 8, 12, 16, 20, 24, 28, 32, 36, 40
S_W, S_XCD, S_J = 44, 45, 46
S_TO = 47
S_TX = 6
S_MODE = 66
PSTG = 82816
vL16, vP, RES = 1, 4, 8
LDS_ALL = 163840
SCR = 161280
SC1, ST1, SC4 = SCR, SCR + 512, SCR + 1536
RING = 32896; SEG = 16640; TILE = 2080
WOB = 95744
BLK = 16448
XCH3 = SCR - 16384
XCH5 = 65728
STAMP = int(E("STAMP", 0))
TOLIM = 20000
BKV = int(E("BKV", 1))
BI = int(E("BI", 1))

class Q:
    def __init__(self, kind, A):
        self.kind, self.A, self.q = kind, A, []
        self.max = 63 if kind == "vmcnt" else 15
    def issue(self, tag, ins):
        self.A(ins); self.q.append(tag)
    def need(self, tags):
        idx = [i for i, t in enumerate(self.q) if t in tags]
        if not idx: return None
        n = len(self.q) - 1 - max(idx)
        n = min(n, self.max)
        self.q = self.q[len(self.q) - n:] if n else []
        return n
    def wait(self, tags):
        n = self.need(tags)
        if n is not None: self.A(f"s_waitcnt {self.kind}({n})")
    def drain(self):
        self.A(f"s_waitcnt {self.kind}(0)"); self.q = []

def wait2(A, VM, vt, LG, lt):
    a = VM.need(vt); b = LG.need(lt)
    s = []
    if a is not None: s.append(f"vmcnt({a})")
    if b is not None: s.append(f"lgkmcnt({b})")
    if s: A("s_waitcnt " + " ".join(s))

STS = [E("STS0", "start,b0,k1end,k1pub,bai,be,oflag,hpub,hflag,b41,b42,b43,fin,b51,b52,end").split(","),
       E("STS1", "start,iss,b0,bcs,kviss,kvflag,bai,be,cs1,cs2,w41,w42,w43,w51,end").split(",")]
ROLE = [0]
def stamp(A, name):
    if STAMP and name in STS[ROLE[0]]:
        n = STS[ROLE[0]].index(name)
        A(f"{'s_memtime' if STAMP == 2 else 's_memrealtime'} s[{100-2*n}:{101-2*n}]")
def dump_stamps(A):
    if not STAMP: return
    role = ROLE[0]
    lab = A.newlabel("st")
    stamp(A, "end")
    A(f"s_and_b32 s69, s{S_W}, 3")
    A("s_cmp_lg_u32 s69, 0")
    A(f"s_cbranch_scc1 {lab}")
    A("s_waitcnt lgkmcnt(0)")
    A("s_lshl_b32 s69, s2, 7")
    A(f"s_add_u32 s69, s69, {TS + role*64}")
    A("s_mov_b64 exec, 1")
    for i in range(len(STS[role])):
        A(f"v_mov_b32 v4, s{100-2*i}")
        A(f"buffer_store_dword v4, off, s[{S_WS}:{S_WS+3}], s69 offset:{4*i}")
    A("s_waitcnt vmcnt(0)")
    A.label(lab)

def SR(n): return f"s[{n}:{n+3}]"

def dma(A, VM, tag, voff, srdn, soff, m0base, m0add):
    A(f"s_add_u32 m0, s{m0base}, {m0add}")
    A("s_nop 0")
    VM.issue(tag, f"buffer_load_dwordx4 v{voff}, {SR(srdn)}, {soff} offen lds")

OOL = []
def sent_reduce(regs, t):
    out = []
    regs = list(regs)
    if len(regs) > 1:
        if len(regs) == 2: out.append(f"v_max_u32 v{t}, v{regs[0]}, v{regs[1]}"); regs = []
        else: out.append(f"v_max3_u32 v{t}, v{regs[0]}, v{regs[1]}, v{regs[2]}"); regs = regs[3:]
        while regs:
            if len(regs) == 1: out.append(f"v_max_u32 v{t}, v{t}, v{regs[0]}"); regs = []
            else: out.append(f"v_max3_u32 v{t}, v{t}, v{regs[0]}, v{regs[1]}"); regs = regs[2:]
        r = t
    else: r = regs[0]
    out.append(f"v_cmp_eq_u32 vcc, -1, v{r}")
    return out
def sent_branch(A, group, pending, t=vP):
    s = A.newlabel("slow"); r = A.newlabel("back"); l = A.newlabel("rl"); g = A.newlabel("gu")
    A(f"s_cbranch_vccnz {s}")
    A.label(r)
    pending = list(pending)
    def ool(B):
        B.label(s)
        B("s_waitcnt vmcnt(0)")
        B.label(l)
        for reg, ins in pending:
            k = B.newlabel("sk")
            B(f"v_cmp_eq_u32 vcc, -1, v{reg}")
            B(f"s_cbranch_vccz {k}")
            for i in ins: B(i)
            B.label(k)
        B("s_waitcnt vmcnt(0)")
        B(f"s_sub_u32 s{S_TO}, s{S_TO}, 1")
        B(f"s_cbranch_scc1 {g}")
        for i in sent_reduce(group, t): B(i)
        B(f"s_cbranch_vccnz {l}")
        B(f"s_branch {r}")
        B.label(g)
        B(f"s_mov_b32 s{S_TO}, 0")
        B(f"s_branch {r}")
    OOL.append(ool)
def sent_check(A, group, pending, t=vP):
    for i in sent_reduce(group, t): A(i)
    sent_branch(A, group, pending, t)
S_TMP = 3
def ws_load(n, dst, voff, sbase, off, op="s_add_u32"):
    x = "" if n == 1 else f"x{n}"
    return [f"{op} s{S_TMP}, s{sbase}, {off}",
            f"buffer_load_dword{x} {vr(dst,n)}, v{voff}, {SR(S_WS)}, s{S_TMP} offen sc1"]
class Ld:
    def __init__(self, A, VM, sbase, scur, sc, op="s_add_u32"):
        self.A, self.VM, self.sbase, self.scur, self.hi = A, VM, sbase, scur, None
        self.op = op
        self.sc = " sc1" if E("SC", "qohg").find(sc) >= 0 else ""
        self.pend = {}
    def load(self, tag, n, dst, voff, off):
        hi = off & ~4095
        if hi == 0: so = self.sbase
        else:
            if hi != self.hi: self.A(f"{self.op} s{self.scur}, s{self.sbase}, {hi}"); self.hi = hi
            so = self.scur
        x = "" if n == 1 else f"x{n}"
        o = f" offset:{off & 4095}" if off & 4095 else ""
        self.VM.issue(tag, f"buffer_load_dword{x} {vr(dst,n)}, v{voff}, {SR(S_WS)}, s{so} offen{o}{self.sc}")
        self.pend.setdefault(tag, []).append((dst + n - 1, ws_load(n, dst, voff, self.sbase, off, self.op)))
def group_check(tags, lds):
    pend = [x for L in lds for v in L.pend.values() for x in v]
    grp = []
    for L in lds:
        for t in tags:
            if t in L.pend: grp += [r for r, _ in L.pend.pop(t)]
    return grp, pend
def clamp(r): return f"v_min_u32 v{r}, -2, v{r}"

def flag_store(A, soff, vt, st=S_T):
    A("s_mov_b64 exec, 1")
    A(f"v_mov_b32 v{vt}, s{st}")
    A(f"v_mov_b32 v{vt+1}, s{st+1}")
    A(f"buffer_store_dwordx2 {vr(vt,2)}, off, {SR(S_WS)}, s{soff} sc1")
    A("s_mov_b64 exec, -1")
def flag_addr(A, va, sw, base):
    A(f"s_mul_i32 s{S_TMP}, s{sw}, {64*FS}")
    A(f"s_add_u32 s{S_TMP}, s{S_TMP}, {base}")
    A(f"v_mul_u32_u24 v{va}, {FS}, v0")
    A(f"v_add_u32 v{va}, s{S_TMP}, v{va}")
def flag_load(vd, va, sc=" sc1"):
    return f"buffer_load_dwordx2 {vr(vd,2)}, v{va}, {SR(S_WS)}, 0 offen{sc}"
def flag_check(A, vd, va):
    s = A.newlabel("fs"); r = A.newlabel("fb"); g = A.newlabel("fg")
    test = f"v_cmp_ne_u64 vcc, s[{S_T}:{S_T+1}], {vr(vd,2)}"
    A(test)
    A(f"s_cbranch_vccnz {s}")
    A.label(r)
    def ool(B):
        B.label(s)
        B(flag_load(vd, va))
        B("s_waitcnt vmcnt(0)")
        B(f"s_sub_u32 s{S_TO}, s{S_TO}, 1")
        B(f"s_cbranch_scc1 {g}")
        B(test)
        B(f"s_cbranch_vccnz {s}")
        B(f"s_branch {r}")
        B.label(g)
        B(f"s_mov_b32 s{S_TO}, 0")
        B(f"s_branch {r}")
    OOL.append(ool)
def make_T(A):
    A(f"s_mul_i32 s{S_T}, s6, 0x9e3779b1")
    A(f"s_add_u32 s{S_T}, s{S_T}, 0x7f4a7c15")
    A(f"s_mul_i32 s{S_T+1}, s7, 0x85ebca6d")
    A(f"s_add_u32 s{S_T+1}, s{S_T+1}, 0x165667b1")
    A(f"s_getreg_b32 s{S_TX+1}, hwreg(HW_REG_XCC_ID, 0, 4)")
    if E("FAKEX"): A(f"s_bfe_u32 s{S_TX+1}, s2, 0x10003")
    A(f"s_mov_b32 s{S_TX}, s{S_T}")
    A(f"s_xor_b32 s{S_TX+1}, s{S_TX+1}, s{S_T+1}")
def group_flag_addr(A, va):
    A(f"s_mul_i32 s{S_TMP}, s{S_XCD}, {32*FS}")
    A(f"s_add_u32 s{S_TMP}, s{S_TMP}, {FL1}")
    A(f"v_and_b32 v{va}, 31, v0")
    A(f"v_mul_u32_u24 v{va}, {FS}, v{va}")
    A(f"v_add_u32 v{va}, s{S_TMP}, v{va}")
def lstore(A, VM, tag, ins):
    s = A.newlabel("wt"); r = A.newlabel("wb")
    A(f"s_cmp_lg_u32 s{S_MODE}, 0")
    A(f"s_cbranch_scc1 {s}")
    for i in ins:
        if VM is not None and i.startswith("buffer"): VM.issue(tag, i)
        else: A(i)
    A.label(r)
    def ool(B):
        B.label(s)
        for i in ins: B(i + (" sc1" if i.startswith("buffer") else ""))
        B(f"s_branch {r}")
    OOL.append(ool)
def group_check1(A, vd, va, repoison):
    s = A.newlabel("gs"); r = A.newlabel("gb"); g = A.newlabel("gg"); l2 = A.newlabel("g2"); rt = A.newlabel("gr")
    A(f"v_cmp_ne_u64 vcc, s[{S_TX}:{S_TX+1}], {vr(vd,2)}")
    A(f"s_cbranch_vccnz {s}")
    A.label(r)
    def ool(B):
        B.label(s)
        B(f"v_xor_b32 v{vd+1}, s{S_T+1}, v{vd+1}")
        B(f"v_xor_b32 v{vd}, s{S_T}, v{vd}")
        B(f"v_lshrrev_b32 v{vd+1}, 4, v{vd+1}")
        B(f"v_or_b32 v{vd}, v{vd}, v{vd+1}")
        B(f"v_cmp_ne_u32 vcc, 0, v{vd}")
        B(f"s_cbranch_vccnz {rt}")
        B(f"s_mov_b32 s{S_MODE}, 1")
        for i in repoison: B(i + " sc1")
        B("s_waitcnt vmcnt(0)")
        B(f"s_lshl_b32 s58, s{S_XCD}, 5")
        B(f"s_add_u32 s58, s58, s{S_J}")
        B("s_lshl_b32 s58, s58, 2")
        B(f"s_add_u32 s58, s58, s{S_W}")
        B(f"s_mul_i32 s58, s58, {FS}")
        B(f"s_add_u32 s58, s58, {FL3}")
        flag_store(B, 58, vd)
        B(f"s_mul_i32 s58, s{S_XCD}, {128*FS}")
        B(f"s_add_u32 s58, s58, {FL3}")
        B(f"s_add_u32 s59, s58, {64*FS}")
        B(f"v_mul_u32_u24 v{va}, {FS}, v0")
        B.label(l2)
        B(f"buffer_load_dwordx2 {vr(vd,2)}, v{va}, {SR(S_WS)}, s58 offen sc1")
        B(f"buffer_load_dwordx2 {vr(2,2)}, v{va}, {SR(S_WS)}, s59 offen sc1")
        B("s_waitcnt vmcnt(0)")
        B(f"s_sub_u32 s{S_TO}, s{S_TO}, 1")
        B(f"s_cbranch_scc1 {g}")
        B(f"v_cmp_ne_u64 vcc, s[{S_T}:{S_T+1}], {vr(vd,2)}")
        B(f"s_cbranch_vccnz {l2}")
        B(f"v_cmp_ne_u64 vcc, s[{S_T}:{S_T+1}], {vr(2,2)}")
        B(f"s_cbranch_vccnz {l2}")
        B(f"s_branch {r}")
        B.label(rt)
        B(flag_load(vd, va))
        B("s_waitcnt vmcnt(0)")
        B(f"s_sub_u32 s{S_TO}, s{S_TO}, 1")
        B(f"s_cbranch_scc1 {g}")
        B(f"v_cmp_ne_u64 vcc, s[{S_TX}:{S_TX+1}], {vr(vd,2)}")
        B(f"s_cbranch_vccnz {s}")
        B(f"s_branch {r}")
        B.label(g)
        B(f"s_mov_b32 s{S_TO}, 0")
        B(f"s_branch {r}")
    OOL.append(ool)
SCF = " sc1" if E("SCF", "1") == "1" else ""
class only:
    def __init__(self, A, reg, val): self.A, self.reg, self.val = A, reg, val
    def __enter__(self):
        self.l = self.A.newlabel("only")
        self.A(f"s_cmp_lg_u32 s{self.reg}, {self.val}")
        self.A(f"s_cbranch_scc1 {self.l}")
    def __exit__(self, *a): self.A.label(self.l)

def div12(A, idx, kr, wi):
    A(f"v_mul_u32_u24 v{kr}, 171, v{idx}")
    A(f"v_lshrrev_b32 v{kr}, 11, v{kr}")
    A(f"v_mul_u32_u24 v{wi}, 12, v{kr}")
    A(f"v_sub_u32 v{wi}, v{idx}, v{wi}")
assert all((i * 171) >> 11 == i // 12 for i in range(192))
assert all((i * 171) >> 9 == i // 3 for i in range(48))

def halfsum(A, r, t):
    A(f"v_mov_b32 v{t}, v{r}")
    A("s_nop 1")
    A(f"v_permlane32_swap_b32 v{r}, v{t}")
    A("s_nop 1")
    A(f"v_add_f32 v{r}, v{r}, v{t}")

def ln_final(s1, s2, t, nmean, var):
    return [f"v_mov_b32 v{t}, v{s1}", f"v_mov_b32 v{t+1}, v{s2}", "s_nop 1",
            f"v_permlane32_swap_b32 v{s1}, v{t}", f"v_permlane32_swap_b32 v{s2}, v{t+1}", "s_nop 1",
            f"v_add_f32 v{s1}, v{s1}, v{t}", f"v_add_f32 v{s2}, v{s2}, v{t+1}",
            f"v_mul_f32 v{nmean}, {f32(-1.0/512)}, v{s1}", f"v_mul_f32 v{s2}, {f32(1.0/512)}, v{s2}",
            f"v_fma_f32 v{var}, -v{nmean}, v{nmean}, v{s2}", f"v_max_f32 v{var}, 0, v{var}",
            f"v_add_f32 v{var}, {f32(1e-5)}, v{var}"]

def pk_fma(d, a, b, c, bc=()):
    hi = [0 if i in bc else 1 for i in range(3)]
    s = f"v_pk_fma_f32 {vr(d,2)}, {vr(a,2)}, {vr(b,2)}, {vr(c,2)}"
    if bc: s += f" op_sel_hi:[{hi[0]},{hi[1]},{hi[2]}]"
    return s
def pk_mul(d, a, b, bc=()):
    hi = [0 if i in bc else 1 for i in range(2)]
    s = f"v_pk_mul_f32 {vr(d,2)}, {vr(a,2)}, {vr(b,2)}"
    if bc: s += f" op_sel_hi:[{hi[0]},{hi[1]}]"
    return s
def pk_add(d, a, b):
    return f"v_pk_add_f32 {vr(d,2)}, {vr(a,2)}, {vr(b,2)}"

def swap23(A, d, t):
    A(f"v_and_b32 v{d}, 0x33, v0")
    A(f"v_bfe_u32 v{t}, v0, 2, 1")
    A(f"v_lshl_or_b32 v{d}, v{t}, 3, v{d}")
    A(f"v_bfe_u32 v{t}, v0, 3, 1")
    A(f"v_lshl_or_b32 v{d}, v{t}, 2, v{d}")
    A(f"v_lshlrev_b32 v{d}, 4, v{d}")

POS2 = [3 * BLK + 4096 * n for n in range(20)] + [9 * BLK + 4096 * n for n in range(3)] + \
       [8 * BLK + 4096 * n for n in range(4)] + [4096 * n for n in range(12)] + [3 * BLK + 4096 * n for n in range(4)]
assert len(POS2) == 43 and POS2[19] + 4096 <= 8 * BLK and POS2[22] + 4096 <= SCR and POS2[3] + 4096 <= 4 * BLK
def slot13(b): return (b if b < 9 else b - 9) * BLK

WB, XB = 0, 5 * 12288
sRB, sCB = 48, 49

def prologue(A):
    A.raw(f".globl {KNAME}")
    A.raw(".p2align 8")
    A.raw(f".type {KNAME},@function")
    A.label(KNAME)
    A("s_cmp_ge_u32 s2, 256")
    A("s_cbranch_scc1 L_end")
    stamp(A, "start")
    ptrs = [(72, S_WS, WS_BYTES), (0, S_X, 2048 * 1024), (8, S_WQ, 512 * 3072), (16, S_WO, 512 * 1024),
            (32, S_W1, 512 * 2752), (40, S_W3, 512 * 2752), (48, S_W2, 1376 * 1024), (56, S_OUT, 2048 * 1024), (64, S_DBG, 256)]
    ptrs = ptrs[1:3] + ptrs[0:1] + ptrs[3:]
    for n, (off, d, nb) in enumerate(ptrs):
        A(f"s_load_dwordx2 s[{d}:{d+1}], s[0:1], {off}")
    A("v_lshrrev_b32 v1, 6, v0")
    A("v_and_b32 v0, 63, v0")
    A(f"v_readfirstlane_b32 s{S_W}, v1")
    A(f"s_and_b32 s{S_XCD}, s2, 7")
    A(f"s_lshr_b32 s{S_J}, s2, 3")
    A(f"v_lshlrev_b32 v{vL16}, 4, v0")
    A(f"s_lshr_b32 s{sRB}, s{S_J}, 1")
    A(f"s_and_b32 s{sCB}, s{S_J}, 1")
    A(f"s_lshl1_add_u32 s{sCB}, s{S_XCD}, s{sCB}")
    A(f"s_mov_b32 s{S_MODE}, 0")
    for n, (off, d, nb) in enumerate(ptrs):
        A(f"s_mov_b32 s{d+2}, {hex(nb)}")
        A(f"s_mov_b32 s{d+3}, 0x00020000")
    A(f"s_mov_b32 s{S_TO}, {TOLIM}")
    def fin():
        A("s_waitcnt lgkmcnt(0)")
        A(f"s_load_dwordx2 s[6:7], s[{S_WS}:{S_WS+1}], {NONCE}")
    return fin

def k1_wa(A, vWa, t0, t1):
    A(f"v_lshrrev_b32 v{t0}, 5, v0")
    A(f"v_lshlrev_b32 v{t0}, 3, v{t0}")
    A(f"v_bfe_u32 v{t1}, v0, 2, 2")
    A(f"v_add_u32 v{t0}, v{t0}, v{t1}")
    A(f"v_mul_u32_u24 v{vWa}, 192, v{t0}")
    A(f"v_bfe_u32 v{t1}, v0, 4, 1")
    A(f"v_lshl_add_u32 v{vWa}, v{t1}, 5, v{vWa}")
    A(f"v_and_b32 v{t1}, 3, v0")
    A(f"v_lshl_add_u32 v{vWa}, v{t1}, 3, v{vWa}")

def c_k1(A, fin):
    R = Regs(8)
    vWa = R.alloc(); vOnes = R.alloc(); vt = R.alloc(); vh = R.alloc(); tm = R.alloc(3)
    vXa = R.alloc(4); vXb = R.alloc(4)
    s1 = R.alloc(2, 2); s2 = R.alloc(2, 2)
    acc = [R.alloc(16, 4) for _ in range(3)]
    XF = [R.alloc(4, 4) for _ in range(3)]
    WF = [[R.alloc(4, 4) for _ in range(3)] for _ in range(3)]
    T = R.alloc(4, 2); nm = R.alloc(2, 2); rs = R.alloc(2, 2); rq = R.alloc(2, 2); csv = R.alloc(6, 2)
    CS = R.alloc(48, 4); VS = R.alloc(32, 4); PK = R.alloc(24, 4)
    vA = R.alloc(4); vVo = R.alloc()
    TX = int(E("TX", 15))
    if TX & 4:
        with only(A, S_W, 2):
            A("s_getpc_b64 s[58:59]")
            A.label("L_pc")
            A(f"s_mul_i32 s60, s{S_J}, 12")
            A(f"v_add_u32 v{tm}, s60, v0")
            A(f"v_lshlrev_b32 v{tm}, 7, v{tm}")
            A(f"v_min_u32 v{tm}, L_ool-{KNAME}, v{tm}")
            A(f"s_sub_u32 s58, s58, L_pc-{KNAME}")
            A("s_subb_u32 s59, s59, 0")
            A(f"v_mov_b32 v{PK+1}, s59")
            A(f"v_add_co_u32 v{PK}, vcc, s58, v{tm}")
            A(f"v_addc_co_u32 v{PK+1}, vcc, 0, v{PK+1}, vcc")
            A("s_mov_b64 exec, 0xfff")
            A(f"global_load_dword v{PK+2}, {vr(PK,2)}, off")
            A("s_mov_b64 exec, -1")
    def touch():
        A(f"s_lshl_b32 s62, s{S_XCD}, 7")
        A(f"s_lshl_b32 s63, s{S_J}, 16")
        A("s_add_u32 s63, s63, s62")
        A(f"v_lshlrev_b32 v{VS}, 10, v0")
        A(f"s_mul_i32 s58, s{S_J}, {16*3072}")
        A("s_add_u32 s62, s62, s58")
        A(f"v_and_b32 v{VS+1}, 15, v0")
        A(f"v_mul_u32_u24 v{VS+1}, 3072, v{VS+1}")
        A(f"v_lshrrev_b32 v{VS+2}, 4, v0")
        A(f"v_lshl_add_u32 v{VS+1}, v{VS+2}, 10, v{VS+1}")
        if not E("TXD"): A("s_waitcnt lgkmcnt(0)")
        sk = A.newlabel("sk")
        if TX & 1:
            with only(A, S_W, 0):
                if E("TXS"):
                    A(f"s_cmp_lt_u32 s{S_XCD}, {E('TXS')}")
                    A(f"s_cbranch_scc1 {sk}")
                A(f"buffer_load_dword v{VS+3}, v{VS}, {SR(S_X)}, s63 offen")
        if TX & 2:
            with only(A, S_W, 1):
                if E("TXS"):
                    A(f"s_cmp_lt_u32 s{S_J}, {4*int(E('TXS'))}")
                    A(f"s_cbranch_scc1 {sk}")
                A(f"buffer_load_dword v{VS+3}, v{VS+1}, {SR(S_WQ)}, s62 offen")
        if TX & 8:
            with only(A, S_W, 3):
                A(f"s_lshl_b32 s58, s{S_J}, 16")
                A(f"s_add_u32 s59, s58, {OF}")
                A(f"v_lshlrev_b32 v{VS+2}, 21, v0")
                A("s_mov_b64 exec, 1")
                for n, sd in enumerate((S_WO, S_W1, S_W3, S_W2, S_OUT)):
                    A(f"buffer_load_dword v{VS+4+n}, off, {SR(sd)}, s58")
                A("s_mov_b64 exec, 0x1f")
                A(f"buffer_load_dword v{VS+9}, v{VS+2}, {SR(S_WS)}, s59 offen")
                A("s_mov_b64 exec, -1")
        A.label(sk)
    if TX & 11 and not E("TXD"): touch()
    k1_wa(A, vWa, tm, tm + 1)
    A(f"v_mov_b32 v{vOnes}, 0x3f803f80")
    A(f"v_and_b32 v{vt}, 31, v0")
    A(f"v_lshrrev_b32 v{vh}, 5, v0")
    A(f"v_bfe_u32 v{tm}, v0, 1, 3")
    A(f"s_lshl_b32 s50, s{S_W}, 12")
    A(f"s_add_u32 s50, s50, {XB}")
    A(f"v_lshlrev_b32 v{tm+1}, 7, v{vt}")
    A(f"v_add_u32 v{tm+1}, s50, v{tm+1}")
    for i in range(4):
        A(f"v_or_b32 v{vXa+i}, {2*i}, v{vh}")
        A(f"v_xor_b32 v{vXa+i}, v{vXa+i}, v{tm}")
        A(f"v_lshl_add_u32 v{vXa+i}, v{vXa+i}, 4, v{tm+1}")
        A(f"v_add_u32 v{vXb+i}, 0x10000, v{vXa+i}")
    for r in (s1, s1 + 1, s2, s2 + 1):
        A(f"v_mov_b32 v{r}, 0")
    A(f"s_lshl_b32 s50, s{S_W}, 8")
    A(f"s_add_u32 s50, s50, {ST1}")
    A(f"v_lshl_add_u32 v{vA}, v0, 2, s50")
    A(f"v_lshl_add_u32 v{vA+1}, v{vh}, 4, s50")
    A(f"v_lshlrev_b32 v{vA+2}, 4, v{vh}")
    A(f"v_add_u32 v{vA+2}, {SC1}, v{vA+2}")
    A(f"v_lshlrev_b32 v{vA+3}, 2, v{vt}")
    A(f"v_add_u32 v{vA+3}, {SC1}, v{vA+3}")
    A(f"v_and_b32 v{vVo}, 15, v0")
    A(f"v_lshlrev_b32 v{vVo}, 4, v{vVo}")
    A(f"v_lshl_or_b32 v{vVo}, v{vh}, 8, v{vVo}")
    A(f"v_bfe_u32 v{tm}, v0, 4, 1")
    A(f"v_lshl_or_b32 v{vVo}, v{tm}, 16, v{vVo}")
    sRU, sB = 50, 51
    for r in range(4): A(f"v_mov_b32 v{CS+r}, -1")
    group_flag_addr(A, 6)
    A(f"s_lshl_b32 s{sRU}, s{sRB}, 2")
    A(f"s_add_u32 s{sRU}, s{sRU}, s{S_W}")
    A(f"s_lshl_b32 s60, s{sCB}, 17")
    A(f"s_lshl_b32 s61, s{sRU}, 10")
    A("s_add_u32 s60, s60, s61")
    for i, o in enumerate((0, 0x10000, 0x200000, 0x210000, 0x400000)):
        A(f"s_add_u32 s{sB+i}, s60, {QKV + o}")
    def qkv_store(u, g, r):
        if u == 2: return f"buffer_store_dwordx4 {vr(r,4)}, v{vVo}, {SR(S_WS)}, s{sB+4} offen offset:{512*g}"
        return f"buffer_store_dwordx4 {vr(r,4)}, v{vL16}, {SR(S_WS)}, s{sB+2*u+g} offen"
    fin()
    if TX & 11 and E("TXD"): touch()
    def poison1():
        for u in range(0 if E("NOP1") else 3):
            for g in range(2): A(qkv_store(u, g, CS))
    PZ = int(E("PZ", 0))
    if BI: A("s_barrier")
    if PZ == 0: poison1()
    A(f"s_lshl_b32 s57, s{S_XCD}, 5")
    A(f"s_add_u32 s57, s57, s{S_J}")
    A(f"s_mul_i32 s57, s57, {FS}")
    A(f"s_add_u32 s57, s57, {FL1}")
    A("s_waitcnt lgkmcnt(0)")
    make_T(A)
    def reads(s):
        c, sub, b = s >> 2, s & 3, s % 3
        slot = c % 5
        out = []
        if slot < 4: out.append(f"ds_read_b128 {vr(XF[b],4)}, v{vXa+sub} offset:{slot*16384}")
        else: out.append(f"ds_read_b128 {vr(XF[b],4)}, v{vXb+sub}")
        for u in range(3):
            for sec in range(2):
                off = WB + slot * 12288 + (16 * sub + 4 * sec) * 192 + 64 * u
                out.append(f"ds_read_b64_tr_b16 {vr(WF[b][u]+2*sec,2)}, v{vWa} offset:{off}")
        return out
    A("s_barrier")
    stamp(A, "b0")
    for l in reads(0) + reads(1): A(l)
    if PZ == 1: poison1()
    PB, PC = int(E("PB", 3)), int(E("PC", 6))
    for pat in ((0, 0, 1),):
        for s in range(32):
            b = s % 3
            nx = reads(s + 2) if s + 2 < 32 else []
            if nx and (s + 2) % 4 == 0:
                stamp(A, f"k1a{(s+2)//4}")
                if (s + 2) // 4 == PB: A("s_waitcnt vmcnt(0)")
                A("s_barrier")
                stamp(A, f"k1b{(s+2)//4}")
                if (s + 2) // 4 == PB:
                    with only(A, S_W, 0): flag_store(A, 57, 2, S_TX)
                if (s + 2) // 4 == PC: A(flag_load(4, 6, SCF))
                if (s + 2) // 4 == PZ - 1: poison1()
            A(f"s_waitcnt lgkmcnt({7 if s < 31 else 0})")
            dots = []
            for r in range(4):
                dots.append(f"v_dot2_f32_bf16 v{s1+(r&1)}, v{XF[b]+r}, v{vOnes}, v{s1+(r&1)}")
                dots.append(f"v_dot2_f32_bf16 v{s2+(r&1)}, v{XF[b]+r}, v{XF[b]+r}, v{s2+(r&1)}")
            c0 = 0 if s == 0 else None
            for u in range(3):
                A(mfma(acc[u], XF[b], WF[b][u], c0) if pat[u] else mfma(acc[u], WF[b][u], XF[b], c0))
                for l in (nx[0:4], nx[4:7], [] if E("NODOT") else dots)[u]: A(l)
        stamp(A, "k1end")
        A("s_nop 2")
        A(f"v_add_f32 v{s1}, v{s1}, v{s1+1}")
        A(f"v_add_f32 v{s2}, v{s2}, v{s2+1}")
        for l in ln_final(s1, s2, T, nm, rs): A(l)
        A(f"v_rsq_f32 v{rs}, v{rs}")
        if any(pat):
            A("v_cmp_gt_u32 vcc, 32, v0")
            A("s_nop 1")
            A(f"v_cndmask_b32 v{T}, v{nm}, v{rs}, vcc")
            A(f"ds_write_b32 v{vA}, v{T}")
            A("s_waitcnt lgkmcnt(0)")
            for g in range(4):
                A(f"ds_read_b128 {vr(VS+4*g,4)}, v{vA+1} offset:{32*g}")
                A(f"ds_read_b128 {vr(VS+16+4*g,4)}, v{vA+1} offset:{128+32*g}")
            A("s_waitcnt lgkmcnt(0)")
        A("s_waitcnt vmcnt(0)")
        group_check1(A, 4, 6, [qkv_store(u, g, CS) for u in range(3) for g in range(2)])
        stamp(A, "acs")
        A("s_barrier")
        stamp(A, "bcs")
        LG = Q("lgkmcnt", A)
        order = (1, 2, 0)
        for u in order:
            if pat[u]:
                LG.issue(u, f"ds_read_b32 v{csv+2*u}, v{vA+3} offset:{128*u}")
            else:
                for g in range(4):
                    LG.issue(u, f"ds_read_b128 {vr(CS+16*u+4*g,4)}, v{vA+2} offset:{128*u+32*g}")
        A(f"v_mul_f32 v{rq}, {f32(0.25*LOG2E)}, v{rs}")
        for u in order:
            a = acc[u]
            LG.wait([u])
            for r in range(0, 16, 2):
                A(pk_fma(a + r, VS + 16 + r, csv + 2 * u, a + r, bc=(1,)) if pat[u] else pk_fma(a + r, CS + 16 * u + r, nm, a + r, bc=(1,)))
            for r in range(0, 16, 2):
                A(pk_mul(a + r, a + r, VS + r) if pat[u] else pk_mul(a + r, a + r, rs if u else rq, bc=(1,)))
            for r in range(8):
                A(f"v_cvt_pk_bf16_f32 v{PK+8*u+r}, v{a+2*r}, v{a+2*r+1}")
            for g in range(2): A(clamp(PK + 8 * u + 4 * g + 3))
            stamp(A, f"st{u}")
            lstore(A, None, None, [qkv_store(u, g, PK + 8 * u + 4 * g) for g in range(2)])
            if u == 2 and BKV: A("s_barrier")
    stamp(A, "k1pub")

def attn_ids(A, sHead, sQB):
    if E("XR", "1") == "1":
        A(f"s_and_b32 s{sHead}, s{S_J}, 1")
        A(f"s_lshl1_add_u32 s{sHead}, s{S_XCD}, s{sHead}")
        A(f"s_bfe_u32 s{sQB}, s{S_J}, 0x10001")
        A(f"s_lshl1_add_u32 s{sHead}, s{sHead}, s{sQB}")
    else:
        A(f"s_lshl_b32 s{sHead}, s{S_XCD}, 2")
        A(f"s_and_b32 s{sQB}, s{S_J}, 3")
        A(f"s_add_u32 s{sHead}, s{sHead}, s{sQB}")
    A(f"s_lshr_b32 s{sQB}, s{S_J}, 2")

def g64_ids(A, sRU, sKH, sCU, t, S_W=S_W):
    A(f"s_lshl_b32 s{sRU}, s{S_XCD}, 2")
    A(f"s_and_b32 s{t}, s{S_J}, 3")
    A(f"s_add_u32 s{sRU}, s{sRU}, s{t}")
    A(f"s_lshl_b32 s{sRU}, s{sRU}, 1")
    A(f"s_and_b32 s{t}, s{S_W}, 1")
    A(f"s_add_u32 s{sRU}, s{sRU}, s{t}")
    A(f"s_lshr_b32 s{sKH}, s{S_W}, 1")
    A(f"s_lshr_b32 s{sCU}, s{S_J}, 2")
    A(f"s_lshl_b32 s{sCU}, s{sCU}, 1")
    A(f"s_add_u32 s{sCU}, s{sCU}, s{sKH}")
sRU5, sKH5, sCU5 = 60, 61, 62

def c_attn(A):
    sHead, sQB, sRU, sSlot, sTrip = 48, 49, 50, 51, 52
    R = Regs(16)
    vIdx = R.alloc(); vVl = R.alloc(); vK = R.alloc(2); vV = R.alloc(2); T = R.alloc(2, 2)
    Qa = R.alloc(4, 4); Qb = R.alloc(4, 4)
    Na = R.alloc(16, 4); Nb = R.alloc(16, 4)
    Oa = R.alloc(16, 4); Ob = R.alloc(16, 4)
    Sa = R.alloc(16, 4); Sb = R.alloc(16, 4)
    K = [R.alloc(4, 4), R.alloc(4, 4)]
    V = [R.alloc(8, 4), R.alloc(8, 4)]
    attn_ids(A, sHead, sQB)
    A(f"s_lshl_b32 s{sRU}, s{sQB}, 3")
    A(f"s_lshl_b32 s53, s{S_W}, 1")
    A(f"s_add_u32 s{sRU}, s{sRU}, s53")
    A(f"s_lshl_b32 s54, s{sHead}, 16")
    A(f"s_lshl_b32 s55, s{sRU}, 10")
    A("s_add_u32 s54, s54, s55")
    A(f"s_add_u32 s54, s54, {QKV}")
    QE = int(E("QE", 1))
    VM = Q("vmcnt", A)
    LQ = Ld(A, VM, 54, None, "q")
    def qload():
        LQ.load("q", 4, Qa, vL16, 0)
        LQ.load("q", 4, Qb, vL16, 1024)
        stamp(A, "qiss")
    if QE: qload()
    g64_ids(A, sRU5, sKH5, sCU5, 55)
    A(f"v_and_b32 v{T+1}, 31, v0")
    A(f"v_lshlrev_b32 v5, 10, v{T+1}")
    A(f"v_lshrrev_b32 v{T+1}, 5, v0")
    A(f"v_lshl_add_u32 v5, v{T+1}, 3, v5")
    A(f"s_lshl_b32 s55, s{sRU5}, 15")
    A(f"s_lshl_b32 s56, s{sCU5}, 6")
    A("s_add_u32 s55, s55, s56")
    A(f"v_mov_b32 v{vIdx}, 0xdddddddd")
    A(f"v_and_b32 v{vVl}, 15, v0")
    A(f"v_lshlrev_b32 v{vVl}, 4, v{vVl}")
    A(f"v_lshl_add_u32 v{vVl}, v{T+1}, 8, v{vVl}")
    A(f"v_and_b32 v{T+1}, 16, v0")
    A(f"v_cmp_eq_u32 vcc, 0, v{T+1}")
    A(f"v_mov_b32 v{T+1}, 512")
    for r in range(16):
        A(f"v_mov_b32 v{Oa+r}, 0")
        A(f"v_mov_b32 v{Ob+r}, 0")
        if r >= 8: A(f"v_mov_b32 v{Sb+r}, 0")
        if r < 4: A(f"v_mov_b32 v{V[1]+4+r}, 0")
    A(f"v_cndmask_b32 v{vVl}, v{T+1}, v{vVl}, vcc")
    for q in range(2):
        A(f"v_add_u32 v{vV+q}, {RING+q*SEG}, v{vVl}")
    A(f"s_mov_b32 s{sSlot}, {RING+SEG}")
    A(f"s_mov_b32 s{sTrip}, 0")
    def resload():
        for g in range(4):
            A(f"buffer_load_dwordx2 {vr(RES+2*g,2)}, v5, {SR(S_X)}, s55 offen offset:{16*g}")
    for q in range(2):
        A(f"v_add_u32 v{vK+q}, {RING+q*SEG}, v{vL16}")
    RL = int(E("RL", 2))
    if not QE: qload()
    VM.drain()
    stamp(A, "qland")
    sent_check(A, *group_check(["q"], [LQ]))
    if RL == 1: resload()
    if E("T0") == "21":
        A("s_lshl_b32 s57, s2, 2")
        A(f"s_add_u32 s57, s57, s{S_W}")
        A("s_mul_i32 s57, s57, 1408")
        A(f"v_lshlrev_b32 v{T}, 6, v0")
        A("s_mov_b64 exec, 0x3fffff")
        for n, sd in enumerate((S_WO, S_W1, S_W3, S_W2)):
            A(f"buffer_load_dword v{4+n}, v{T}, {SR(sd)}, s57 offen")
        A("s_mov_b64 exec, -1")
    stamp(A, "qflag")
    A("s_barrier")
    stamp(A, "bai")
    A(f"ds_read_b128 {vr(K[0],4)}, v{vK} offset:1056")
    A(f"ds_read_b128 {vr(V[0],4)}, v{vV}")
    A(f"ds_read_b128 {vr(V[0]+4,4)}, v{vV} offset:528")
    A(f"ds_read_b128 {vr(K[1],4)}, v{vK} offset:{TILE+1056}")
    A("s_waitcnt lgkmcnt(3)")
    A(mfma(Na, K[0], Qa, 0))
    A(mfma(Nb, K[0], Qb, 0))
    if RL == 2: resload()
    A("s_nop 7")
    A("s_nop 2")
    def rowmax(N):
        A(f"v_max3_f32 v{T}, v{N}, v{N+1}, v{N+2}")
        A(f"v_max3_f32 v{T+1}, v{N+3}, v{N+4}, v{N+5}")
        for r in range(6, 14, 4):
            A(f"v_max3_f32 v{T}, v{N+r}, v{N+r+1}, v{T}")
            A(f"v_max3_f32 v{T+1}, v{N+r+2}, v{N+r+3}, v{T+1}")
        A(f"v_max3_f32 v{T}, v{N+14}, v{N+15}, v{T}")
        A(f"v_max_f32 v{T}, v{T}, v{T+1}")
        A(f"v_mov_b32 v{T+1}, v{T}")
        A("s_nop 1")
        A(f"v_permlane32_swap_b32 v{T}, v{T+1}")
        A("s_nop 1")
        A(f"v_max_f32 v{T}, v{T}, v{T+1}")
        A(f"v_sub_f32 v{T}, 0, v{T}")
        for r in range(16):
            A(f"v_mov_b32 v{N+r}, v{T}")
    rowmax(Na)
    A("s_nop 1")
    A(mfma(Sa, K[0], Qa, Na))
    rowmax(Nb)
    def ex(S, lo, hi):
        for r in range(lo, hi): A(f"v_exp_f32 v{S+r}, v{S+r}")
    A.raw(".p2align 6")
    A.label("L_attn")
    p1, p2, p3 = 2, 7, 12
    for q in range(2):
        for t in range(8):
            c = t & 1; n = c ^ 1
            va, vo = (vV + q, TILE * (t + 1)) if t + 1 < 8 else (vV + (q ^ 1), 0)
            ka, ko = (vK + q, TILE * (t + 2)) if t + 2 < 8 else (vK + (q ^ 1), TILE * (t + 2 - 8))
            ex(Sa, 0, p1)
            A(smfmac(Ob, V[n] + 4, Sb + 8, vIdx))
            A(f"ds_read_b128 {vr(V[n],4)}, v{va} offset:{vo}")
            ex(Sa, p1, p2)
            A(mfma(Sb, K[c], Qb, Nb))
            A(f"ds_read_b128 {vr(V[n]+4,4)}, v{va} offset:{vo+528}")
            ex(Sa, p2, p3)
            A("s_waitcnt lgkmcnt(2)")
            A(smfmac(Oa, V[c], Sa, vIdx))
            if t == 6: A("s_barrier")
            A(f"ds_read_b128 {vr(K[c],4)}, v{ka} offset:{ko+1056}")
            ex(Sa, p3, 16)
            ex(Sb, 0, p1)
            A(smfmac(Oa, V[c] + 4, Sa + 8, vIdx))
            if t == 7:
                A(f"s_add_u32 s{sSlot}, s{sSlot}, {SEG}")
                A(f"s_cmp_eq_u32 s{sSlot}, {RING+3*SEG}")
                A(f"s_cselect_b32 s{sSlot}, {RING}, s{sSlot}")
            ex(Sb, p1, p2)
            A(mfma(Sa, K[n], Qa, Na))
            if t == 7:
                A(f"v_add_u32 v{vK+q}, s{sSlot}, v{vL16}")
                A(f"v_add_u32 v{vV+q}, s{sSlot}, v{vVl}")
            ex(Sb, p2, p3)
            A(smfmac(Ob, V[c], Sb, vIdx))
            if t == 7 and q == 1:
                A(f"s_add_u32 s{sTrip}, s{sTrip}, 1")
                A(f"s_cmp_lt_u32 s{sTrip}, 4")
            ex(Sb, p3, 16)
    A("s_cbranch_scc1 L_attn")
    A("s_nop 1")
    A(smfmac(Ob, V[1] + 4, Sb + 8, vIdx))
    A("s_waitcnt lgkmcnt(0)")
    A("s_barrier")
    stamp(A, "be")
    A(f"s_lshl_b32 s53, s{sRU}, 15")
    A(f"s_lshl_b32 s54, s{sHead}, 10")
    A("s_add_u32 s53, s53, s54")
    A(f"s_add_u32 s53, s53, {OF}")
    A("s_add_u32 s55, s53, 0x8000")
    A(f"v_mov_b32 v{T}, {f32(2.0**30)}")
    for nm_, O, Qx, so in (("a", Oa, Qa, 53), ("b", Ob, Qb, 55)):
        A(f"v_cmp_nge_f32 vcc, v{T}, v{O+8}")
        A(f"s_cbranch_vccnz L_fb_{nm_}")
        A.label(f"L_fz_{nm_}")
        A(f"v_rcp_f32 v{vK}, v{O+8}")
        A("s_nop 0")
        for r in range(0, 8, 2):
            A(pk_mul(O + r, O + r, vK, bc=(1,)))
        for r in range(4):
            A(f"v_cvt_pk_bf16_f32 v{O+12+r}, v{O+2*r}, v{O+2*r+1}")
        A(clamp(O + 15))
        A(f"buffer_store_dwordx4 {vr(O+12,4)}, v{vL16}, {SR(S_WS)}, s{so} offen sc1")
        def ool(B, nm_=nm_, O=O, Qx=Qx):
            B.label(f"L_fb_{nm_}")
            swap23(B, vK, vK + 1)
            B(f"s_lshl_b32 s57, s{sHead}, 16")
            B(f"s_add_u32 s57, s57, {QKV + 0x200000}")
            B("s_mov_b32 s58, s57")
            B(f"v_mov_b32 v{Nb}, 0xff800000")
            B(f"s_mov_b32 s{sTrip}, 0")
            B.label(f"L_fb1_{nm_}")
            B(f"buffer_load_dwordx4 {vr(K[0],4)}, v{vK}, {SR(S_WS)}, s58 offen sc1")
            B("s_waitcnt vmcnt(0)")
            B(mfma(Sa, K[0], Qx, 0))
            B("s_nop 7")
            B("s_nop 7")
            for r in range(0, 16, 2):
                B(f"v_max3_f32 v{Nb}, v{Sa+r}, v{Sa+r+1}, v{Nb}")
            B("s_add_u32 s58, s58, 1024")
            B(f"s_add_u32 s{sTrip}, s{sTrip}, 1")
            B(f"s_cmp_lt_u32 s{sTrip}, 64")
            B(f"s_cbranch_scc1 L_fb1_{nm_}")
            B(f"v_mov_b32 v{Nb+1}, v{Nb}")
            B("s_nop 1")
            B(f"v_permlane32_swap_b32 v{Nb}, v{Nb+1}")
            B("s_nop 1")
            B(f"v_max_f32 v{Nb}, v{Nb}, v{Nb+1}")
            B(f"v_sub_f32 v{Nb}, 0, v{Nb}")
            for r in range(16):
                B(f"v_mov_b32 v{Na+r}, v{Nb}")
                B(f"v_mov_b32 v{O+r}, 0")
            for r in range(8):
                B(f"v_mov_b32 v{V[0]+r}, 0x3f803f80")
            B("s_mov_b32 s58, s57")
            B(f"s_mov_b32 s{sTrip}, 0")
            B("s_mov_b32 s64, 0x0000ffff")
            B("s_mov_b32 s65, 0x0000ffff")
            B.label(f"L_fb2_{nm_}")
            B("s_add_u32 s59, s58, 0x200000")
            B(f"buffer_load_dwordx4 {vr(K[0],4)}, v{vK}, {SR(S_WS)}, s58 offen sc1")
            B("s_mov_b64 exec, s[64:65]")
            B(f"buffer_load_dwordx4 {vr(V[0],4)}, v{vVl}, {SR(S_WS)}, s59 offen sc1")
            B(f"buffer_load_dwordx4 {vr(V[0]+4,4)}, v{vVl}, {SR(S_WS)}, s59 offen offset:512 sc1")
            B("s_mov_b64 exec, -1")
            B("s_waitcnt vmcnt(0)")
            B(mfma(Sa, K[0], Qx, Na))
            B("s_nop 7")
            B("s_nop 7")
            for r in range(16): B(f"v_exp_f32 v{Sa+r}, v{Sa+r}")
            B("s_nop 1")
            B(smfmac(O, V[0], Sa, vIdx))
            B(smfmac(O, V[0] + 4, Sa + 8, vIdx))
            B("s_nop 7")
            B("s_add_u32 s58, s58, 1024")
            B(f"s_add_u32 s{sTrip}, s{sTrip}, 1")
            B(f"s_cmp_lt_u32 s{sTrip}, 64")
            B(f"s_cbranch_scc1 L_fb2_{nm_}")
            B("s_nop 7")
            B("s_nop 7")
            B(f"s_branch L_fz_{nm_}")
        OOL.append(ool)
    stamp(A, "opub")

def g64_addr(A, keep, send, t, base):
    A(f"v_lshrrev_b32 v{t}, 5, v0")
    A(f"v_lshlrev_b32 v{t}, 2, v{t}")
    A(f"v_bfe_u32 v{t+1}, v0, 2, 2")
    A(f"v_add_u32 v{t}, v{t}, v{t+1}")
    A(f"v_lshlrev_b32 v{t}, 7, v{t}")
    A(f"v_bfe_u32 v{t+1}, v0, 4, 1")
    A(f"v_lshl_add_u32 v{t}, v{t+1}, 5, v{t}")
    A(f"v_and_b32 v{t+1}, 3, v0")
    A(f"v_lshl_add_u32 v{t}, v{t+1}, 3, v{t}")
    A(f"v_bfe_u32 v{t+1}, v0, 3, 1")
    A(f"v_xor_b32 v{t+1}, s{sKH5}, v{t+1}")
    A(f"v_lshl_add_u32 v{t}, v{t+1}, 6, v{t}")
    A(f"v_xor_b32 v{t+1}, 64, v{t}")
    A(f"s_lshl_b32 s59, s{sKH5}, 11")
    if base: A(f"s_add_u32 s59, s59, {base}")
    A(f"v_add_u32 v{keep}, s59, v{t}")
    A(f"v_add_u32 v{send}, s59, v{t+1}")

def exchange(A, acc, UN, T, xch):
    A(f"s_lshl_b32 s59, s{S_W}, 12")
    A(f"s_add_u32 s58, s59, {xch}")
    A(f"v_add_u32 v{T}, s58, v{vL16}")
    A("s_xor_b32 s59, s59, 0x2000")
    A(f"s_add_u32 s59, s59, {xch}")
    A(f"v_add_u32 v{T+1}, s59, v{vL16}")
    for r in range(4):
        A(f"v_lshlrev_b32 v{UN+2*r}, 16, v{RES+r}")
        A(f"v_and_b32 v{UN+2*r+1}, 0xffff0000, v{RES+r}")
    for q in range(4):
        A(f"ds_write_b128 v{T}, {vr(acc[1]+4*q,4)} offset:{1024*q}")
    for r in range(4, 8):
        A(f"v_lshlrev_b32 v{UN+2*r}, 16, v{RES+r}")
        A(f"v_and_b32 v{UN+2*r+1}, 0xffff0000, v{RES+r}")
    A("s_waitcnt lgkmcnt(0)")
    A("s_barrier")
    for q in range(4):
        A(f"ds_read_b128 {vr(acc[1]+4*q,4)}, v{T+1} offset:{1024*q}")
    for r in range(0, 16, 2):
        A(pk_add(acc[0] + r, acc[0] + r, UN + r))

def c_k3(A):
    R = Regs(16)
    T = R.alloc(4, 2); vA = R.alloc(2); vSo = R.alloc()
    acc = [R.alloc(16, 4), R.alloc(16, 4)]
    WF = [[R.alloc(4, 4) for _ in range(2)] for _ in range(3)]
    R.n = 160
    AF = [R.alloc(4, 4) for _ in range(16)]
    A(f"s_lshl_b32 s48, s{sRU5}, 15")
    A(f"s_lshl_b32 s49, s{sKH5}, 10")
    A("s_add_u32 s48, s48, s49")
    A(f"s_add_u32 s48, s48, {OF}")
    g64_addr(A, vA, vA + 1, T, WOB)
    def reads(n):
        out = []
        for k in range(2):
            for sec in range(2):
                out.append(f"ds_read_b64_tr_b16 {vr(WF[n%3][k]+2*sec,2)}, v{vA+k} offset:{n*4096+sec*1024}")
        return out
    for l in reads(0) + reads(1): A(l)
    NS = 16
    VM = Q("vmcnt", A)
    LO = Ld(A, VM, 48, 49, "o")
    for n in range(NS): LO.load(n, 4, AF[n], vL16, 2048 * n)
    stamp(A, "oiss")
    A(f"s_lshl_b32 s50, s{sRU5}, 15")
    A(f"s_lshl_b32 s51, s{sCU5}, 11")
    A("s_add_u32 s50, s50, s51")
    A(f"s_add_u32 s50, s50, {HF}")
    A(f"s_lshl_b32 s51, s{sRU5}, 4")
    A(f"s_add_u32 s51, s51, s{sCU5}")
    A("s_lshl_b32 s51, s51, 8")
    A(f"s_add_u32 s51, s51, {ST2}")
    A(f"v_and_b32 v{vSo}, 31, v0")
    A(f"v_lshlrev_b32 v{vSo}, 3, v{vSo}")
    G3 = [int(x) for x in E("G3", "0,2,4,8,12,16").split(",")]
    for n in range(NS):
        nx = reads(n + 2) if n + 2 < NS else []
        if n in G3:
            g = list(range(n, G3[G3.index(n) + 1]))
            VM.wait(g)
            sent_check(A, *group_check(g, [LO]))
            if n == 0: stamp(A, "oflag")
        A(f"s_waitcnt lgkmcnt({4 if n < NS-1 else 0})")
        c0 = 0 if n == 0 else None
        A(mfma(acc[0], WF[n % 3][0], AF[n], c0))
        for l in nx[0:2]: A(l)
        A(mfma(acc[1], WF[n % 3][1], AF[n], c0))
        for l in nx[2:4]: A(l)
    stamp(A, "a30")
    A("s_barrier")
    stamp(A, "b30")
    UN = AF[0]
    exchange(A, acc, UN, T, XCH3)
    a = acc[0]
    for q in range(4):
        A(f"s_waitcnt lgkmcnt({3-q})")
        A(pk_add(a + 4 * q, a + 4 * q, acc[1] + 4 * q))
        A(pk_add(a + 4 * q + 2, a + 4 * q + 2, acc[1] + 4 * q + 2))
    for r in range(8):
        A(f"v_cvt_pk_bf16_f32 v{RES+r}, v{a+2*r}, v{a+2*r+1}")
    for g in range(2): A(clamp(RES + 4 * g + 3))
    lstore(A, None, None, [f"buffer_store_dwordx4 {vr(RES+4*g,4)}, v{vL16}, {SR(S_WS)}, s50 offen offset:{1024*g}" for g in range(2)])
    sq = acc[1]
    for r in range(0, 16, 2):
        A(pk_mul(sq + r, a + r, a + r))
    for w in (8, 4, 2):
        for r in range(0, w, 2):
            A(pk_add(a + r, a + r, a + w + r))
            A(pk_add(sq + r, sq + r, sq + w + r))
    A(f"v_add_f32 v{T}, v{a}, v{a+1}")
    A(f"v_add_f32 v{T+1}, v{sq}, v{sq+1}")
    A(f"v_mov_b32 v{T+2}, v{T}")
    A(f"v_mov_b32 v{T+3}, v{T+1}")
    A("s_nop 1")
    A(f"v_permlane32_swap_b32 v{T}, v{T+2}")
    A(f"v_permlane32_swap_b32 v{T+1}, v{T+3}")
    A("s_nop 1")
    A(pk_add(T, T, T + 2))
    A(clamp(T + 1))
    lstore(A, None, None, [f"buffer_store_dwordx2 {vr(T,2)}, v{vSo}, {SR(S_WS)}, s51 offen"])
    stamp(A, "hpub")

def k4_ids(A, sRU, sC, sw):
    A(f"s_and_b32 s58, s{S_J}, 1")
    A(f"s_lshl1_add_u32 s{sRU}, s{S_XCD}, s58")
    A(f"s_lshl2_add_u32 s{sRU}, s{sRU}, s{sw}")
    A(f"s_lshr_b32 s{sC}, s{S_J}, 1")
def g_offsets(A, sRU, sC, sGo, t=58):
    A(f"s_mul_i32 s{t}, s{sRU}, {86*1024}")
    A(f"s_lshl_b32 s{t+1}, s{sC}, 11")
    A(f"s_add_u32 s{t}, s{t}, s{t+1}")
    for p in range(3): A(f"s_add_u32 s{sGo+p}, s{t}, {GF + 16*2048*p}")
    A(f"s_lshl_b32 s{t}, s{sC}, 6")
    A(f"s_add_u32 s{t}, s{t}, s{sRU}")
    A(f"s_lshl_b32 s{t}, s{t}, 11")
    A(f"s_add_u32 s{t}, s{t}, {(DUMMY - 11*64*2048) & 0xffffffff}")
    A(f"s_cmp_gt_u32 s{sC}, 10")
    A(f"s_cselect_b32 s{sGo+2}, s{t}, s{sGo+2}")

def c_k45(A):
    H = [16 + 4 * i for i in range(32)]
    acc = [[144, 160], [176, 192]]
    WF = [[208 + 8 * b + 4 * u for u in range(2)] for b in range(3)]
    CS, EE = 232, 240
    nm, var, rl = 248, 250, 252
    vWa = [249, 251, 253]; vCS, vSt = 254, 255
    sRU, sC, sAo, sSo, sGo, sCur, sG5 = 48, 49, 50, 51, 53, 56, 57
    k4_ids(A, sRU, sC, S_W)
    A(f"s_lshl_b32 s{sAo}, s{sRU}, 15")
    A(f"s_add_u32 s{sAo}, s{sAo}, {HF}")
    A(f"s_lshl_b32 s{sSo}, s{sRU}, 12")
    A(f"s_add_u32 s{sSo}, s{sSo}, {ST2}")
    VM = Q("vmcnt", A); LG = Q("lgkmcnt", A)
    LH = Ld(A, VM, sAo, sCur, "h"); LS = Ld(A, VM, sSo, None, "h"); LGn = Ld(A, VM, sG5, sCur, "g")
    SD = acc[1][0]
    HP, HE = int(E("HP", 12)), int(E("HE", 1))
    def hload(s): LH.load(("H", s), 4, H[s], vL16, 1024 * s)
    def hfirst():
        for s in range(HP): hload(s)
        stamp(A, "hiss")
    if HE: hfirst()
    g_offsets(A, sRU, sC, sGo)
    A(f"s_mul_i32 s{sG5}, s{sRU5}, {86*1024}")
    A(f"s_lshl_b32 s58, s{sKH5}, 10")
    A(f"s_add_u32 s{sG5}, s{sG5}, s58")
    A(f"s_add_u32 s{sG5}, s{sG5}, {GF}")
    t = CS
    A(f"v_lshrrev_b32 v{t}, 5, v0")
    A(f"v_lshlrev_b32 v{vCS}, 4, v{t}")
    A(f"v_add_u32 v{vCS}, {SC4}, v{vCS}")
    A(f"v_lshlrev_b32 v{vSt}, 11, v{t}")
    A(f"v_and_b32 v{t+1}, 31, v0")
    A(f"v_lshl_add_u32 v{vSt}, v{t+1}, 3, v{vSt}")
    A(f"v_lshlrev_b32 v{t}, 2, v{t}")
    A(f"v_bfe_u32 v{t+1}, v0, 2, 2")
    A(f"v_add_u32 v{t}, v{t}, v{t+1}")
    A(f"v_lshlrev_b32 v{t}, 6, v{t}")
    A(f"v_bfe_u32 v{t+1}, v0, 4, 1")
    A(f"v_mul_u32_u24 v{t+1}, 8224, v{t+1}")
    A(f"v_add_u32 v{t}, v{t}, v{t+1}")
    A(f"v_and_b32 v{t+1}, 3, v0")
    A(f"v_lshl_add_u32 v{vWa[0]}, v{t+1}, 3, v{t}")
    A(f"v_add_u32 v{vWa[1]}, 0x10000, v{vWa[0]}")
    A(f"v_add_u32 v{vWa[2]}, 0x20000, v{vWa[0]}")
    g64_addr(A, 6, 7, 208, 0)
    if not HE: hfirst()
    for i in range(8): LS.load("st", 2, SD + 2 * i, vSt, 256 * i)
    stamp(A, "a40")
    A("s_barrier")
    stamp(A, "b40")
    def reads(S):
        p, s = divmod(S, 32)
        out = []
        for u in range(2):
            for sec in range(2):
                o = slot13(4 * p + (s >> 3)) + (s & 7) * 1024 + sec * 512 + 32 * u
                out.append((("W", S), f"ds_read_b64_tr_b16 {vr(WF[S%3][u]+2*sec,2)}, v{vWa[o>>16]} offset:{o&0xffff}"))
        return out
    for tg, l in reads(0) + reads(1): LG.issue(tg, l)

    def V(s, c=4): return (c, lambda: None if E("NOFILL") else A(s))
    def stats_items():
        it = [(0, lambda: VM.wait(["st"]))]
        red = sent_reduce([SD + 2 * i + 1 for i in range(8)], vP + 1)
        for l in red[:-1]: it.append(V(l))
        it.append((8, lambda: (A(red[-1]), sent_branch(A, *group_check(["st"], [LH, LS]), t=vP + 1))))
        for w in (8, 4, 2):
            for r in range(w): it.append(V(f"v_add_f32 v{SD+r}, v{SD+r}, v{SD+w+r}"))
        for l in ln_final(SD, SD + 1, SD + 2, nm, var): it.append(V(l))
        it.append(V(f"v_rsq_f32 v{rl}, v{var}", 8))
        it.append(V("s_nop 0"))
        it.append(V(f"v_mul_f32 v{rl}, {f32(-LOG2E)}, v{rl}"))
        return it
    def cs_reads(U, tag):
        for g in range(2): LG.issue(tag, f"ds_read_b128 {vr(CS+4*g,4)}, v{vCS} offset:{128*U+32*g}")
        for g in range(2): LG.issue(tag, f"ds_read_b128 {vr(EE+4*g,4)}, v{vCS} offset:{128*U+64+32*g}")
    def epi_items(p, u):
        a = acc[p & 1][u]; U = 2 * p + u
        it = [(16, lambda: cs_reads(U, ("cs", U))), (int(E("CSW", 24)), lambda: None), (0, lambda: LG.wait([("cs", U)]))]
        for r in range(8): it.append(V(f"v_fma_f32 v{a+r}, v{CS+r}, v{nm}, v{a+r}"))
        for r in range(8): it.append(V(f"v_fma_f32 v{a+8+r}, v{EE+r}, v{nm}, v{a+8+r}"))
        for r in range(8):
            it.append(V(f"v_mul_f32 v{EE+r}, v{a+r}, v{rl}"))
        for r in range(8):
            it.append(V(f"v_exp_f32 v{EE+r}, v{EE+r}", 8))
            it.append(V(f"v_mul_f32 v{a+r}, v{a+r}, v{a+8+r}"))
        for r in range(8): it.append(V(f"v_fma_f32 v{EE+r}, v{EE+r}, v{var}, v{var}"))
        for r in range(8):
            it.append(V(f"v_rcp_f32 v{EE+r}, v{EE+r}", 8))
            if r >= 2: it.append(V(f"v_mul_f32 v{a+r-2}, v{a+r-2}, v{EE+r-2}"))
        it.append(V(f"v_mul_f32 v{a+6}, v{a+6}, v{EE+6}"))
        it.append(V(f"v_cvt_pk_bf16_f32 v{a+8}, v{a}, v{a+1}"))
        it.append(V(f"v_mul_f32 v{a+7}, v{a+7}, v{EE+7}"))
        for r in range(1, 4): it.append(V(f"v_cvt_pk_bf16_f32 v{a+8+r}, v{a+2*r}, v{a+2*r+1}"))
        it.append(V(clamp(a + 11)))
        it.append((8, lambda: lstore(A, VM, ("G", U), [f"buffer_store_dwordx4 {vr(a+8,4)}, v{vL16}, {SR(S_WS)}, s{sGo+p} offen offset:{1024*u}"])))
        return it
    AF = H + [144 + 4 * i for i in range(8)] + [232, 236, 240]
    def gload(n): LGn.load(("A", n), 4, AF[n], vL16, 2048 * n)
    BUD = [int(x) for x in E("BUD", "12,12,12").split(",")]
    G4 = [int(x) for x in E("G4", "0,2,4,8,12,16,20,24,28,32").split(",")]
    G5 = [int(x) for x in E("G5", "0,4,8,12,16,20,24,28,32,36,40,43").split(",")]
    GS0, GS1, GS2, GR2 = [int(x) for x in E("GS", "8,16,12,2").split(",")]
    vA5 = [[6, 249, 251], [7, 253, 254]]
    for p in range(3):
        bud = BUD[p]
        if p == 0: items = [(int(E("STD", 26)) * bud, lambda: None)] + stats_items()
        else: items = [(2 * bud, lambda: None)] + epi_items(p - 1, 0) + epi_items(p - 1, 1)
        credit = 0
        ng = 0
        for s in range(32):
            S = 32 * p + s
            nx = reads(S + 2) if S + 2 < 96 else []
            if p and s == 0:
                stamp(A, f"a4{p}")
                A("s_barrier")
                stamp(A, f"b4{p}")
            if s % 8 == 0 and s: stamp(A, f"p{p}s{s}")
            chk = p == 0 and s in G4
            if chk:
                g = [("H", i) for i in range(s, G4[G4.index(s) + 1])]
                assert all(x in LH.pend for x in g)
                VM.wait(g)
                sent_check(A, *group_check(g, [LH, LS]))
                if s == 0: stamp(A, "hflag")
            LG.wait([("W", S)])
            for u in range(2):
                A(mfma(acc[p & 1][u], WF[S % 3][u], H[s], 0 if s == 0 else None))
                for tg, l in nx[2 * u:2 * u + 2]: LG.issue(tg, l)
                credit = min(credit + bud, bud) if items and items[0][0] <= 8 else credit + bud
                if p == 0 and u == 0 and HP + s < 32:
                    hload(HP + s); credit -= 4
                if p == 2 and s >= GS0 and ng < GS1 and ng < s:
                    gload(ng); ng += 1; credit -= 4
                while items and (items[0][0] <= credit or (s == 31 and u == 1)):
                    c, f = items.pop(0)
                    f(); credit -= c
        assert not items
    while ng < GS1:
        gload(ng); ng += 1
    C2 = acc[1][0]; E2 = acc[1][1]
    cs_reads(4, ("cs", 4))
    for g in range(4): LG.issue(("cs", 5), f"ds_read_b128 {vr(C2+4*g,4)}, v{vCS} offset:{128*5+32*g}")
    for k in range(2):
        for w in (1, 2): A(f"v_add_u32 v{vA5[k][w]}, {w*65536}, v{vA5[k][0]}")
    stamp(A, "a43")
    A("s_barrier")
    stamp(A, "b43")
    def reads5(n):
        out = []
        for k in range(2):
            for sec in range(2):
                o = POS2[n] + sec * 1024
                out.append((("W5", n), f"ds_read_b64_tr_b16 {vr(WF[n%3][k]+2*sec,2)}, v{vA5[k][o>>16]} offset:{o&0xffff}"))
        return out
    for u in range(2):
        a = acc[0][u]; c = (CS, C2)[u]; e = (CS, E2)[u]
        LG.wait([("cs", 4 + u)])
        if u == 1:
            for tg, l in reads5(0) + reads5(1): LG.issue(tg, l)
        for r in range(0, 16, 2): A(pk_fma(a + r, c + r, nm, a + r, bc=(1,)))
        for r in range(0, 8, 2): A(pk_mul(e + r, a + r, rl, bc=(1,)))
        for r in range(8): A(f"v_exp_f32 v{e+r}, v{e+r}")
        for r in range(0, 8, 2): A(pk_mul(a + r, a + r, a + 8 + r))
        for r in range(0, 8, 2): A(pk_fma(e + r, e + r, var, var, bc=(1, 2)))
        for r in range(8): A(f"v_rcp_f32 v{e+r}, v{e+r}")
        A("s_nop 0")
        for r in range(0, 8, 2): A(pk_mul(a + r, a + r, e + r))
        for r in range(4): A(f"v_cvt_pk_bf16_f32 v{a+8+r}, v{a+2*r}, v{a+2*r+1}")
        A(clamp(a + 11))
        lstore(A, VM, ("G", 4 + u), [f"buffer_store_dwordx4 {vr(a+8,4)}, v{vL16}, {SR(S_WS)}, s{sGo+2} offen offset:{1024*u}"])
        for i in range(int(E("GF", 8))):
            if ng < 32: gload(ng); ng += 1
    stamp(A, "fin")
    acc5 = acc[1]
    NS = 43
    for n in range(NS):
        nx = reads5(n + 2) if n + 2 < NS else []
        if n in (21, 37):
            stamp(A, "a51" if n == 21 else "a52")
            A("s_barrier")
            stamp(A, "b51" if n == 21 else "b52")
        if n % 4 == 0: stamp(A, f"k5s{n}")
        if n in G5:
            g = [("A", i) for i in range(n, G5[G5.index(n) + 1])]
            assert all(x in LGn.pend for x in g)
            VM.wait(g)
            sent_check(A, *group_check(g, [LGn]))
        LG.wait([("W5", n)])
        for u in range(2):
            A(mfma(acc5[u], WF[n % 3][u], AF[n], 0 if n == 0 else None))
            for tg, l in nx[2 * u:2 * u + 2]: LG.issue(tg, l)
            if (ng < 32 or (n >= GS2 and ng < NS)) and (GR2 == 2 or u == 0):
                gload(ng); ng += 1
    T = H[8]
    stamp(A, "k5end")
    exchange(A, acc5, H[0], T, XCH5)
    A(f"v_and_b32 v{T}, 31, v0")
    A(f"v_lshlrev_b32 v{T+1}, 10, v{T}")
    A(f"v_lshrrev_b32 v{T}, 5, v0")
    A(f"v_lshl_add_u32 v{T+1}, v{T}, 4, v{T+1}")
    A(f"s_lshl_b32 s58, s{sRU5}, 15")
    A(f"s_lshl_b32 s59, s{sCU5}, 6")
    A("s_add_u32 s58, s58, s59")
    a = acc5[0]
    for q in range(4):
        A(f"s_waitcnt lgkmcnt({3-q})")
        A(pk_add(a + 4 * q, a + 4 * q, acc5[1] + 4 * q))
        A(pk_add(a + 4 * q + 2, a + 4 * q + 2, acc5[1] + 4 * q + 2))
    for r in range(8):
        A(f"v_cvt_pk_bf16_f32 v{RES+r}, v{a+2*r}, v{a+2*r+1}")
    A("s_nop 1")
    for g in range(2):
        A(f"v_permlane32_swap_b32 v{RES+4*g}, v{RES+4*g+2}")
        A(f"v_permlane32_swap_b32 v{RES+4*g+1}, v{RES+4*g+3}")
    A("s_nop 1")
    for g in range(2):
        A(f"buffer_store_dwordx4 {vr(RES+4*g,4)}, v{T+1}, {SR(S_OUT)}, s58 offen offset:{32*g}")
    if STAMP: A("s_waitcnt vmcnt(0)")
    dump_stamps(A)
    A("s_endpgm")

def mfma16(d, a, b, c=None):
    c = vr(d, 4) if c is None else "0"
    return f"v_mfma_f32_16x16x32_bf16 {vr(d,4)}, {vr(a,4)}, {vr(b,4)}, {c}"

def helper(A, fin):
    ROLE[0] = 1
    VM = Q("vmcnt", A); LG = Q("lgkmcnt", A)
    sJ, sMX, sMW = 50, 51, 52
    ONE = 44; ACC = 20
    vXg, vWg, vWa, vAdd = 8, 12, 15, 16
    t = 2
    A(f"s_sub_u32 s{sJ}, s{S_W}, 4")
    A(f"s_lshl_b32 s53, s{sRB}, 17")
    A(f"s_lshl_b32 s54, s{sJ}, 15")
    A("s_add_u32 s53, s53, s54")
    A(f"v_lshrrev_b32 v{t}, 3, v0")
    A(f"v_lshlrev_b32 v{t}, 10, v{t}")
    A(f"v_add_u32 v{t}, s53, v{t}")
    A(f"v_and_b32 v{t+1}, 7, v0")
    A(f"v_lshrrev_b32 v{t+2}, 4, v0")
    A(f"v_xor_b32 v{t+1}, v{t+1}, v{t+2}")
    A(f"v_lshl_add_u32 v{vXg}, v{t+1}, 4, v{t}")
    A(f"v_xor_b32 v{vXg+1}, 64, v{vXg}")
    A(f"v_add_u32 v{vXg+1}, 0x2000, v{vXg+1}")
    A(f"v_add_u32 v{vXg+2}, 0x4000, v{vXg}")
    A(f"v_add_u32 v{vXg+3}, 0x4000, v{vXg+1}")
    A(f"s_mul_i32 s53, s{sJ}, {16*3072}")
    A(f"s_lshl_b32 s54, s{sCB}, 6")
    A("s_add_u32 s53, s53, s54")
    for r in range(3):
        A(f"v_add_u32 v{t}, {64*r}, v0")
        div12(A, t, t + 1, t + 2)
        A(f"v_mul_u32_u24 v{t+1}, 3072, v{t+1}")
        A(f"v_and_b32 v{t}, 3, v{t+2}")
        A(f"v_lshl_add_u32 v{t+1}, v{t}, 4, v{t+1}")
        A(f"v_lshrrev_b32 v{t+2}, 2, v{t+2}")
        A(f"v_lshl_add_u32 v{t+1}, v{t+2}, 10, v{t+1}")
        A(f"v_add_u32 v{vWg+r}, s53, v{t+1}")
    A(f"s_lshl_b32 s{sMX}, s{sJ}, 12")
    A(f"s_mul_i32 s{sMW}, s{sJ}, 3072")
    fin()
    ROT = int(E("ROT", 0))
    if ROT == 1: A(f"s_lshr_b32 s63, s{S_J}, 2")
    if ROT == 2: A(f"s_lshl_b32 s63, s{S_J}, 1")
    if ROT == 3:
        A(f"s_lshr_b32 s63, s{S_J}, 2")
        A(f"s_lshl_b32 s53, s{S_J}, 1")
        A("s_add_u32 s63, s63, s53")
    if ROT == 4: A(f"s_mov_b32 s63, s{S_XCD}")
    def issue(c):
        slot = c % 5
        if ROT:
            A(f"s_add_u32 s53, s63, {c}")
            A("s_and_b32 s53, s53, 7")
            A(f"s_mul_i32 s54, s53, {64*3072}")
            A("s_lshl_b32 s53, s53, 7")
        else:
            A(f"s_movk_i32 s53, {c*128}")
            A(f"s_mov_b32 s54, {c*64*3072}")
        for q in range(4):
            if not E("NOX"): dma(A, VM, ("c", c), vXg + q, S_X, "s53", sMX, XB + slot * 16384 + q * 1024)
            if q < 3 and not E("NOW"): dma(A, VM, ("c", c), vWg + q, S_WQ, "s54", sMW, WB + slot * 12288 + q * 1024)
    D1 = int(E("D1", 2))
    DL = int(E("DL", 1))
    for c in range(D1):
        issue(c)
        if c == 0: stamp(A, "iss")
        if BI and c == BI - 1: A("s_barrier")
    stamp(A, "iss3")
    k1_wa(A, vWa, t, t + 1)
    A(f"s_min_u32 s62, s{sJ}, 2")
    A("s_lshl_b32 s62, s62, 6")
    A(f"v_add_u32 v{vWa}, s62, v{vWa}")
    A("s_mov_b32 vcc_lo, 0x00100001")
    A("s_mov_b32 vcc_hi, 0x00100001")
    A(f"v_mov_b32 v{t}, 0")
    A(f"v_mov_b32 v{t+1}, 0x3f803f80")
    for r in range(4):
        A(f"v_cndmask_b32 v{ONE+r}, v{t}, v{t+1}, vcc")
    A("s_lshl_b32 s62, s62, 1")
    A(f"s_add_u32 s62, s62, {SC1}")
    A(f"v_lshl_add_u32 v{vAdd}, v0, 2, s62")
    A(f"v_lshrrev_b32 v{t}, 4, v0")
    A(f"v_min_u32 v{t}, 2, v{t}")
    A(f"v_mul_u32_u24 v{t}, {SEG}, v{t}")
    A(f"v_bfe_u32 v{t+1}, v0, 1, 3")
    A(f"v_mul_u32_u24 v{t+1}, {TILE}, v{t+1}")
    A(f"v_add_u32 v{t}, v{t}, v{t+1}")
    A(f"v_and_b32 v{t+1}, 1, v0")
    A(f"v_mul_u32_u24 v{t+1}, 528, v{t+1}")
    A(f"v_add_u32 v17, v{t}, v{t+1}")
    for r in range(4): A(f"v_mov_b32 v{24+r}, 0x3f803f80")
    vW13, vG64 = 40, 41
    sPair, sM1 = 57, 60
    A(f"v_lshrrev_b32 v{t}, 2, v0")
    A(f"v_mul_u32_u24 v{t}, 2752, v{t}")
    A(f"v_and_b32 v{t+1}, 3, v0")
    A(f"v_lshl_add_u32 v{t}, v{t+1}, 4, v{t}")
    A(f"s_mul_i32 s56, s{sJ}, {16*2752}")
    A(f"v_add_u32 v{vW13}, s56, v{t}")
    A(f"v_lshrrev_b32 v{t}, 3, v0")
    A(f"v_lshlrev_b32 v{t}, 10, v{t}")
    A(f"v_bfe_u32 v{t+1}, v0, 4, 1")
    A(f"v_lshlrev_b32 v{t+1}, 2, v{t+1}")
    A(f"v_and_b32 v{vG64}, 7, v0")
    A(f"v_xor_b32 v{t+1}, v{t+1}, v{vG64}")
    A(f"v_lshl_add_u32 v{t}, v{t+1}, 4, v{t}")
    A(f"s_lshr_b32 s56, s{S_J}, 2")
    A("s_lshl_b32 s56, s56, 7")
    A(f"s_lshl_b32 s{sM1}, s{sJ}, 13")
    A(f"s_add_u32 s56, s56, s{sM1}")
    A(f"v_add_u32 v{vG64}, s56, v{t}")
    A(f"s_lshl_b32 s{sM1}, s{sJ}, 10")
    A(f"s_lshr_b32 s56, s{S_J}, 1")
    for p in range(3):
        A(f"s_add_u32 s{sPair+p}, s56, {16*p}")
        if p == 2: A(f"s_min_u32 s{sPair+p}, s{sPair+p}, 42")
        A(f"s_lshl_b32 s{sPair+p}, s{sPair+p}, 6")
    vWr = [42, 43, 44]
    SEL = 32
    A(f"v_and_b32 v{t}, 1, v0")
    A(f"v_lshlrev_b32 v{t}, 4, v{t}")
    A(f"v_mov_b32 v{t+1}, 0x3f80")
    A(f"v_lshlrev_b32 v{t}, v{t}, v{t+1}")
    for r in range(8): A(f"v_mov_b32 v{SEL+r}, 0")
    for r in range(8):
        A(f"s_mov_b32 exec_lo, {hex((3 << 2*r) * 0x10001)}")
        A(f"s_mov_b32 exec_hi, {hex((3 << 2*r) * 0x10001)}")
        A(f"v_mov_b32 v{SEL+r}, v{t}")
    A("s_mov_b64 exec, -1")
    for r in range(4): A(f"v_mov_b32 v{4+r}, -1")
    A(f"v_add_u32 v{vWr[0]}, s{sM1}, v{vL16}")
    A(f"v_add_u32 v{vWr[1]}, 65536, v{vWr[0]}")
    A("s_waitcnt lgkmcnt(0)")
    make_T(A)
    CF = 48
    def touch0():
        A("s_lshl_b32 s61, s2, 2")
        A(f"s_add_u32 s61, s61, s{sJ}")
        A("s_mul_i32 s61, s61, 1408")
        A(f"v_lshlrev_b32 v{t}, {7 if E('T128') else 6}, v0")
        A(f"s_mov_b64 exec, {'0x7ff' if E('T128') else '0x3fffff'}")
        for n, sd in enumerate((S_WO, S_W1, S_W3, S_W2)):
            VM.issue("t0", f"buffer_load_dword v{28+n}, v{t}, {SR(sd)}, s61 offen")
        A("s_mov_b64 exec, -1")
    nis = D1
    if DL == 0:
        while nis < 3: issue(nis); nis += 1
    for c in range(8):
        VM.wait([("c", c)])
        stamp(A, f"h1a{c}")
        A("s_barrier")
        if c == 0: stamp(A, "b0")
        slot = c % 5
        for u in range(0 if E("NOCS") else 4):
            for sec in range(2):
                A(f"ds_read_b64_tr_b16 {vr(CF+4*u+2*sec,2)}, v{vWa} offset:{WB + slot*12288 + (16*u+4*sec)*192}")
        while nis <= c + 3 and nis < 8: issue(nis); nis += 1
        if c == int(E("T0", 6)): touch0()
        A("s_waitcnt lgkmcnt(0)")
        for u in range(4): A(mfma16(ACC, ONE, CF + 4 * u, 0 if c == 0 and u == 0 else None))
    sHead, sK, sKc = 53, 54, 55
    vKg, vVg, vKd, vVd = 8, 9, 10, 11
    attn_ids(A, sHead, 61)
    swap23(A, vKg, t)
    A(f"v_add_u32 v{vVg}, 0x200000, v{vL16}")
    A("s_mov_b32 exec_hi, 0")
    A(f"ds_write_b32 v{vAdd}, v{ACC}")
    A("s_mov_b32 exec_hi, -1")
    A(f"s_mul_i32 s61, s{sJ}, {TILE}")
    A(f"s_add_u32 s62, s61, {RING+1056}")
    A(f"v_add_u32 v{vKd}, s62, v{vL16}")
    A(f"v_lshrrev_b32 v{t}, 5, v0")
    A(f"v_lshlrev_b32 v{t}, 4, v{t}")
    A(f"s_add_u32 s62, s61, {RING}")
    A(f"v_add3_u32 v{vVd}, v{vL16}, v{t}, s62")
    A(f"s_lshl_b32 s{sK}, s{sHead}, 16")
    if E("XR", "1") == "1":
        A(f"s_lshr_b32 s61, s{S_J}, 2")
        A("s_lshl_b32 s61, s61, 13")
        A(f"s_add_u32 s{sK}, s{sK}, s61")
    A(f"s_lshl_b32 s61, s{sJ}, 10")
    A(f"s_add_u32 s{sK}, s{sK}, s61")
    A(f"s_add_u32 s{sK}, s{sK}, {QKV + 0x200000}")
    A("s_waitcnt lgkmcnt(0)")
    A("s_barrier")
    stamp(A, "bcs")
    A(f"ds_write_b128 v17, v[24:27] offset:{RING+512}")
    A(f"v_add_u32 v{vWr[2]}, {2*65536}, v{vWr[0]}")
    quad = lambda q: 48 + 4 * q
    LK = Ld(A, VM, sK, sKc, "q", "s_xor_b32")
    def kvload(i):
        LK.load(("kv", i >> 1), 4, quad(20 + 2 * i), vKg, 4096 * i)
        LK.load(("kv", i >> 1), 4, quad(21 + 2 * i), vVg, 4096 * i)
    def kvcheck(segs):
        g = [("kv", s) for s in segs]
        VM.wait(g)
        if 0 in segs: stamp(A, "kvland")
        sent_check(A, *group_check(g, [LK]), t=t)
    def kvwrite(s):
        for i in (2 * s, 2 * s + 1):
            o = (s % 3) * SEG + 4 * (i & 1) * TILE
            A(f"ds_write_b128 v{vKd}, {vr(quad(20+2*i),4)} offset:{o}")
            A(f"ds_write_b128 v{vVd}, {vr(quad(21+2*i),4)} offset:{o}")
    def w13src(b, qh):
        p, kb = divmod(b, 4)
        A(f"s_add_u32 s61, s{sPair+p}, {(128*kb+64*qh)*2752}")
    def w13dma(b):
        for qh in range(2):
            w13src(b, qh)
            for mat in range(2):
                dma(A, VM, ("b", b), vW13, (S_W1, S_W3)[mat], "s61", sM1, slot13(b) + mat * 8224 + qh * 4096)
    BQ0 = {0: 20, 1: 24, 2: 28, 8: 32, 9: 20, 10: 24, 11: 36, 3: 32, 4: 40, 5: 20, 6: 24, 7: 36}
    BQ = lambda b, qh, mat: quad(BQ0[b] + 2 * qh + mat)
    def w13load(b):
        for qh in range(2):
            w13src(b, qh)
            for mat in range(2):
                VM.issue(("r", b), f"buffer_load_dwordx4 {vr(BQ(b,qh,mat),4)}, v{vW13}, {SR((S_W1, S_W3)[mat])}, s61 offen")
    SEL = 32
    first = set()
    def colsum(b):
        VM.wait([("r", b)])
        for qh in range(2):
            for mat in range(2):
                g = b // 4
                A(mfma16(ACC + 4 * g, BQ(b, qh, mat), SEL + 4 * mat, None if g in first else 0))
                first.add(g)
    W2Q = lambda n: quad(n - 23)
    def w2load(n):
        A(f"s_mov_b32 s61, {n*32768}")
        VM.issue(("w2", n), f"buffer_load_dwordx4 {vr(W2Q(n),4)}, v{vG64}, {SR(S_W2)}, s61 offen")
    def g64dma(tag, srdn, n, pos):
        A(f"s_mov_b32 s61, {n*32768}")
        dma(A, VM, tag, vG64, srdn, "s61", sM1, pos)
    nb = [0]
    def bar():
        A("s_waitcnt lgkmcnt(0)"); LG.q = []
        stamp(A, f"ha{nb[0]}")
        A("s_barrier")
        stamp(A, f"hb{nb[0]}")
        nb[0] += 1
    KV0 = int(E("KV0", 2))
    if BKV: A("s_barrier")
    for i in range(KV0): kvload(i)
    stamp(A, "kviss")
    kvcheck([0])
    stamp(A, "kvflag")
    kvwrite(0)
    bar()
    stamp(A, "bai")
    if E("T0") == "20": touch0()
    for i in range(KV0, 16): kvload(i)
    kvcheck([1])
    kvwrite(1)
    bar()
    kvcheck(range(2, 8))
    kvwrite(2)
    group_flag_addr(A, 17)
    VM.issue("flag", flag_load(18, 17))
    WO1 = int(E("WO1", 8))
    for n in range(WO1): g64dma("wo", S_WO, n, WOB + 4096 * n)
    def ldsw(tag, pos, r):
        LG.issue(tag, f"ds_write_b128 v{vWr[pos>>16]}, {vr(r,4)} offset:{pos&0xffff}")
    def blockw(b):
        VM.wait([("r", b)])
        for qh in range(2):
            for mat in range(2): ldsw(("bw", b), slot13(b) + mat * 8224 + qh * 4096, BQ(b, qh, mat))
    bar()
    kvwrite(3)
    w13load(0); w13load(1)
    VM.wait(["flag"])
    A(f"v_cmp_ne_u64 vcc, s[{S_TX}:{S_TX+1}], v[18:19]")
    A(f"s_cmp_lg_u64 vcc, 0")
    A(f"s_cselect_b32 s{S_MODE}, 1, 0")
    def pz(so, off): return f"buffer_store_dwordx4 v[4:7], v{vL16}, {SR(S_WS)}, s{so} offen offset:{off}"
    A("s_lshl_b32 s61, s2, 2")
    A(f"s_add_u32 s61, s61, s{sJ}")
    A("s_lshl_b32 s61, s61, 11")
    A(f"s_add_u32 s61, s61, {OF}")
    for o in (0, 1024): VM.issue("poison", pz(61, o) + " sc1")
    g64_ids(A, 62, 63, 64, 65, sJ)
    A("s_lshl_b32 s61, s62, 4")
    A("s_add_u32 s61, s61, s64")
    A("s_lshl_b32 s62, s61, 11")
    A(f"s_add_u32 s62, s62, {HF}")
    A("s_lshl_b32 s61, s61, 8")
    A(f"s_add_u32 s61, s61, {ST2}")
    lstore(A, VM, "poison", [pz(62, 0), pz(62, 1024), "s_mov_b64 exec, 0xffff", pz(61, 0), "s_mov_b64 exec, -1"])
    A(f"s_and_b32 s61, s{S_J}, 1")
    A(f"s_lshl1_add_u32 s61, s{S_XCD}, s61")
    A(f"s_lshl2_add_u32 s61, s61, s{sJ}")
    A(f"s_lshr_b32 s62, s{S_J}, 1")
    g_offsets(A, 61, 62, 63, 67)
    lstore(A, VM, "poison", [pz(63 + p, o) for p in range(3) for o in (0, 1024)])
    bar()
    kvwrite(4)
    colsum(0); colsum(1); blockw(0); blockw(1)
    w13load(2); w13load(8)
    for n in range(23, 31): w2load(n)
    bar()
    kvwrite(5)
    VM.wait(["poison"])
    w13load(9); w13load(10); w13load(11)
    for n in range(31, 35): w2load(n)
    colsum(2); colsum(8)
    bar()
    A(f"s_mul_i32 s61, s2, {FS}")
    A(f"s_add_u32 s61, s61, {FL2}")
    with only(A, sJ, 0): flag_store(A, 61, t)
    kvwrite(6)
    w13load(3); w13load(4)
    for n in range(35, 43): w2load(n)
    colsum(9); colsum(10); colsum(11)
    bar()
    kvwrite(7)
    w13load(5); w13load(6); w13load(7)
    A(f"s_mul_i32 s61, s{sJ}, {192*1024}")
    A(f"s_lshr_b32 s56, s{S_J}, 2")
    A("s_lshl_b32 s56, s56, 7")
    A("s_add_u32 s61, s61, s56")
    A(f"v_lshlrev_b32 v{t}, 10, v0")
    for i in range(3):
        VM.issue("touch", f"buffer_load_dword v{4+i}, v{t}, {SR(S_W2)}, s61 offen")
        if i < 2: A("s_add_u32 s61, s61, 65536")
    colsum(3); colsum(4)
    bar()
    flag_addr(A, 17, sJ, FL2)
    VM.issue("flag", flag_load(18, 17, SCF))
    if E("OT"):
        A(f"s_and_b32 s61, s{S_J}, 3")
        A(f"s_lshl2_add_u32 s61, s{S_XCD}, s61")
        A(f"s_lshl2_add_u32 s61, s61, s{sJ}")
        A("s_lshl_b32 s61, s61, 14")
        A(f"s_lshr_b32 s62, s{S_J}, 2")
        A("s_lshl_b32 s62, s62, 7")
        A("s_add_u32 s61, s61, s62")
        A(f"v_lshlrev_b32 v{t}, 10, v0")
        A("s_mov_b64 exec, 0xffff")
        VM.issue("touch", f"buffer_load_dword v7, v{t}, {SR(S_OUT)}, s61 offen")
        A("s_mov_b64 exec, -1")
    for n in range(WO1, 16): g64dma("wo", S_WO, n, WOB + 4096 * n)
    colsum(5); colsum(6); colsum(7)
    A(f"s_mul_i32 s61, s{sJ}, 3072")
    A(f"s_add_u32 s61, s61, {PSTG}")
    A(f"v_add_u32 v{t}, s61, v{vL16}")
    A("s_nop 6")
    for p in range(3): A(f"ds_write_b128 v{t}, {vr(ACC+4*p,4)} offset:{1024*p}")
    VM.drain()
    stamp(A, "x3")
    flag_check(A, 18, 17)
    A(f"s_add_u32 s61, s2, s{sJ}")
    with only(A, 61, 0): flag_store(A, 61, t)
    bar()
    bar()
    stamp(A, "be")
    blockw(2)
    blockw(3); blockw(4)
    A(f"s_min_u32 s61, s{sJ}, 2")
    A("s_lshl_b32 s62, s61, 10")
    A(f"s_add_u32 s62, s62, {PSTG}")
    A(f"v_add_u32 v{t}, s62, v{vL16}")
    for j in range(4): A(f"ds_read_b128 {vr(ACC+4*j,4)}, v{t} offset:{3072*j}")
    A(f"v_bfe_u32 v{t}, v0, 3, 1")
    A(f"v_lshlrev_b32 v{t}, 6, v{t}")
    A(f"v_and_b32 v{t+1}, 7, v0")
    A(f"v_lshl_add_u32 v{t}, v{t+1}, 2, v{t}")
    A("s_lshl_b32 s62, s61, 8")
    A(f"s_add_u32 s62, s62, {SC4}")
    A(f"v_add_u32 v{t}, s62, v{t}")
    A("s_waitcnt lgkmcnt(0)"); LG.q = []
    for q in range(4):
        A(f"v_add_f32 v{ACC+q}, v{ACC+q}, v{ACC+4+q}")
        A(f"v_add_f32 v{ACC+8+q}, v{ACC+8+q}, v{ACC+12+q}")
    for q in range(4): A(f"v_add_f32 v{ACC+q}, v{ACC+q}, v{ACC+8+q}")
    for sw in ("v_permlane32_swap_b32", "v_permlane16_swap_b32"):
        for q in range(4): A(f"v_mov_b32 v{ACC+4+q}, v{ACC+q}")
        A("s_nop 1")
        for q in range(4): A(f"{sw} v{ACC+q}, v{ACC+4+q}")
        A("s_nop 1")
        for q in range(4): A(f"v_add_f32 v{ACC+q}, v{ACC+q}, v{ACC+4+q}")
    for q in range(4): A(f"ds_write_b32 v{t}, v{ACC+q} offset:{128*(q>>1) + 32*(q&1)}")
    stamp(A, "cs1")
    bar()
    A("s_barrier")
    for b in (5, 6, 7): blockw(b)
    stamp(A, "cs2")
    bar()
    stamp(A, "w41")
    A("s_barrier")
    def w2w(n):
        VM.wait([("w2", n)])
        ldsw("w2", POS2[n], W2Q(n))
    for b in (8, 9, 10, 11): w13dma(b)
    for n in (0, 1, 2, 3, 20, 21, 22): g64dma("w2d", S_W2, n, POS2[n])
    VM.wait([("b", 11)])
    stamp(A, "w42")
    A("s_barrier")
    for n in range(4, 20): g64dma("w2d", S_W2, n, POS2[n])
    VM.wait(["w2d"])
    stamp(A, "w43")
    A("s_barrier")
    for n in range(23, 39): w2w(n)
    stamp(A, "w51")
    bar()
    for n in range(39, 43): w2w(n)
    bar()
    A("s_barrier")
    dump_stamps(A)

def descriptor():
    return f""".section .rodata,"a"
.p2align 6
.amdhsa_kernel {KNAME}
  .amdhsa_next_free_vgpr 256
  .amdhsa_next_free_sgpr 102
  .amdhsa_accum_offset 256
  .amdhsa_group_segment_fixed_size 0
  .amdhsa_kernarg_size 80
  .amdhsa_user_sgpr_count 2
  .amdhsa_user_sgpr_kernarg_segment_ptr 1
  .amdhsa_system_sgpr_workgroup_id_x 1
.end_amdhsa_kernel
"""

def main():
    ref = open(f"cdna_kernels/{NAME}.s.ref").read().splitlines()
    head = []
    for l in ref:
        if l.startswith("; Override") or "@launch" in l or l.startswith("; grid="): continue
        if not l.startswith(";"): break
        head.append(l)
    head.append(f"; @launch grid=(256,1,1) block=(512,1,1) lds={LDS_ALL}")
    A = Asm()
    A.raw('.amdgcn_target "amdgcn-amd-amdhsa--gfx950"')
    A.raw(".text")
    fin = prologue(A)
    A(f"s_cmp_lt_u32 s{S_W}, 4")
    A("s_cbranch_scc1 L_compute")
    helper(A, fin)
    A.label("L_end")
    A("s_endpgm")
    A.label("L_compute")
    ROLE[0] = 0
    c_k1(A, fin)
    c_attn(A)
    c_k3(A)
    c_k45(A)
    A.label("L_ool")
    i = 0
    while i < len(OOL):
        OOL[i](A); i += 1
    if STAMP: head.append("; STS " + ",".join(STS[0]) + " " + ",".join(STS[1]))
    out = "\n".join(head) + "\n" + A.text() + descriptor()
    path = sys.argv[1] if len(sys.argv) > 1 else f"cdna_kernels/{NAME}.s"
    open(path, "w").write(out)

if __name__ == "__main__":
    main()
```

```python
import sys, os, struct
sys.path.insert(0, os.path.dirname(os.path.abspath(__file__)))
from asmlib import *

NAME = "sequential_preLN__softmax_full_mha__glu_gated_swiglu__prompt"
KNAME = NAME + "_kernel"
E = os.environ.get
FS = int(E("FS", 16))
NONCE = 0
FL1 = 0x1000
FL2 = FL1 + 256 * FS
FL3 = FL2 + 256 * FS
DUMMY = 0x40000
assert FL3 + 1024 * FS <= DUMMY
QKV = 0x100000
OF = 0x700000
HF = 0x900000
GF = 0xB00000
ST2 = 0x1060000
TS = 0x1100000
WS_BYTES = 0x1200000
LOG2E = 1.4426950408889634
def f32(x):
    return hex(struct.unpack("<I", struct.pack("<f", x))[0])

S_T = 4
S_WS, S_X, S_WQ, S_WO, S_W1, S_W3, S_W2, S_OUT, S_DBG = 8, 12, 16, 20, 24, 28, 32, 36, 40
S_W, S_XCD, S_J = 44, 45, 46
S_TO = 47
S_TX = 6
S_MODE = 66
PSTG = 83456
vL16, vP, RES = 1, 4, 8
LDS_ALL = 163840
SCR = 161280
SC1, ST1, SC4 = SCR, SCR + 512, SCR + 1536
RING = 32896; SEG = 16896; TILE = 2112; VH = 544; KO = 1088
WOB = 95744
BLK = 16448
XCH3 = SCR - 16384
XCH5 = 65728
STAMP = int(E("STAMP", 0))
TOLIM = 20000
BKV = int(E("BKV", 1))
BI = int(E("BI", 0))

class Q:
    def __init__(self, kind, A):
        self.kind, self.A, self.q = kind, A, []
        self.max = 63 if kind == "vmcnt" else 15
    def issue(self, tag, ins):
        self.A(ins); self.q.append(tag)
    def need(self, tags):
        idx = [i for i, t in enumerate(self.q) if t in tags]
        if not idx: return None
        n = len(self.q) - 1 - max(idx)
        n = min(n, self.max)
        self.q = self.q[len(self.q) - n:] if n else []
        return n
    def wait(self, tags):
        n = self.need(tags)
        if n is not None: self.A(f"s_waitcnt {self.kind}({n})")
    def drain(self):
        self.A(f"s_waitcnt {self.kind}(0)"); self.q = []

def wait2(A, VM, vt, LG, lt):
    a = VM.need(vt); b = LG.need(lt)
    s = []
    if a is not None: s.append(f"vmcnt({a})")
    if b is not None: s.append(f"lgkmcnt({b})")
    if s: A("s_waitcnt " + " ".join(s))

STS = [E("STS0", "start,b0,k1end,k1pub,bai,be,oflag,hpub,hflag,b41,b42,b43,fin,b51,b52,end").split(","),
       E("STS1", "start,iss,b0,bcs,kviss,kvflag,bai,be,cs1,cs2,w41,w42,w43,w51,end").split(",")]
ROLE = [0]
def stamp(A, name):
    if STAMP and name in STS[ROLE[0]]:
        n = STS[ROLE[0]].index(name)
        A(f"{'s_memtime' if STAMP == 2 else 's_memrealtime'} s[{100-2*n}:{101-2*n}]")
def dump_stamps(A):
    if not STAMP: return
    role = ROLE[0]
    lab = A.newlabel("st")
    stamp(A, "end")
    A(f"s_and_b32 s69, s{S_W}, 3")
    A("s_cmp_lg_u32 s69, 0")
    A(f"s_cbranch_scc1 {lab}")
    A("s_waitcnt lgkmcnt(0)")
    A("s_lshl_b32 s69, s2, 7")
    A(f"s_add_u32 s69, s69, {TS + role*64}")
    A("s_mov_b64 exec, 1")
    for i in range(len(STS[role])):
        A(f"v_mov_b32 v4, s{100-2*i}")
        A(f"buffer_store_dword v4, off, s[{S_WS}:{S_WS+3}], s69 offset:{4*i}")
    A("s_waitcnt vmcnt(0)")
    A.label(lab)

def SR(n): return f"s[{n}:{n+3}]"

def dma(A, VM, tag, voff, srdn, soff, m0base, m0add):
    A(f"s_add_u32 m0, s{m0base}, {m0add}")
    A("s_nop 0")
    VM.issue(tag, f"buffer_load_dwordx4 v{voff}, {SR(srdn)}, {soff} offen lds")

OOL = []
def sent_reduce(regs, t):
    out = []
    regs = list(regs)
    if len(regs) > 1:
        if len(regs) == 2: out.append(f"v_max_u32 v{t}, v{regs[0]}, v{regs[1]}"); regs = []
        else: out.append(f"v_max3_u32 v{t}, v{regs[0]}, v{regs[1]}, v{regs[2]}"); regs = regs[3:]
        while regs:
            if len(regs) == 1: out.append(f"v_max_u32 v{t}, v{t}, v{regs[0]}"); regs = []
            else: out.append(f"v_max3_u32 v{t}, v{t}, v{regs[0]}, v{regs[1]}"); regs = regs[2:]
        r = t
    else: r = regs[0]
    out.append(f"v_cmp_eq_u32 vcc, -1, v{r}")
    return out
def sent_branch(A, group, pending, t=vP):
    s = A.newlabel("slow"); r = A.newlabel("back"); l = A.newlabel("rl"); g = A.newlabel("gu")
    A(f"s_cbranch_vccnz {s}")
    A.label(r)
    pending = list(pending)
    def ool(B):
        B.label(s)
        B("s_waitcnt vmcnt(0)")
        B.label(l)
        for reg, ins in pending:
            k = B.newlabel("sk")
            B(f"v_cmp_eq_u32 vcc, -1, v{reg}")
            B(f"s_cbranch_vccz {k}")
            for i in ins: B(i)
            B.label(k)
        B("s_waitcnt vmcnt(0)")
        B(f"s_sub_u32 s{S_TO}, s{S_TO}, 1")
        B(f"s_cbranch_scc1 {g}")
        for i in sent_reduce(group, t): B(i)
        B(f"s_cbranch_vccnz {l}")
        B(f"s_branch {r}")
        B.label(g)
        B(f"s_mov_b32 s{S_TO}, 0")
        B(f"s_branch {r}")
    OOL.append(ool)
def sent_check(A, group, pending, t=vP):
    for i in sent_reduce(group, t): A(i)
    sent_branch(A, group, pending, t)
S_TMP = 3
def ws_load(n, dst, voff, sbase, off, op="s_add_u32"):
    x = "" if n == 1 else f"x{n}"
    return [f"{op} s{S_TMP}, s{sbase}, {off}",
            f"buffer_load_dword{x} {vr(dst,n)}, v{voff}, {SR(S_WS)}, s{S_TMP} offen sc1"]
class Ld:
    def __init__(self, A, VM, sbase, scur, sc, op="s_add_u32"):
        self.A, self.VM, self.sbase, self.scur, self.hi = A, VM, sbase, scur, None
        self.op = op
        self.sc = " sc1" if E("SC", "qohg").find(sc) >= 0 else ""
        self.pend = {}
    def load(self, tag, n, dst, voff, off):
        hi = off & ~4095
        if hi == 0: so = self.sbase
        else:
            if hi != self.hi: self.A(f"{self.op} s{self.scur}, s{self.sbase}, {hi}"); self.hi = hi
            so = self.scur
        x = "" if n == 1 else f"x{n}"
        o = f" offset:{off & 4095}" if off & 4095 else ""
        self.VM.issue(tag, f"buffer_load_dword{x} {vr(dst,n)}, v{voff}, {SR(S_WS)}, s{so} offen{o}{self.sc}")
        self.pend.setdefault(tag, []).append((dst + n - 1, ws_load(n, dst, voff, self.sbase, off, self.op)))
def group_check(tags, lds):
    pend = [x for L in lds for v in L.pend.values() for x in v]
    grp = []
    for L in lds:
        for t in tags:
            if t in L.pend: grp += [r for r, _ in L.pend.pop(t)]
    return grp, pend
def clamp(r): return f"v_min_u32 v{r}, -2, v{r}"

def flag_store(A, soff, vt, st=S_T):
    A("s_mov_b64 exec, 1")
    A(f"v_mov_b32 v{vt}, s{st}")
    A(f"v_mov_b32 v{vt+1}, s{st+1}")
    A(f"buffer_store_dwordx2 {vr(vt,2)}, off, {SR(S_WS)}, s{soff} sc1")
    A("s_mov_b64 exec, -1")
def flag_addr(A, va, sw, base):
    A(f"s_mul_i32 s{S_TMP}, s{sw}, {64*FS}")
    A(f"s_add_u32 s{S_TMP}, s{S_TMP}, {base}")
    A(f"v_mul_u32_u24 v{va}, {FS}, v0")
    A(f"v_add_u32 v{va}, s{S_TMP}, v{va}")
def flag_load(vd, va, sc=" sc1"):
    return f"buffer_load_dwordx2 {vr(vd,2)}, v{va}, {SR(S_WS)}, 0 offen{sc}"
def flag_check(A, vd, va):
    s = A.newlabel("fs"); r = A.newlabel("fb"); g = A.newlabel("fg")
    test = f"v_cmp_ne_u64 vcc, s[{S_T}:{S_T+1}], {vr(vd,2)}"
    A(test)
    A(f"s_cbranch_vccnz {s}")
    A.label(r)
    def ool(B):
        B.label(s)
        B(flag_load(vd, va))
        B("s_waitcnt vmcnt(0)")
        B(f"s_sub_u32 s{S_TO}, s{S_TO}, 1")
        B(f"s_cbranch_scc1 {g}")
        B(test)
        B(f"s_cbranch_vccnz {s}")
        B(f"s_branch {r}")
        B.label(g)
        B(f"s_mov_b32 s{S_TO}, 0")
        B(f"s_branch {r}")
    OOL.append(ool)
def make_T(A):
    A(f"s_mul_i32 s{S_T}, s6, 0x9e3779b1")
    A(f"s_add_u32 s{S_T}, s{S_T}, 0x7f4a7c15")
    A(f"s_mul_i32 s{S_T+1}, s7, 0x85ebca6d")
    A(f"s_add_u32 s{S_T+1}, s{S_T+1}, 0x165667b1")
    A(f"s_getreg_b32 s{S_TX+1}, hwreg(HW_REG_XCC_ID, 0, 4)")
    if E("FAKEX"): A(f"s_bfe_u32 s{S_TX+1}, s2, 0x10003")
    A(f"s_mov_b32 s{S_TX}, s{S_T}")
    A(f"s_xor_b32 s{S_TX+1}, s{S_TX+1}, s{S_T+1}")
def group_flag_addr(A, va):
    A(f"s_mul_i32 s{S_TMP}, s{S_XCD}, {32*FS}")
    A(f"s_add_u32 s{S_TMP}, s{S_TMP}, {FL1}")
    A(f"v_and_b32 v{va}, 31, v0")
    A(f"v_mul_u32_u24 v{va}, {FS}, v{va}")
    A(f"v_add_u32 v{va}, s{S_TMP}, v{va}")
def lstore(A, VM, tag, ins):
    s = A.newlabel("wt"); r = A.newlabel("wb")
    A(f"s_cmp_lg_u32 s{S_MODE}, 0")
    A(f"s_cbranch_scc1 {s}")
    for i in ins:
        if VM is not None and i.startswith("buffer"): VM.issue(tag, i)
        else: A(i)
    A.label(r)
    def ool(B):
        B.label(s)
        for i in ins: B(i + (" sc1" if i.startswith("buffer") else ""))
        B(f"s_branch {r}")
    OOL.append(ool)
def group_check1(A, vd, va, repoison):
    s = A.newlabel("gs"); r = A.newlabel("gb"); g = A.newlabel("gg"); l2 = A.newlabel("g2"); rt = A.newlabel("gr")
    A(f"v_cmp_ne_u64 vcc, s[{S_TX}:{S_TX+1}], {vr(vd,2)}")
    A(f"s_cbranch_vccnz {s}")
    A.label(r)
    def ool(B):
        B.label(s)
        B(f"v_xor_b32 v{vd+1}, s{S_T+1}, v{vd+1}")
        B(f"v_xor_b32 v{vd}, s{S_T}, v{vd}")
        B(f"v_lshrrev_b32 v{vd+1}, 4, v{vd+1}")
        B(f"v_or_b32 v{vd}, v{vd}, v{vd+1}")
        B(f"v_cmp_ne_u32 vcc, 0, v{vd}")
        B(f"s_cbranch_vccnz {rt}")
        B(f"s_mov_b32 s{S_MODE}, 1")
        for i in repoison: B(i + " sc1")
        B("s_waitcnt vmcnt(0)")
        B(f"s_lshl_b32 s58, s{S_XCD}, 5")
        B(f"s_add_u32 s58, s58, s{S_J}")
        B("s_lshl_b32 s58, s58, 2")
        B(f"s_add_u32 s58, s58, s{S_W}")
        B(f"s_mul_i32 s58, s58, {FS}")
        B(f"s_add_u32 s58, s58, {FL3}")
        flag_store(B, 58, vd)
        B(f"s_mul_i32 s58, s{S_XCD}, {128*FS}")
        B(f"s_add_u32 s58, s58, {FL3}")
        B(f"s_add_u32 s59, s58, {64*FS}")
        B(f"v_mul_u32_u24 v{va}, {FS}, v0")
        B.label(l2)
        B(f"buffer_load_dwordx2 {vr(vd,2)}, v{va}, {SR(S_WS)}, s58 offen sc1")
        B(f"buffer_load_dwordx2 {vr(2,2)}, v{va}, {SR(S_WS)}, s59 offen sc1")
        B("s_waitcnt vmcnt(0)")
        B(f"s_sub_u32 s{S_TO}, s{S_TO}, 1")
        B(f"s_cbranch_scc1 {g}")
        B(f"v_cmp_ne_u64 vcc, s[{S_T}:{S_T+1}], {vr(vd,2)}")
        B(f"s_cbranch_vccnz {l2}")
        B(f"v_cmp_ne_u64 vcc, s[{S_T}:{S_T+1}], {vr(2,2)}")
        B(f"s_cbranch_vccnz {l2}")
        B(f"s_branch {r}")
        B.label(rt)
        B(flag_load(vd, va))
        B("s_waitcnt vmcnt(0)")
        B(f"s_sub_u32 s{S_TO}, s{S_TO}, 1")
        B(f"s_cbranch_scc1 {g}")
        B(f"v_cmp_ne_u64 vcc, s[{S_TX}:{S_TX+1}], {vr(vd,2)}")
        B(f"s_cbranch_vccnz {s}")
        B(f"s_branch {r}")
        B.label(g)
        B(f"s_mov_b32 s{S_TO}, 0")
        B(f"s_branch {r}")
    OOL.append(ool)
SCF = " sc1" if E("SCF", "1") == "1" else ""
class only:
    def __init__(self, A, reg, val): self.A, self.reg, self.val = A, reg, val
    def __enter__(self):
        self.l = self.A.newlabel("only")
        self.A(f"s_cmp_lg_u32 s{self.reg}, {self.val}")
        self.A(f"s_cbranch_scc1 {self.l}")
    def __exit__(self, *a): self.A.label(self.l)

def div12(A, idx, kr, wi):
    A(f"v_mul_u32_u24 v{kr}, 171, v{idx}")
    A(f"v_lshrrev_b32 v{kr}, 11, v{kr}")
    A(f"v_mul_u32_u24 v{wi}, 12, v{kr}")
    A(f"v_sub_u32 v{wi}, v{idx}, v{wi}")
assert all((i * 171) >> 11 == i // 12 for i in range(192))
assert all((i * 171) >> 9 == i // 3 for i in range(48))

def halfsum(A, r, t):
    A(f"v_mov_b32 v{t}, v{r}")
    A("s_nop 1")
    A(f"v_permlane32_swap_b32 v{r}, v{t}")
    A("s_nop 1")
    A(f"v_add_f32 v{r}, v{r}, v{t}")

def ln_final(s1, s2, t, nmean, var):
    return [f"v_mov_b32 v{t}, v{s1}", f"v_mov_b32 v{t+1}, v{s2}", "s_nop 1",
            f"v_permlane32_swap_b32 v{s1}, v{t}", f"v_permlane32_swap_b32 v{s2}, v{t+1}", "s_nop 1",
            f"v_add_f32 v{s1}, v{s1}, v{t}", f"v_add_f32 v{s2}, v{s2}, v{t+1}",
            f"v_mul_f32 v{nmean}, {f32(-1.0/512)}, v{s1}", f"v_mul_f32 v{s2}, {f32(1.0/512)}, v{s2}",
            f"v_fma_f32 v{var}, -v{nmean}, v{nmean}, v{s2}", f"v_max_f32 v{var}, 0, v{var}",
            f"v_add_f32 v{var}, {f32(1e-5)}, v{var}"]

def pk_fma(d, a, b, c, bc=()):
    hi = [0 if i in bc else 1 for i in range(3)]
    s = f"v_pk_fma_f32 {vr(d,2)}, {vr(a,2)}, {vr(b,2)}, {vr(c,2)}"
    if bc: s += f" op_sel_hi:[{hi[0]},{hi[1]},{hi[2]}]"
    return s
def pk_mul(d, a, b, bc=()):
    hi = [0 if i in bc else 1 for i in range(2)]
    s = f"v_pk_mul_f32 {vr(d,2)}, {vr(a,2)}, {vr(b,2)}"
    if bc: s += f" op_sel_hi:[{hi[0]},{hi[1]}]"
    return s
def pk_add(d, a, b):
    return f"v_pk_add_f32 {vr(d,2)}, {vr(a,2)}, {vr(b,2)}"

def swap23(A, d, t):
    A(f"v_and_b32 v{d}, 0x33, v0")
    A(f"v_bfe_u32 v{t}, v0, 2, 1")
    A(f"v_lshl_or_b32 v{d}, v{t}, 3, v{d}")
    A(f"v_bfe_u32 v{t}, v0, 3, 1")
    A(f"v_lshl_or_b32 v{d}, v{t}, 2, v{d}")
    A(f"v_lshlrev_b32 v{d}, 4, v{d}")

POS2 = [3 * BLK + 4096 * n for n in range(20)] + [9 * BLK + 4096 * n for n in range(3)] + \
       [8 * BLK + 4096 * n for n in range(4)] + [4096 * n for n in range(12)] + [3 * BLK + 4096 * n for n in range(4)]
assert len(POS2) == 43 and POS2[19] + 4096 <= 8 * BLK and POS2[22] + 4096 <= SCR and POS2[3] + 4096 <= 4 * BLK
def slot13(b): return (b if b < 9 else b - 9) * BLK

WB, XB = 0, 5 * 12288
sRB, sCB = 48, 49

def prologue(A):
    A.raw(f".globl {KNAME}")
    A.raw(".p2align 8")
    A.raw(f".type {KNAME},@function")
    A.label(KNAME)
    ET = int(E("ET", 2))
    A(f"s_lshr_b32 s{S_J}, s2, 3")
    A(f"s_cmp_ge_u32 s{S_J}, 32")
    A("s_cbranch_scc1 L_end")
    stamp(A, "start")
    if ET:
        A("s_load_dwordx4 s[68:71], s[0:1], 0")
        A(f"s_and_b32 s{S_XCD}, s2, 7")
        A(f"s_lshl_b32 s62, s{S_XCD}, 7")
        A(f"s_lshl_b32 s63, s{S_J}, 16")
        A("s_add_u32 s63, s63, s62")
        A(f"s_mul_i32 s61, s{S_J}, 49152")
        A("s_add_u32 s62, s62, s61")
        A("v_lshl_add_u32 v2, v0, 10, s63")
        A("v_subrev_u32 v3, 64, v0")
        A("v_cmp_gt_u32 vcc, 64, v0")
        A("v_cmp_gt_u32 s[64:65], 48, v3")
        A("v_lshl_add_u32 v3, v3, 10, s62")
        if ET == 2:
            A("s_or_b64 s[58:59], vcc, s[64:65]")
            A("s_cbranch_scc0 L_et")
        A("s_mov_b64 exec, vcc")
        A("s_waitcnt lgkmcnt(0)")
        A("global_load_dword v4, v2, s[68:69]")
        A("s_mov_b64 exec, s[64:65]")
        A("global_load_dword v5, v3, s[70:71]")
        A("s_mov_b64 exec, -1")
        A.label("L_et")
        stamp(A, "et")
    ptrs = [(72, S_WS, WS_BYTES), (0, S_X, 2048 * 1024), (8, S_WQ, 512 * 3072), (16, S_WO, 512 * 1024),
            (32, S_W1, 512 * 2752), (40, S_W3, 512 * 2752), (48, S_W2, 1376 * 1024), (56, S_OUT, 2048 * 1024), (64, S_DBG, 256)]
    ptrs = ptrs[1:3] + ptrs[0:1] + ptrs[3:]
    for n, (off, d, nb) in enumerate(ptrs):
        A(f"s_load_dwordx2 s[{d}:{d+1}], s[0:1], {off}")
    if E("KW"):
        A("s_waitcnt lgkmcnt(0)")
        stamp(A, "kw")
    A("v_lshrrev_b32 v1, 6, v0")
    A("v_and_b32 v0, 63, v0")
    A(f"v_readfirstlane_b32 s{S_W}, v1")
    if not ET: A(f"s_and_b32 s{S_XCD}, s2, 7")
    A(f"v_lshlrev_b32 v{vL16}, 4, v0")
    A(f"s_lshr_b32 s{sRB}, s{S_J}, 1")
    A(f"s_and_b32 s{sCB}, s{S_J}, 1")
    A(f"s_lshl1_add_u32 s{sCB}, s{S_XCD}, s{sCB}")
    A(f"s_mov_b32 s{S_MODE}, 0")
    for n, (off, d, nb) in enumerate(ptrs):
        A(f"s_mov_b32 s{d+2}, {hex(nb)}")
        A(f"s_mov_b32 s{d+3}, 0x00020000")
    A(f"s_mov_b32 s{S_TO}, {TOLIM}")
    stamp(A, "p1")
    def fin():
        A("s_waitcnt lgkmcnt(0)")
        A(f"s_load_dwordx2 s[6:7], s[{S_WS}:{S_WS+1}], {NONCE}")
    return fin

def k1_wa(A, vWa, t0, t1):
    A(f"v_lshrrev_b32 v{t0}, 5, v0")
    A(f"v_lshlrev_b32 v{t0}, 3, v{t0}")
    A(f"v_bfe_u32 v{t1}, v0, 2, 2")
    A(f"v_add_u32 v{t0}, v{t0}, v{t1}")
    A(f"v_mul_u32_u24 v{vWa}, 192, v{t0}")
    A(f"v_bfe_u32 v{t1}, v0, 4, 1")
    A(f"v_lshl_add_u32 v{vWa}, v{t1}, 5, v{vWa}")
    A(f"v_and_b32 v{t1}, 3, v0")
    A(f"v_lshl_add_u32 v{vWa}, v{t1}, 3, v{vWa}")

def c_k1(A, fin):
    R = Regs(8)
    vWa = R.alloc(); vOnes = R.alloc(); vt = R.alloc(); vh = R.alloc(); tm = R.alloc(3)
    vXa = R.alloc(4); vXb = R.alloc(4)
    s1 = R.alloc(2, 2); s2 = R.alloc(2, 2)
    acc = [R.alloc(16, 4) for _ in range(3)]
    XF = [R.alloc(4, 4) for _ in range(3)]
    WF = [[R.alloc(4, 4) for _ in range(3)] for _ in range(3)]
    T = R.alloc(4, 2); nm = R.alloc(2, 2); rs = R.alloc(2, 2); rq = R.alloc(2, 2); csv = R.alloc(6, 2)
    CS = R.alloc(48, 4); VS = R.alloc(32, 4); PK = R.alloc(24, 4)
    vA = R.alloc(4); vVo = R.alloc()
    TX = int(E("TX", 12 if int(E("ET", 1)) else 15))
    if TX & 4:
        with only(A, S_W, 2):
            A("s_getpc_b64 s[58:59]")
            A.label("L_pc")
            A(f"s_mul_i32 s60, s{S_J}, 12")
            A(f"v_add_u32 v{tm}, s60, v0")
            A(f"v_lshlrev_b32 v{tm}, 7, v{tm}")
            A(f"v_min_u32 v{tm}, {E('PFE','L_last')}-{KNAME}, v{tm}")
            A(f"s_sub_u32 s58, s58, L_pc-{KNAME}")
            A("s_subb_u32 s59, s59, 0")
            A(f"v_mov_b32 v{PK+1}, s59")
            A(f"v_add_co_u32 v{PK}, vcc, s58, v{tm}")
            A(f"v_addc_co_u32 v{PK+1}, vcc, 0, v{PK+1}, vcc")
            A("s_mov_b64 exec, 0xfff")
            A(f"global_load_dword v{PK+2}, {vr(PK,2)}, off")
            A("s_mov_b64 exec, -1")
    def touch():
        A(f"s_lshl_b32 s62, s{S_XCD}, 7")
        A(f"s_lshl_b32 s63, s{S_J}, 16")
        A("s_add_u32 s63, s63, s62")
        A(f"v_lshlrev_b32 v{VS}, 10, v0")
        A(f"s_mul_i32 s58, s{S_J}, {16*3072}")
        A("s_add_u32 s62, s62, s58")
        A(f"v_and_b32 v{VS+1}, 15, v0")
        A(f"v_mul_u32_u24 v{VS+1}, 3072, v{VS+1}")
        A(f"v_lshrrev_b32 v{VS+2}, 4, v0")
        A(f"v_lshl_add_u32 v{VS+1}, v{VS+2}, 10, v{VS+1}")
        if not E("TXD"): A("s_waitcnt lgkmcnt(0)")
        sk = A.newlabel("sk")
        if TX & 1:
            with only(A, S_W, 0):
                if E("TXS"):
                    A(f"s_cmp_lt_u32 s{S_XCD}, {E('TXS')}")
                    A(f"s_cbranch_scc1 {sk}")
                A(f"buffer_load_dword v{VS+3}, v{VS}, {SR(S_X)}, s63 offen")
        if TX & 2:
            with only(A, S_W, 1):
                if E("TXS"):
                    A(f"s_cmp_lt_u32 s{S_J}, {4*int(E('TXS'))}")
                    A(f"s_cbranch_scc1 {sk}")
                A(f"buffer_load_dword v{VS+3}, v{VS+1}, {SR(S_WQ)}, s62 offen")
        if TX & 8:
            with only(A, S_W, 3):
                A(f"s_lshl_b32 s58, s{S_J}, 16")
                A(f"s_add_u32 s59, s58, {OF}")
                A(f"v_lshlrev_b32 v{VS+2}, 21, v0")
                A("s_mov_b64 exec, 1")
                for n, sd in enumerate((S_WO, S_W1, S_W3, S_W2, S_OUT)):
                    A(f"buffer_load_dword v{VS+4+n}, off, {SR(sd)}, s58")
                A("s_mov_b64 exec, 0x1f")
                A(f"buffer_load_dword v{VS+9}, v{VS+2}, {SR(S_WS)}, s59 offen")
                A("s_mov_b64 exec, -1")
        A.label(sk)
        stamp(A, "tx")
    stamp(A, "c0")
    if TX & 11 and not E("TXD"): touch()
    k1_wa(A, vWa, tm, tm + 1)
    A(f"v_mov_b32 v{vOnes}, 0x3f803f80")
    A(f"v_and_b32 v{vt}, 31, v0")
    A(f"v_lshrrev_b32 v{vh}, 5, v0")
    A(f"v_bfe_u32 v{tm}, v0, 1, 3")
    A(f"s_lshl_b32 s50, s{S_W}, 12")
    A(f"s_add_u32 s50, s50, {XB}")
    A(f"v_lshlrev_b32 v{tm+1}, 7, v{vt}")
    A(f"v_add_u32 v{tm+1}, s50, v{tm+1}")
    for i in range(4):
        A(f"v_or_b32 v{vXa+i}, {2*i}, v{vh}")
        A(f"v_xor_b32 v{vXa+i}, v{vXa+i}, v{tm}")
        A(f"v_lshl_add_u32 v{vXa+i}, v{vXa+i}, 4, v{tm+1}")
        A(f"v_add_u32 v{vXb+i}, 0x10000, v{vXa+i}")
    for r in (s1, s1 + 1, s2, s2 + 1):
        A(f"v_mov_b32 v{r}, 0")
    A(f"s_lshl_b32 s50, s{S_W}, 8")
    A(f"s_add_u32 s50, s50, {ST1}")
    A(f"v_lshl_add_u32 v{vA}, v0, 2, s50")
    A(f"v_lshl_add_u32 v{vA+1}, v{vh}, 4, s50")
    A(f"v_lshlrev_b32 v{vA+2}, 4, v{vh}")
    A(f"v_add_u32 v{vA+2}, {SC1}, v{vA+2}")
    A(f"v_lshlrev_b32 v{vA+3}, 2, v{vt}")
    A(f"v_add_u32 v{vA+3}, {SC1}, v{vA+3}")
    A(f"v_and_b32 v{vVo}, 15, v0")
    A(f"v_lshlrev_b32 v{vVo}, 4, v{vVo}")
    A(f"v_lshl_or_b32 v{vVo}, v{vh}, 8, v{vVo}")
    A(f"v_bfe_u32 v{tm}, v0, 4, 1")
    A(f"v_lshl_or_b32 v{vVo}, v{tm}, 16, v{vVo}")
    sRU, sB = 50, 51
    for r in range(4): A(f"v_mov_b32 v{CS+r}, -1")
    group_flag_addr(A, 6)
    A(f"s_lshl_b32 s{sRU}, s{sRB}, 2")
    A(f"s_add_u32 s{sRU}, s{sRU}, s{S_W}")
    A(f"s_lshl_b32 s60, s{sCB}, 17")
    A(f"s_lshl_b32 s61, s{sRU}, 10")
    A("s_add_u32 s60, s60, s61")
    for i, o in enumerate((0, 0x10000, 0x200000, 0x210000, 0x400000)):
        A(f"s_add_u32 s{sB+i}, s60, {QKV + o}")
    def qkv_store(u, g, r):
        if u == 2: return f"buffer_store_dwordx4 {vr(r,4)}, v{vVo}, {SR(S_WS)}, s{sB+4} offen offset:{512*g}"
        return f"buffer_store_dwordx4 {vr(r,4)}, v{vL16}, {SR(S_WS)}, s{sB+2*u+g} offen"
    fin()
    if TX & 11 and E("TXD"): touch()
    def poison1():
        for u in range(0 if E("NOP1") else 3):
            for g in range(2): A(qkv_store(u, g, CS))
    PZ = int(E("PZ", 0))
    stamp(A, "abi")
    if BI: A("s_barrier")
    if PZ == 0: poison1()
    A(f"s_lshl_b32 s57, s{S_XCD}, 5")
    A(f"s_add_u32 s57, s57, s{S_J}")
    A(f"s_mul_i32 s57, s57, {FS}")
    A(f"s_add_u32 s57, s57, {FL1}")
    A("s_waitcnt lgkmcnt(0)")
    make_T(A)
    def reads(s):
        c, sub, b = s >> 2, s & 3, s % 3
        slot = c % 5
        out = []
        if slot < 4: out.append(f"ds_read_b128 {vr(XF[b],4)}, v{vXa+sub} offset:{slot*16384}")
        else: out.append(f"ds_read_b128 {vr(XF[b],4)}, v{vXb+sub}")
        for u in range(3):
            for sec in range(2):
                off = WB + slot * 12288 + (16 * sub + 4 * sec) * 192 + 64 * u
                out.append(f"ds_read_b64_tr_b16 {vr(WF[b][u]+2*sec,2)}, v{vWa} offset:{off}")
        return out
    A("s_barrier")
    stamp(A, "b0")
    for l in reads(0) + reads(1): A(l)
    if PZ == 1: poison1()
    PB, PC = int(E("PB", 3)), int(E("PC", 6))
    for pat in ((0, 0, 1),):
        for s in range(32):
            b = s % 3
            nx = reads(s + 2) if s + 2 < 32 else []
            if nx and (s + 2) % 4 == 0:
                stamp(A, f"k1a{(s+2)//4}")
                if (s + 2) // 4 == PB: A("s_waitcnt vmcnt(0)")
                A("s_barrier")
                stamp(A, f"k1b{(s+2)//4}")
                if (s + 2) // 4 == PB:
                    with only(A, S_W, 0): flag_store(A, 57, 2, S_TX)
                if (s + 2) // 4 == PC: A(flag_load(4, 6, SCF))
                if (s + 2) // 4 == PZ - 1: poison1()
            A(f"s_waitcnt lgkmcnt({7 if s < 31 else 0})")
            dots = []
            for r in range(4):
                dots.append(f"v_dot2_f32_bf16 v{s1+(r&1)}, v{XF[b]+r}, v{vOnes}, v{s1+(r&1)}")
                dots.append(f"v_dot2_f32_bf16 v{s2+(r&1)}, v{XF[b]+r}, v{XF[b]+r}, v{s2+(r&1)}")
            c0 = 0 if s == 0 else None
            for u in range(3):
                A(mfma(acc[u], XF[b], WF[b][u], c0) if pat[u] else mfma(acc[u], WF[b][u], XF[b], c0))
                for l in (nx[0:4], nx[4:7], [] if E("NODOT") else dots)[u]: A(l)
        stamp(A, "k1end")
        A("s_nop 2")
        A(f"v_add_f32 v{s1}, v{s1}, v{s1+1}")
        A(f"v_add_f32 v{s2}, v{s2}, v{s2+1}")
        for l in ln_final(s1, s2, T, nm, rs): A(l)
        A(f"v_rsq_f32 v{rs}, v{rs}")
        if any(pat):
            A("v_cmp_gt_u32 vcc, 32, v0")
            A("s_nop 1")
            A(f"v_cndmask_b32 v{T}, v{nm}, v{rs}, vcc")
            A(f"ds_write_b32 v{vA}, v{T}")
            A("s_waitcnt lgkmcnt(0)")
            for g in range(4):
                A(f"ds_read_b128 {vr(VS+4*g,4)}, v{vA+1} offset:{32*g}")
                A(f"ds_read_b128 {vr(VS+16+4*g,4)}, v{vA+1} offset:{128+32*g}")
            A("s_waitcnt lgkmcnt(0)")
        A("s_waitcnt vmcnt(0)")
        group_check1(A, 4, 6, [qkv_store(u, g, CS) for u in range(3) for g in range(2)])
        stamp(A, "acs")
        A("s_barrier")
        stamp(A, "bcs")
        LG = Q("lgkmcnt", A)
        order = (1, 2, 0)
        for u in order:
            if pat[u]:
                LG.issue(u, f"ds_read_b32 v{csv+2*u}, v{vA+3} offset:{128*u}")
            else:
                for g in range(4):
                    LG.issue(u, f"ds_read_b128 {vr(CS+16*u+4*g,4)}, v{vA+2} offset:{128*u+32*g}")
        A(f"v_mul_f32 v{rq}, {f32(0.25*LOG2E)}, v{rs}")
        for u in order:
            a = acc[u]
            LG.wait([u])
            for r in range(0, 16, 2):
                A(pk_fma(a + r, VS + 16 + r, csv + 2 * u, a + r, bc=(1,)) if pat[u] else pk_fma(a + r, CS + 16 * u + r, nm, a + r, bc=(1,)))
            for r in range(0, 16, 2):
                A(pk_mul(a + r, a + r, VS + r) if pat[u] else pk_mul(a + r, a + r, rs if u else rq, bc=(1,)))
            for r in range(8):
                A(f"v_cvt_pk_bf16_f32 v{PK+8*u+r}, v{a+2*r}, v{a+2*r+1}")
            for g in range(2): A(clamp(PK + 8 * u + 4 * g + 3))
            stamp(A, f"st{u}")
            lstore(A, None, None, [qkv_store(u, g, PK + 8 * u + 4 * g) for g in range(2)])
            if u == 2 and BKV: A("s_barrier")
    stamp(A, "k1pub")

def attn_ids(A, sHead, sQB):
    if E("XR", "1") == "1":
        A(f"s_and_b32 s{sHead}, s{S_J}, 1")
        A(f"s_lshl1_add_u32 s{sHead}, s{S_XCD}, s{sHead}")
        A(f"s_bfe_u32 s{sQB}, s{S_J}, 0x10001")
        A(f"s_lshl1_add_u32 s{sHead}, s{sHead}, s{sQB}")
    else:
        A(f"s_lshl_b32 s{sHead}, s{S_XCD}, 2")
        A(f"s_and_b32 s{sQB}, s{S_J}, 3")
        A(f"s_add_u32 s{sHead}, s{sHead}, s{sQB}")
    A(f"s_lshr_b32 s{sQB}, s{S_J}, 2")

def g64_ids(A, sRU, sKH, sCU, t, S_W=S_W):
    A(f"s_lshl_b32 s{sRU}, s{S_XCD}, 2")
    A(f"s_and_b32 s{t}, s{S_J}, 3")
    A(f"s_add_u32 s{sRU}, s{sRU}, s{t}")
    A(f"s_lshl_b32 s{sRU}, s{sRU}, 1")
    A(f"s_and_b32 s{t}, s{S_W}, 1")
    A(f"s_add_u32 s{sRU}, s{sRU}, s{t}")
    A(f"s_lshr_b32 s{sKH}, s{S_W}, 1")
    A(f"s_lshr_b32 s{sCU}, s{S_J}, 2")
    A(f"s_lshl_b32 s{sCU}, s{sCU}, 1")
    A(f"s_add_u32 s{sCU}, s{sCU}, s{sKH}")
sRU5, sKH5, sCU5 = 60, 61, 62

def c_attn(A):
    sHead, sQB, sRU, sSlot, sTrip = 48, 49, 50, 51, 52
    R = Regs(16)
    vIdx = R.alloc(); vVl = R.alloc(); vK = R.alloc(2); vV = R.alloc(2); T = R.alloc(2, 2)
    Qa = R.alloc(4, 4); Qb = R.alloc(4, 4)
    Na = R.alloc(16, 4); Nb = R.alloc(16, 4)
    Oa = R.alloc(16, 4); Ob = R.alloc(16, 4)
    Sa = R.alloc(16, 4); Sb = R.alloc(16, 4)
    K = [R.alloc(4, 4), R.alloc(4, 4)]
    V = [R.alloc(8, 4), R.alloc(8, 4)]
    attn_ids(A, sHead, sQB)
    A(f"s_lshl_b32 s{sRU}, s{sQB}, 3")
    A(f"s_lshl_b32 s53, s{S_W}, 1")
    A(f"s_add_u32 s{sRU}, s{sRU}, s53")
    A(f"s_lshl_b32 s54, s{sHead}, 16")
    A(f"s_lshl_b32 s55, s{sRU}, 10")
    A("s_add_u32 s54, s54, s55")
    A(f"s_add_u32 s54, s54, {QKV}")
    QE = int(E("QE", 1))
    VM = Q("vmcnt", A)
    LQ = Ld(A, VM, 54, None, "q")
    def qload():
        LQ.load("q", 4, Qa, vL16, 0)
        LQ.load("q", 4, Qb, vL16, 1024)
        stamp(A, "qiss")
    if QE: qload()
    g64_ids(A, sRU5, sKH5, sCU5, 55)
    A(f"v_and_b32 v{T+1}, 31, v0")
    A(f"v_lshlrev_b32 v5, 10, v{T+1}")
    A(f"v_lshrrev_b32 v{T+1}, 5, v0")
    A(f"v_lshl_add_u32 v5, v{T+1}, 3, v5")
    A(f"s_lshl_b32 s55, s{sRU5}, 15")
    A(f"s_lshl_b32 s56, s{sCU5}, 6")
    A("s_add_u32 s55, s55, s56")
    A(f"v_mov_b32 v{vIdx}, 0xdddddddd")
    A(f"v_and_b32 v{vVl}, 15, v0")
    A(f"v_lshlrev_b32 v{vVl}, 4, v{vVl}")
    A(f"v_lshl_add_u32 v{vVl}, v{T+1}, 8, v{vVl}")
    A(f"v_and_b32 v{T+1}, 16, v0")
    A(f"v_cmp_eq_u32 vcc, 0, v{T+1}")
    A(f"v_and_b32 v{T}, 0x1b, v0")
    A(f"v_cmp_eq_u32 s[56:57], 16, v{T}")
    A(f"v_mov_b32 v{T}, 512")
    A(f"v_mov_b32 v{T+1}, 528")
    A(f"v_cndmask_b32 v{T+1}, v{T+1}, v{T}, s[56:57]")
    for r in range(16):
        A(f"v_mov_b32 v{Oa+r}, 0")
        A(f"v_mov_b32 v{Ob+r}, 0")
        if r >= 8: A(f"v_mov_b32 v{Sb+r}, 0")
        if r < 4: A(f"v_mov_b32 v{V[1]+4+r}, 0")
    A(f"v_cndmask_b32 v{vVl}, v{T+1}, v{vVl}, vcc")
    for q in range(2):
        A(f"v_add_u32 v{vV+q}, {RING+q*SEG}, v{vVl}")
    A(f"s_mov_b32 s{sSlot}, {RING+SEG}")
    A(f"s_mov_b32 s{sTrip}, 0")
    def resload():
        for g in range(4):
            A(f"buffer_load_dwordx2 {vr(RES+2*g,2)}, v5, {SR(S_X)}, s55 offen offset:{16*g}")
    for q in range(2):
        A(f"v_add_u32 v{vK+q}, {RING+q*SEG}, v{vL16}")
    RL = int(E("RL", 2))
    if not QE: qload()
    VM.drain()
    stamp(A, "qland")
    sent_check(A, *group_check(["q"], [LQ]))
    if RL == 1: resload()
    stamp(A, "qflag")
    A("s_barrier")
    stamp(A, "bai")
    A(f"ds_read_b128 {vr(K[0],4)}, v{vK} offset:{KO}")
    A(f"ds_read_b128 {vr(V[0],4)}, v{vV}")
    A(f"ds_read_b128 {vr(V[0]+4,4)}, v{vV} offset:{VH}")
    A(f"ds_read_b128 {vr(K[1],4)}, v{vK} offset:{TILE+KO}")
    A("s_waitcnt lgkmcnt(3)")
    A(mfma(Na, K[0], Qa, 0))
    A(mfma(Nb, K[0], Qb, 0))
    if RL == 2: resload()
    if E("T0") == "23":
        A("s_lshl_b32 s57, s2, 2")
        A(f"s_add_u32 s57, s57, s{S_W}")
        A("s_mul_i32 s57, s57, 1408")
        A(f"v_lshlrev_b32 v5, 6, v0")
        A("s_mov_b64 exec, 0x3fffff")
        for n, sd in enumerate((S_WO, S_W1, S_W3, S_W2)):
            A(f"buffer_load_dword v{6+(n&1)}, v5, {SR(sd)}, s57 offen")
        A("s_mov_b64 exec, -1")
    A("s_nop 7")
    A("s_nop 2")
    def rowmax(N):
        A(f"v_max3_f32 v{T}, v{N}, v{N+1}, v{N+2}")
        A(f"v_max3_f32 v{T+1}, v{N+3}, v{N+4}, v{N+5}")
        for r in range(6, 14, 4):
            A(f"v_max3_f32 v{T}, v{N+r}, v{N+r+1}, v{T}")
            A(f"v_max3_f32 v{T+1}, v{N+r+2}, v{N+r+3}, v{T+1}")
        A(f"v_max3_f32 v{T}, v{N+14}, v{N+15}, v{T}")
        A(f"v_max_f32 v{T}, v{T}, v{T+1}")
        A(f"v_mov_b32 v{T+1}, v{T}")
        A("s_nop 1")
        A(f"v_permlane32_swap_b32 v{T}, v{T+1}")
        A("s_nop 1")
        A(f"v_max_f32 v{T}, v{T}, v{T+1}")
        A(f"v_sub_f32 v{T}, 0, v{T}")
        for r in range(16):
            A(f"v_mov_b32 v{N+r}, v{T}")
    rowmax(Na)
    A("s_nop 1")
    A(mfma(Sa, K[0], Qa, Na))
    rowmax(Nb)
    def ex(S, lo, hi):
        for r in range(lo, hi): A(f"v_exp_f32 v{S+r}, v{S+r}")
    A.raw(".p2align 6")
    A.label("L_attn")
    p1, p2, p3 = 2, 7, 12
    for q in range(2):
        for t in range(8):
            c = t & 1; n = c ^ 1
            va, vo = (vV + q, TILE * (t + 1)) if t + 1 < 8 else (vV + (q ^ 1), 0)
            ka, ko = (vK + q, TILE * (t + 2)) if t + 2 < 8 else (vK + (q ^ 1), TILE * (t + 2 - 8))
            ex(Sa, 0, p1)
            A(smfmac(Ob, V[n] + 4, Sb + 8, vIdx))
            A(f"ds_read_b128 {vr(V[n],4)}, v{va} offset:{vo}")
            ex(Sa, p1, p2)
            A(mfma(Sb, K[c], Qb, Nb))
            A(f"ds_read_b128 {vr(V[n]+4,4)}, v{va} offset:{vo+VH}")
            ex(Sa, p2, p3)
            A("s_waitcnt lgkmcnt(2)")
            A(smfmac(Oa, V[c], Sa, vIdx))
            if t == 6: A("s_barrier")
            A(f"ds_read_b128 {vr(K[c],4)}, v{ka} offset:{ko+KO}")
            ex(Sa, p3, 16)
            ex(Sb, 0, p1)
            A(smfmac(Oa, V[c] + 4, Sa + 8, vIdx))
            if t == 7:
                A(f"s_add_u32 s{sSlot}, s{sSlot}, {SEG}")
                A(f"s_cmp_eq_u32 s{sSlot}, {RING+3*SEG}")
                A(f"s_cselect_b32 s{sSlot}, {RING}, s{sSlot}")
            ex(Sb, p1, p2)
            A(mfma(Sa, K[n], Qa, Na))
            if t == 7:
                A(f"v_add_u32 v{vK+q}, s{sSlot}, v{vL16}")
                A(f"v_add_u32 v{vV+q}, s{sSlot}, v{vVl}")
            ex(Sb, p2, p3)
            A(smfmac(Ob, V[c], Sb, vIdx))
            if t == 7 and q == 1:
                A(f"s_add_u32 s{sTrip}, s{sTrip}, 1")
                A(f"s_cmp_lt_u32 s{sTrip}, 4")
            ex(Sb, p3, 16)
    A("s_cbranch_scc1 L_attn")
    A("s_nop 1")
    A(smfmac(Ob, V[1] + 4, Sb + 8, vIdx))
    A("s_waitcnt lgkmcnt(0)")
    A("s_barrier")
    stamp(A, "be")
    A(f"s_lshl_b32 s53, s{sRU}, 15")
    A(f"s_lshl_b32 s54, s{sHead}, 10")
    A("s_add_u32 s53, s53, s54")
    A(f"s_add_u32 s53, s53, {OF}")
    A("s_add_u32 s55, s53, 0x8000")
    A(f"v_mov_b32 v{T}, {f32(2.0**30)}")
    for nm_, O, Qx, so in (("a", Oa, Qa, 53), ("b", Ob, Qb, 55)):
        A(f"v_cmp_nge_f32 vcc, v{T}, v{O+8}")
        A(f"s_cbranch_vccnz L_fb_{nm_}")
        A.label(f"L_fz_{nm_}")
        A(f"v_rcp_f32 v{vK}, v{O+8}")
        A("s_nop 0")
        for r in range(0, 8, 2):
            A(pk_mul(O + r, O + r, vK, bc=(1,)))
        for r in range(4):
            A(f"v_cvt_pk_bf16_f32 v{O+12+r}, v{O+2*r}, v{O+2*r+1}")
        A(clamp(O + 15))
        A(f"buffer_store_dwordx4 {vr(O+12,4)}, v{vL16}, {SR(S_WS)}, s{so} offen sc1")
        def ool(B, nm_=nm_, O=O, Qx=Qx):
            B.label(f"L_fb_{nm_}")
            swap23(B, vK, vK + 1)
            B(f"s_lshl_b32 s57, s{sHead}, 16")
            B(f"s_add_u32 s57, s57, {QKV + 0x200000}")
            B("s_mov_b32 s58, s57")
            B(f"v_mov_b32 v{Nb}, 0xff800000")
            B(f"s_mov_b32 s{sTrip}, 0")
            B.label(f"L_fb1_{nm_}")
            B(f"buffer_load_dwordx4 {vr(K[0],4)}, v{vK}, {SR(S_WS)}, s58 offen sc1")
            B("s_waitcnt vmcnt(0)")
            B(mfma(Sa, K[0], Qx, 0))
            B("s_nop 7")
            B("s_nop 7")
            for r in range(0, 16, 2):
                B(f"v_max3_f32 v{Nb}, v{Sa+r}, v{Sa+r+1}, v{Nb}")
            B("s_add_u32 s58, s58, 1024")
            B(f"s_add_u32 s{sTrip}, s{sTrip}, 1")
            B(f"s_cmp_lt_u32 s{sTrip}, 64")
            B(f"s_cbranch_scc1 L_fb1_{nm_}")
            B(f"v_mov_b32 v{Nb+1}, v{Nb}")
            B("s_nop 1")
            B(f"v_permlane32_swap_b32 v{Nb}, v{Nb+1}")
            B("s_nop 1")
            B(f"v_max_f32 v{Nb}, v{Nb}, v{Nb+1}")
            B(f"v_sub_f32 v{Nb}, 0, v{Nb}")
            for r in range(16):
                B(f"v_mov_b32 v{Na+r}, v{Nb}")
                B(f"v_mov_b32 v{O+r}, 0")
            for r in range(8):
                B(f"v_mov_b32 v{V[0]+r}, 0x3f803f80")
            B("s_mov_b32 s58, s57")
            B(f"s_mov_b32 s{sTrip}, 0")
            B("s_mov_b32 s64, 0x0000ffff")
            B("s_mov_b32 s65, 0x0000ffff")
            B.label(f"L_fb2_{nm_}")
            B("s_add_u32 s59, s58, 0x200000")
            B(f"buffer_load_dwordx4 {vr(K[0],4)}, v{vK}, {SR(S_WS)}, s58 offen sc1")
            B("s_mov_b64 exec, s[64:65]")
            B(f"buffer_load_dwordx4 {vr(V[0],4)}, v{vVl}, {SR(S_WS)}, s59 offen sc1")
            B(f"buffer_load_dwordx4 {vr(V[0]+4,4)}, v{vVl}, {SR(S_WS)}, s59 offen offset:512 sc1")
            B("s_mov_b64 exec, -1")
            B("s_waitcnt vmcnt(0)")
            B(mfma(Sa, K[0], Qx, Na))
            B("s_nop 7")
            B("s_nop 7")
            for r in range(16): B(f"v_exp_f32 v{Sa+r}, v{Sa+r}")
            B("s_nop 1")
            B(smfmac(O, V[0], Sa, vIdx))
            B(smfmac(O, V[0] + 4, Sa + 8, vIdx))
            B("s_nop 7")
            B("s_add_u32 s58, s58, 1024")
            B(f"s_add_u32 s{sTrip}, s{sTrip}, 1")
            B(f"s_cmp_lt_u32 s{sTrip}, 64")
            B(f"s_cbranch_scc1 L_fb2_{nm_}")
            B("s_nop 7")
            B("s_nop 7")
            B(f"s_branch L_fz_{nm_}")
        OOL.append(ool)
    stamp(A, "opub")

def g64_addr(A, keep, send, t, base):
    A(f"v_lshrrev_b32 v{t}, 5, v0")
    A(f"v_lshlrev_b32 v{t}, 2, v{t}")
    A(f"v_bfe_u32 v{t+1}, v0, 2, 2")
    A(f"v_add_u32 v{t}, v{t}, v{t+1}")
    A(f"v_lshlrev_b32 v{t}, 7, v{t}")
    A(f"v_bfe_u32 v{t+1}, v0, 4, 1")
    A(f"v_lshl_add_u32 v{t}, v{t+1}, 5, v{t}")
    A(f"v_and_b32 v{t+1}, 3, v0")
    A(f"v_lshl_add_u32 v{t}, v{t+1}, 3, v{t}")
    A(f"v_bfe_u32 v{t+1}, v0, 3, 1")
    A(f"v_xor_b32 v{t+1}, s{sKH5}, v{t+1}")
    A(f"v_lshl_add_u32 v{t}, v{t+1}, 6, v{t}")
    A(f"v_xor_b32 v{t+1}, 64, v{t}")
    A(f"s_lshl_b32 s59, s{sKH5}, 11")
    if base: A(f"s_add_u32 s59, s59, {base}")
    A(f"v_add_u32 v{keep}, s59, v{t}")
    A(f"v_add_u32 v{send}, s59, v{t+1}")

def exchange(A, acc, UN, T, xch):
    A(f"s_lshl_b32 s59, s{S_W}, 12")
    A(f"s_add_u32 s58, s59, {xch}")
    A(f"v_add_u32 v{T}, s58, v{vL16}")
    A("s_xor_b32 s59, s59, 0x2000")
    A(f"s_add_u32 s59, s59, {xch}")
    A(f"v_add_u32 v{T+1}, s59, v{vL16}")
    for r in range(4):
        A(f"v_lshlrev_b32 v{UN+2*r}, 16, v{RES+r}")
        A(f"v_and_b32 v{UN+2*r+1}, 0xffff0000, v{RES+r}")
    for q in range(4):
        A(f"ds_write_b128 v{T}, {vr(acc[1]+4*q,4)} offset:{1024*q}")
    for r in range(4, 8):
        A(f"v_lshlrev_b32 v{UN+2*r}, 16, v{RES+r}")
        A(f"v_and_b32 v{UN+2*r+1}, 0xffff0000, v{RES+r}")
    A("s_waitcnt lgkmcnt(0)")
    A("s_barrier")
    for q in range(4):
        A(f"ds_read_b128 {vr(acc[1]+4*q,4)}, v{T+1} offset:{1024*q}")
    for r in range(0, 16, 2):
        A(pk_add(acc[0] + r, acc[0] + r, UN + r))

def c_k3(A):
    R = Regs(16)
    T = R.alloc(4, 2); vA = R.alloc(2); vSo = R.alloc()
    acc = [R.alloc(16, 4), R.alloc(16, 4)]
    WF = [[R.alloc(4, 4) for _ in range(2)] for _ in range(3)]
    R.n = 160
    AF = [R.alloc(4, 4) for _ in range(16)]
    A(f"s_lshl_b32 s48, s{sRU5}, 15")
    A(f"s_lshl_b32 s49, s{sKH5}, 10")
    A("s_add_u32 s48, s48, s49")
    A(f"s_add_u32 s48, s48, {OF}")
    g64_addr(A, vA, vA + 1, T, WOB)
    def reads(n):
        out = []
        for k in range(2):
            for sec in range(2):
                out.append(f"ds_read_b64_tr_b16 {vr(WF[n%3][k]+2*sec,2)}, v{vA+k} offset:{n*4096+sec*1024}")
        return out
    for l in reads(0) + reads(1): A(l)
    NS = 16
    VM = Q("vmcnt", A)
    LO = Ld(A, VM, 48, 49, "o")
    for n in range(NS): LO.load(n, 4, AF[n], vL16, 2048 * n)
    stamp(A, "oiss")
    A(f"s_lshl_b32 s50, s{sRU5}, 15")
    A(f"s_lshl_b32 s51, s{sCU5}, 11")
    A("s_add_u32 s50, s50, s51")
    A(f"s_add_u32 s50, s50, {HF}")
    A(f"s_lshl_b32 s51, s{sRU5}, 4")
    A(f"s_add_u32 s51, s51, s{sCU5}")
    A("s_lshl_b32 s51, s51, 8")
    A(f"s_add_u32 s51, s51, {ST2}")
    A(f"v_and_b32 v{vSo}, 31, v0")
    A(f"v_lshlrev_b32 v{vSo}, 3, v{vSo}")
    G3 = [int(x) for x in E("G3", "0,2,4,8,12,16").split(",")]
    for n in range(NS):
        nx = reads(n + 2) if n + 2 < NS else []
        if n in G3:
            g = list(range(n, G3[G3.index(n) + 1]))
            VM.wait(g)
            sent_check(A, *group_check(g, [LO]))
            if n == 0: stamp(A, "oflag")
        A(f"s_waitcnt lgkmcnt({4 if n < NS-1 else 0})")
        c0 = 0 if n == 0 else None
        A(mfma(acc[0], WF[n % 3][0], AF[n], c0))
        for l in nx[0:2]: A(l)
        A(mfma(acc[1], WF[n % 3][1], AF[n], c0))
        for l in nx[2:4]: A(l)
    stamp(A, "a30")
    A("s_barrier")
    stamp(A, "b30")
    UN = AF[0]
    exchange(A, acc, UN, T, XCH3)
    a = acc[0]
    for q in range(4):
        A(f"s_waitcnt lgkmcnt({3-q})")
        A(pk_add(a + 4 * q, a + 4 * q, acc[1] + 4 * q))
        A(pk_add(a + 4 * q + 2, a + 4 * q + 2, acc[1] + 4 * q + 2))
    for r in range(8):
        A(f"v_cvt_pk_bf16_f32 v{RES+r}, v{a+2*r}, v{a+2*r+1}")
    for g in range(2): A(clamp(RES + 4 * g + 3))
    lstore(A, None, None, [f"buffer_store_dwordx4 {vr(RES+4*g,4)}, v{vL16}, {SR(S_WS)}, s50 offen offset:{1024*g}" for g in range(2)])
    sq = acc[1]
    for r in range(0, 16, 2):
        A(pk_mul(sq + r, a + r, a + r))
    for w in (8, 4, 2):
        for r in range(0, w, 2):
            A(pk_add(a + r, a + r, a + w + r))
            A(pk_add(sq + r, sq + r, sq + w + r))
    A(f"v_add_f32 v{T}, v{a}, v{a+1}")
    A(f"v_add_f32 v{T+1}, v{sq}, v{sq+1}")
    A(f"v_mov_b32 v{T+2}, v{T}")
    A(f"v_mov_b32 v{T+3}, v{T+1}")
    A("s_nop 1")
    A(f"v_permlane32_swap_b32 v{T}, v{T+2}")
    A(f"v_permlane32_swap_b32 v{T+1}, v{T+3}")
    A("s_nop 1")
    A(pk_add(T, T, T + 2))
    A(clamp(T + 1))
    lstore(A, None, None, [f"buffer_store_dwordx2 {vr(T,2)}, v{vSo}, {SR(S_WS)}, s51 offen"])
    stamp(A, "hpub")

def k4_ids(A, sRU, sC, sw):
    A(f"s_and_b32 s58, s{S_J}, 1")
    A(f"s_lshl1_add_u32 s{sRU}, s{S_XCD}, s58")
    A(f"s_lshl2_add_u32 s{sRU}, s{sRU}, s{sw}")
    A(f"s_lshr_b32 s{sC}, s{S_J}, 1")
def g_offsets(A, sRU, sC, sGo, t=58):
    A(f"s_mul_i32 s{t}, s{sRU}, {86*1024}")
    A(f"s_lshl_b32 s{t+1}, s{sC}, 11")
    A(f"s_add_u32 s{t}, s{t}, s{t+1}")
    for p in range(3): A(f"s_add_u32 s{sGo+p}, s{t}, {GF + 16*2048*p}")
    A(f"s_lshl_b32 s{t}, s{sC}, 6")
    A(f"s_add_u32 s{t}, s{t}, s{sRU}")
    A(f"s_lshl_b32 s{t}, s{t}, 11")
    A(f"s_add_u32 s{t}, s{t}, {(DUMMY - 11*64*2048) & 0xffffffff}")
    A(f"s_cmp_gt_u32 s{sC}, 10")
    A(f"s_cselect_b32 s{sGo+2}, s{t}, s{sGo+2}")

def c_k45(A):
    H = [16 + 4 * i for i in range(32)]
    acc = [[144, 160], [176, 192]]
    WF = [[208 + 8 * b + 4 * u for u in range(2)] for b in range(3)]
    CS, EE = 232, 240
    nm, var, rl = 248, 250, 252
    vWa = [249, 251, 253]; vCS, vSt = 254, 255
    sRU, sC, sAo, sSo, sGo, sCur, sG5 = 48, 49, 50, 51, 53, 56, 57
    k4_ids(A, sRU, sC, S_W)
    A(f"s_lshl_b32 s{sAo}, s{sRU}, 15")
    A(f"s_add_u32 s{sAo}, s{sAo}, {HF}")
    A(f"s_lshl_b32 s{sSo}, s{sRU}, 12")
    A(f"s_add_u32 s{sSo}, s{sSo}, {ST2}")
    VM = Q("vmcnt", A); LG = Q("lgkmcnt", A)
    LH = Ld(A, VM, sAo, sCur, "h"); LS = Ld(A, VM, sSo, None, "h"); LGn = Ld(A, VM, sG5, sCur, "g")
    SD = acc[1][0]
    HP, HE = int(E("HP", 12)), int(E("HE", 1))
    def hload(s): LH.load(("H", s), 4, H[s], vL16, 1024 * s)
    def hfirst():
        for s in range(HP): hload(s)
        stamp(A, "hiss")
    if HE: hfirst()
    g_offsets(A, sRU, sC, sGo)
    A(f"s_mul_i32 s{sG5}, s{sRU5}, {86*1024}")
    A(f"s_lshl_b32 s58, s{sKH5}, 10")
    A(f"s_add_u32 s{sG5}, s{sG5}, s58")
    A(f"s_add_u32 s{sG5}, s{sG5}, {GF}")
    t = CS
    A(f"v_lshrrev_b32 v{t}, 5, v0")
    A(f"v_lshlrev_b32 v{vCS}, 4, v{t}")
    A(f"v_add_u32 v{vCS}, {SC4}, v{vCS}")
    A(f"v_lshlrev_b32 v{vSt}, 11, v{t}")
    A(f"v_and_b32 v{t+1}, 31, v0")
    A(f"v_lshl_add_u32 v{vSt}, v{t+1}, 3, v{vSt}")
    A(f"v_lshlrev_b32 v{t}, 2, v{t}")
    A(f"v_bfe_u32 v{t+1}, v0, 2, 2")
    A(f"v_add_u32 v{t}, v{t}, v{t+1}")
    A(f"v_lshlrev_b32 v{t}, 6, v{t}")
    A(f"v_bfe_u32 v{t+1}, v0, 4, 1")
    A(f"v_mul_u32_u24 v{t+1}, 8224, v{t+1}")
    A(f"v_add_u32 v{t}, v{t}, v{t+1}")
    A(f"v_and_b32 v{t+1}, 3, v0")
    A(f"v_lshl_add_u32 v{vWa[0]}, v{t+1}, 3, v{t}")
    A(f"v_add_u32 v{vWa[1]}, 0x10000, v{vWa[0]}")
    A(f"v_add_u32 v{vWa[2]}, 0x20000, v{vWa[0]}")
    g64_addr(A, 6, 7, 208, 0)
    if not HE: hfirst()
    for i in range(8): LS.load("st", 2, SD + 2 * i, vSt, 256 * i)
    stamp(A, "a40")
    A("s_barrier")
    stamp(A, "b40")
    def reads(S):
        p, s = divmod(S, 32)
        out = []
        for u in range(2):
            for sec in range(2):
                o = slot13(4 * p + (s >> 3)) + (s & 7) * 1024 + sec * 512 + 32 * u
                out.append((("W", S), f"ds_read_b64_tr_b16 {vr(WF[S%3][u]+2*sec,2)}, v{vWa[o>>16]} offset:{o&0xffff}"))
        return out
    for tg, l in reads(0) + reads(1): LG.issue(tg, l)

    def V(s, c=4): return (c, lambda: None if E("NOFILL") else A(s))
    def stats_items():
        it = [(0, lambda: VM.wait(["st"]))]
        red = sent_reduce([SD + 2 * i + 1 for i in range(8)], vP + 1)
        for l in red[:-1]: it.append(V(l))
        it.append((8, lambda: (A(red[-1]), sent_branch(A, *group_check(["st"], [LH, LS]), t=vP + 1))))
        for w in (8, 4, 2):
            for r in range(w): it.append(V(f"v_add_f32 v{SD+r}, v{SD+r}, v{SD+w+r}"))
        for l in ln_final(SD, SD + 1, SD + 2, nm, var): it.append(V(l))
        it.append(V(f"v_rsq_f32 v{rl}, v{var}", 8))
        it.append(V("s_nop 0"))
        it.append(V(f"v_mul_f32 v{rl}, {f32(-LOG2E)}, v{rl}"))
        return it
    def cs_reads(U, tag):
        for g in range(2): LG.issue(tag, f"ds_read_b128 {vr(CS+4*g,4)}, v{vCS} offset:{128*U+32*g}")
        for g in range(2): LG.issue(tag, f"ds_read_b128 {vr(EE+4*g,4)}, v{vCS} offset:{128*U+64+32*g}")
    def epi_items(p, u):
        a = acc[p & 1][u]; U = 2 * p + u
        it = [(16, lambda: cs_reads(U, ("cs", U))), (int(E("CSW", 24)), lambda: None), (0, lambda: LG.wait([("cs", U)]))]
        for r in range(8): it.append(V(f"v_fma_f32 v{a+r}, v{CS+r}, v{nm}, v{a+r}"))
        for r in range(8): it.append(V(f"v_fma_f32 v{a+8+r}, v{EE+r}, v{nm}, v{a+8+r}"))
        for r in range(8):
            it.append(V(f"v_mul_f32 v{EE+r}, v{a+r}, v{rl}"))
        for r in range(8):
            it.append(V(f"v_exp_f32 v{EE+r}, v{EE+r}", 8))
            it.append(V(f"v_mul_f32 v{a+r}, v{a+r}, v{a+8+r}"))
        for r in range(8): it.append(V(f"v_fma_f32 v{EE+r}, v{EE+r}, v{var}, v{var}"))
        for r in range(8):
            it.append(V(f"v_rcp_f32 v{EE+r}, v{EE+r}", 8))
            if r >= 2: it.append(V(f"v_mul_f32 v{a+r-2}, v{a+r-2}, v{EE+r-2}"))
        it.append(V(f"v_mul_f32 v{a+6}, v{a+6}, v{EE+6}"))
        it.append(V(f"v_cvt_pk_bf16_f32 v{a+8}, v{a}, v{a+1}"))
        it.append(V(f"v_mul_f32 v{a+7}, v{a+7}, v{EE+7}"))
        for r in range(1, 4): it.append(V(f"v_cvt_pk_bf16_f32 v{a+8+r}, v{a+2*r}, v{a+2*r+1}"))
        it.append(V(clamp(a + 11)))
        it.append((8, lambda: lstore(A, VM, ("G", U), [f"buffer_store_dwordx4 {vr(a+8,4)}, v{vL16}, {SR(S_WS)}, s{sGo+p} offen offset:{1024*u}"])))
        return it
    AF = H + [144 + 4 * i for i in range(8)] + [232, 236, 240]
    def gload(n): LGn.load(("A", n), 4, AF[n], vL16, 2048 * n)
    BUD = [int(x) for x in E("BUD", "12,12,12").split(",")]
    G4 = [int(x) for x in E("G4", "0,2,4,8,12,16,20,24,28,32").split(",")]
    G5 = [int(x) for x in E("G5", "0,4,8,12,16,20,24,28,32,36,40,43").split(",")]
    GS0, GS1, GS2, GR2 = [int(x) for x in E("GS", "8,16,12,2").split(",")]
    vA5 = [[6, 249, 251], [7, 253, 254]]
    for p in range(3):
        bud = BUD[p]
        if p == 0: items = [(int(E("STD", 26)) * bud, lambda: None)] + stats_items()
        else: items = [(2 * bud, lambda: None)] + epi_items(p - 1, 0) + epi_items(p - 1, 1)
        credit = 0
        ng = 0
        for s in range(32):
            S = 32 * p + s
            nx = reads(S + 2) if S + 2 < 96 else []
            if p and s == 0:
                stamp(A, f"a4{p}")
                A("s_barrier")
                stamp(A, f"b4{p}")
            if s % 8 == 0 and s: stamp(A, f"p{p}s{s}")
            chk = p == 0 and s in G4
            if chk:
                g = [("H", i) for i in range(s, G4[G4.index(s) + 1])]
                assert all(x in LH.pend for x in g)
                VM.wait(g)
                sent_check(A, *group_check(g, [LH, LS]))
                if s == 0: stamp(A, "hflag")
            LG.wait([("W", S)])
            for u in range(2):
                A(mfma(acc[p & 1][u], WF[S % 3][u], H[s], 0 if s == 0 else None))
                for tg, l in nx[2 * u:2 * u + 2]: LG.issue(tg, l)
                credit = min(credit + bud, bud) if items and items[0][0] <= 8 else credit + bud
                if p == 0 and u == 0 and HP + s < 32:
                    hload(HP + s); credit -= 4
                if p == 2 and s >= GS0 and ng < GS1 and ng < s:
                    gload(ng); ng += 1; credit -= 4
                while items and (items[0][0] <= credit or (s == 31 and u == 1)):
                    c, f = items.pop(0)
                    f(); credit -= c
        assert not items
    while ng < GS1:
        gload(ng); ng += 1
    C2 = acc[1][0]; E2 = acc[1][1]
    cs_reads(4, ("cs", 4))
    for g in range(4): LG.issue(("cs", 5), f"ds_read_b128 {vr(C2+4*g,4)}, v{vCS} offset:{128*5+32*g}")
    for k in range(2):
        for w in (1, 2): A(f"v_add_u32 v{vA5[k][w]}, {w*65536}, v{vA5[k][0]}")
    stamp(A, "a43")
    A("s_barrier")
    stamp(A, "b43")
    def reads5(n):
        out = []
        for k in range(2):
            for sec in range(2):
                o = POS2[n] + sec * 1024
                out.append((("W5", n), f"ds_read_b64_tr_b16 {vr(WF[n%3][k]+2*sec,2)}, v{vA5[k][o>>16]} offset:{o&0xffff}"))
        return out
    for u in range(2):
        a = acc[0][u]; c = (CS, C2)[u]; e = (CS, E2)[u]
        LG.wait([("cs", 4 + u)])
        if u == 1:
            for tg, l in reads5(0) + reads5(1): LG.issue(tg, l)
        for r in range(0, 16, 2): A(pk_fma(a + r, c + r, nm, a + r, bc=(1,)))
        for r in range(0, 8, 2): A(pk_mul(e + r, a + r, rl, bc=(1,)))
        for r in range(8): A(f"v_exp_f32 v{e+r}, v{e+r}")
        for r in range(0, 8, 2): A(pk_mul(a + r, a + r, a + 8 + r))
        for r in range(0, 8, 2): A(pk_fma(e + r, e + r, var, var, bc=(1, 2)))
        for r in range(8): A(f"v_rcp_f32 v{e+r}, v{e+r}")
        A("s_nop 0")
        for r in range(0, 8, 2): A(pk_mul(a + r, a + r, e + r))
        for r in range(4): A(f"v_cvt_pk_bf16_f32 v{a+8+r}, v{a+2*r}, v{a+2*r+1}")
        A(clamp(a + 11))
        lstore(A, VM, ("G", 4 + u), [f"buffer_store_dwordx4 {vr(a+8,4)}, v{vL16}, {SR(S_WS)}, s{sGo+2} offen offset:{1024*u}"])
        for i in range(int(E("GF", 8))):
            if ng < 32: gload(ng); ng += 1
    stamp(A, "fin")
    acc5 = acc[1]
    NS = 43
    for n in range(NS):
        nx = reads5(n + 2) if n + 2 < NS else []
        if n in (21, 37):
            stamp(A, "a51" if n == 21 else "a52")
            A("s_barrier")
            stamp(A, "b51" if n == 21 else "b52")
        if n % 4 == 0: stamp(A, f"k5s{n}")
        if n in G5:
            g = [("A", i) for i in range(n, G5[G5.index(n) + 1])]
            assert all(x in LGn.pend for x in g)
            VM.wait(g)
            sent_check(A, *group_check(g, [LGn]))
        LG.wait([("W5", n)])
        for u in range(2):
            A(mfma(acc5[u], WF[n % 3][u], AF[n], 0 if n == 0 else None))
            for tg, l in nx[2 * u:2 * u + 2]: LG.issue(tg, l)
            if (ng < 32 or (n >= GS2 and ng < NS)) and (GR2 == 2 or u == 0):
                gload(ng); ng += 1
    T = H[8]
    stamp(A, "k5end")
    exchange(A, acc5, H[0], T, XCH5)
    A(f"v_and_b32 v{T}, 31, v0")
    A(f"v_lshlrev_b32 v{T+1}, 10, v{T}")
    A(f"v_lshrrev_b32 v{T}, 5, v0")
    A(f"v_lshl_add_u32 v{T+1}, v{T}, 4, v{T+1}")
    A(f"s_lshl_b32 s58, s{sRU5}, 15")
    A(f"s_lshl_b32 s59, s{sCU5}, 6")
    A("s_add_u32 s58, s58, s59")
    a = acc5[0]
    for q in range(4):
        A(f"s_waitcnt lgkmcnt({3-q})")
        A(pk_add(a + 4 * q, a + 4 * q, acc5[1] + 4 * q))
        A(pk_add(a + 4 * q + 2, a + 4 * q + 2, acc5[1] + 4 * q + 2))
    for r in range(8):
        A(f"v_cvt_pk_bf16_f32 v{RES+r}, v{a+2*r}, v{a+2*r+1}")
    A("s_nop 1")
    for g in range(2):
        A(f"v_permlane32_swap_b32 v{RES+4*g}, v{RES+4*g+2}")
        A(f"v_permlane32_swap_b32 v{RES+4*g+1}, v{RES+4*g+3}")
    A("s_nop 1")
    for g in range(2):
        A(f"buffer_store_dwordx4 {vr(RES+4*g,4)}, v{T+1}, {SR(S_OUT)}, s58 offen offset:{32*g}")
    if STAMP: A("s_waitcnt vmcnt(0)")
    dump_stamps(A)
    A("s_endpgm")

def mfma16(d, a, b, c=None):
    c = vr(d, 4) if c is None else "0"
    return f"v_mfma_f32_16x16x32_bf16 {vr(d,4)}, {vr(a,4)}, {vr(b,4)}, {c}"

def helper(A, fin):
    ROLE[0] = 1
    VM = Q("vmcnt", A); LG = Q("lgkmcnt", A)
    sJ, sMX, sMW = 50, 51, 52
    ONE = 44; ACC = 20
    vXg, vWg, vWa, vAdd = 8, 12, 15, 16
    t = 2
    A(f"s_sub_u32 s{sJ}, s{S_W}, 4")
    A(f"s_lshl_b32 s53, s{sRB}, 17")
    A(f"s_lshl_b32 s54, s{sJ}, 15")
    A("s_add_u32 s53, s53, s54")
    A(f"v_lshrrev_b32 v{t}, 3, v0")
    A(f"v_lshlrev_b32 v{t}, 10, v{t}")
    A(f"v_add_u32 v{t}, s53, v{t}")
    A(f"v_and_b32 v{t+1}, 7, v0")
    A(f"v_lshrrev_b32 v{t+2}, 4, v0")
    A(f"v_xor_b32 v{t+1}, v{t+1}, v{t+2}")
    A(f"v_lshl_add_u32 v{vXg}, v{t+1}, 4, v{t}")
    A(f"v_xor_b32 v{vXg+1}, 64, v{vXg}")
    A(f"v_add_u32 v{vXg+1}, 0x2000, v{vXg+1}")
    A(f"v_add_u32 v{vXg+2}, 0x4000, v{vXg}")
    A(f"v_add_u32 v{vXg+3}, 0x4000, v{vXg+1}")
    A(f"s_mul_i32 s53, s{sJ}, {16*3072}")
    A(f"s_lshl_b32 s54, s{sCB}, 6")
    A("s_add_u32 s53, s53, s54")
    for r in range(3):
        A(f"v_add_u32 v{t}, {64*r}, v0")
        div12(A, t, t + 1, t + 2)
        A(f"v_mul_u32_u24 v{t+1}, 3072, v{t+1}")
        A(f"v_and_b32 v{t}, 3, v{t+2}")
        A(f"v_lshl_add_u32 v{t+1}, v{t}, 4, v{t+1}")
        A(f"v_lshrrev_b32 v{t+2}, 2, v{t+2}")
        A(f"v_lshl_add_u32 v{t+1}, v{t+2}, 10, v{t+1}")
        A(f"v_add_u32 v{vWg+r}, s53, v{t+1}")
    A(f"s_lshl_b32 s{sMX}, s{sJ}, 12")
    A(f"s_mul_i32 s{sMW}, s{sJ}, 3072")
    stamp(A, "h0")
    fin()
    stamp(A, "h1")
    ROT = int(E("ROT", 0))
    if ROT == 1: A(f"s_lshr_b32 s63, s{S_J}, 2")
    if ROT == 2: A(f"s_lshl_b32 s63, s{S_J}, 1")
    if ROT == 3:
        A(f"s_lshr_b32 s63, s{S_J}, 2")
        A(f"s_lshl_b32 s53, s{S_J}, 1")
        A("s_add_u32 s63, s63, s53")
    if ROT == 4: A(f"s_mov_b32 s63, s{S_XCD}")
    def issue(c):
        slot = c % 5
        if ROT:
            A(f"s_add_u32 s53, s63, {c}")
            A("s_and_b32 s53, s53, 7")
            A(f"s_mul_i32 s54, s53, {64*3072}")
            A("s_lshl_b32 s53, s53, 7")
        else:
            A(f"s_movk_i32 s53, {c*128}")
            A(f"s_mov_b32 s54, {c*64*3072}")
        for q in range(4):
            if not E("NOX"): dma(A, VM, ("c", c), vXg + q, S_X, "s53", sMX, XB + slot * 16384 + q * 1024)
            if q < 3 and not E("NOW"): dma(A, VM, ("c", c), vWg + q, S_WQ, "s54", sMW, WB + slot * 12288 + q * 1024)
    D1 = int(E("D1", 2))
    DL = int(E("DL", 1))
    for c in range(D1):
        issue(c)
        if c == 0: stamp(A, "iss")
        if BI and c == BI - 1: A("s_barrier")
    stamp(A, "iss3")
    k1_wa(A, vWa, t, t + 1)
    A(f"s_min_u32 s62, s{sJ}, 2")
    A("s_lshl_b32 s62, s62, 6")
    A(f"v_add_u32 v{vWa}, s62, v{vWa}")
    A("s_mov_b32 vcc_lo, 0x00100001")
    A("s_mov_b32 vcc_hi, 0x00100001")
    A(f"v_mov_b32 v{t}, 0")
    A(f"v_mov_b32 v{t+1}, 0x3f803f80")
    for r in range(4):
        A(f"v_cndmask_b32 v{ONE+r}, v{t}, v{t+1}, vcc")
    A("s_lshl_b32 s62, s62, 1")
    A(f"s_add_u32 s62, s62, {SC1}")
    A(f"v_lshl_add_u32 v{vAdd}, v0, 2, s62")
    A(f"v_lshrrev_b32 v{t}, 4, v0")
    A(f"v_min_u32 v{t}, 2, v{t}")
    A(f"v_mul_u32_u24 v{t}, {SEG}, v{t}")
    A(f"v_bfe_u32 v{t+1}, v0, 1, 3")
    A(f"v_mul_u32_u24 v{t+1}, {TILE}, v{t+1}")
    A(f"v_add_u32 v{t}, v{t}, v{t+1}")
    A(f"v_and_b32 v{t+1}, 1, v0")
    A(f"v_mul_u32_u24 v{t+1}, {VH}, v{t+1}")
    A(f"v_add_u32 v17, v{t}, v{t+1}")
    for r in range(4): A(f"v_mov_b32 v{24+r}, 0x3f803f80")
    for r in range(4): A(f"v_mov_b32 v{28+r}, {0x3f803f80 if E('ONES') else 0}")
    assert int(E("T0", 22)) >= 20
    vW13, vG64 = 40, 41
    sPair, sM1 = 57, 60
    A(f"v_lshrrev_b32 v{t}, 2, v0")
    A(f"v_mul_u32_u24 v{t}, 2752, v{t}")
    A(f"v_and_b32 v{t+1}, 3, v0")
    A(f"v_lshl_add_u32 v{t}, v{t+1}, 4, v{t}")
    A(f"s_mul_i32 s56, s{sJ}, {16*2752}")
    A(f"v_add_u32 v{vW13}, s56, v{t}")
    A(f"v_lshrrev_b32 v{t}, 3, v0")
    A(f"v_lshlrev_b32 v{t}, 10, v{t}")
    A(f"v_bfe_u32 v{t+1}, v0, 4, 1")
    A(f"v_lshlrev_b32 v{t+1}, 2, v{t+1}")
    A(f"v_and_b32 v{vG64}, 7, v0")
    A(f"v_xor_b32 v{t+1}, v{t+1}, v{vG64}")
    A(f"v_lshl_add_u32 v{t}, v{t+1}, 4, v{t}")
    A(f"s_lshr_b32 s56, s{S_J}, 2")
    A("s_lshl_b32 s56, s56, 7")
    A(f"s_lshl_b32 s{sM1}, s{sJ}, 13")
    A(f"s_add_u32 s56, s56, s{sM1}")
    A(f"v_add_u32 v{vG64}, s56, v{t}")
    A(f"s_lshl_b32 s{sM1}, s{sJ}, 10")
    A(f"s_lshr_b32 s56, s{S_J}, 1")
    for p in range(3):
        A(f"s_add_u32 s{sPair+p}, s56, {16*p}")
        if p == 2 and E("ZW", "1") == "0": A(f"s_min_u32 s{sPair+p}, s{sPair+p}, 42")
        A(f"s_lshl_b32 s{sPair+p}, s{sPair+p}, 6")
    if E("ZW", "1") == "1":
        A("s_cmp_gt_u32 s56, 10")
        A(f"s_cselect_b32 s{sPair+2}, 0x40000000, s{sPair+2}")
    vWr = [42, 43, 44]
    SEL = 32
    A(f"v_and_b32 v{t}, 1, v0")
    A(f"v_lshlrev_b32 v{t}, 4, v{t}")
    A(f"v_mov_b32 v{t+1}, 0x3f80")
    A(f"v_lshlrev_b32 v{t}, v{t}, v{t+1}")
    for r in range(8): A(f"v_mov_b32 v{SEL+r}, 0")
    for r in range(8):
        A(f"s_mov_b32 exec_lo, {hex((3 << 2*r) * 0x10001)}")
        A(f"s_mov_b32 exec_hi, {hex((3 << 2*r) * 0x10001)}")
        A(f"v_mov_b32 v{SEL+r}, v{t}")
    A("s_mov_b64 exec, -1")
    for r in range(4): A(f"v_mov_b32 v{4+r}, -1")
    A(f"v_add_u32 v{vWr[0]}, s{sM1}, v{vL16}")
    A(f"v_add_u32 v{vWr[1]}, 65536, v{vWr[0]}")
    A("s_waitcnt lgkmcnt(0)")
    make_T(A)
    CF = 48
    def touch0():
        A("s_lshl_b32 s61, s2, 2")
        A(f"s_add_u32 s61, s61, s{sJ}")
        A("s_mul_i32 s61, s61, 1408")
        A(f"v_lshlrev_b32 v{t}, {7 if E('T128') else 6}, v0")
        A(f"s_mov_b64 exec, {'0x7ff' if E('T128') else '0x3fffff'}")
        for n, sd in enumerate((S_WO, S_W1, S_W3, S_W2)):
            VM.issue("t0", f"buffer_load_dword v{28+n}, v{t}, {SR(sd)}, s61 offen")
        A("s_mov_b64 exec, -1")
    nis = D1
    if DL == 0:
        while nis < 3: issue(nis); nis += 1
    for c in range(8):
        VM.wait([("c", c)])
        stamp(A, f"h1a{c}")
        A("s_barrier")
        if c == 0: stamp(A, "b0")
        slot = c % 5
        for u in range(0 if E("NOCS") else 4):
            for sec in range(2):
                A(f"ds_read_b64_tr_b16 {vr(CF+4*u+2*sec,2)}, v{vWa} offset:{WB + slot*12288 + (16*u+4*sec)*192}")
        while nis <= c + 3 and nis < 8: issue(nis); nis += 1
        if c == int(E("T0", 22)): touch0()
        A("s_waitcnt lgkmcnt(0)")
        for u in range(4): A(mfma16(ACC, ONE, CF + 4 * u, 0 if c == 0 and u == 0 else None))
    sHead, sK, sKc = 53, 54, 55
    vKg, vVg, vKd, vVd = 8, 9, 10, 11
    attn_ids(A, sHead, 61)
    swap23(A, vKg, t)
    A(f"v_add_u32 v{vVg}, 0x200000, v{vL16}")
    A("s_mov_b32 exec_hi, 0")
    A(f"ds_write_b32 v{vAdd}, v{ACC}")
    A("s_mov_b32 exec_hi, -1")
    A(f"s_mul_i32 s61, s{sJ}, {TILE}")
    A(f"s_add_u32 s62, s61, {RING+KO}")
    A(f"v_add_u32 v{vKd}, s62, v{vL16}")
    A(f"v_lshrrev_b32 v{t}, 5, v0")
    A(f"v_lshlrev_b32 v{t}, 5, v{t}")
    A(f"s_add_u32 s62, s61, {RING}")
    A(f"v_add3_u32 v{vVd}, v{vL16}, v{t}, s62")
    A(f"s_lshl_b32 s{sK}, s{sHead}, 16")
    if E("XR", "1") == "1":
        A(f"s_lshr_b32 s61, s{S_J}, 2")
        A("s_lshl_b32 s61, s61, 13")
        A(f"s_add_u32 s{sK}, s{sK}, s61")
    A(f"s_lshl_b32 s61, s{sJ}, 10")
    A(f"s_add_u32 s{sK}, s{sK}, s61")
    A(f"s_add_u32 s{sK}, s{sK}, {QKV + 0x200000}")
    A("s_waitcnt lgkmcnt(0)")
    A("s_barrier")
    stamp(A, "bcs")
    A(f"ds_write_b128 v17, v[24:27] offset:{RING+512}")
    A(f"ds_write_b128 v17, v[28:31] offset:{RING+528}")
    A(f"v_add_u32 v{vWr[2]}, {2*65536}, v{vWr[0]}")
    quad = lambda q: 48 + 4 * q
    LK = Ld(A, VM, sK, sKc, "q", "s_xor_b32")
    def kvload(i):
        LK.load(("kv", i >> 1), 4, quad(20 + 2 * i), vKg, 4096 * i)
        LK.load(("kv", i >> 1), 4, quad(21 + 2 * i), vVg, 4096 * i)
    def kvcheck(segs):
        g = [("kv", s) for s in segs]
        VM.wait(g)
        if 0 in segs: stamp(A, "kvland")
        sent_check(A, *group_check(g, [LK]), t=t)
    def kvwrite(s):
        for i in (2 * s, 2 * s + 1):
            o = (s % 3) * SEG + 4 * (i & 1) * TILE
            A(f"ds_write_b128 v{vKd}, {vr(quad(20+2*i),4)} offset:{o}")
            A(f"ds_write_b128 v{vVd}, {vr(quad(21+2*i),4)} offset:{o}")
    def w13src(b, qh):
        p, kb = divmod(b, 4)
        A(f"s_add_u32 s61, s{sPair+p}, {(128*kb+64*qh)*2752}")
    def w13dma(b):
        for qh in range(2):
            w13src(b, qh)
            for mat in range(2):
                dma(A, VM, ("b", b), vW13, (S_W1, S_W3)[mat], "s61", sM1, slot13(b) + mat * 8224 + qh * 4096)
    BQ0 = {0: 20, 1: 24, 2: 28, 8: 32, 9: 20, 10: 24, 11: 36, 3: 32, 4: 40, 5: 20, 6: 24, 7: 36}
    BQ = lambda b, qh, mat: quad(BQ0[b] + 2 * qh + mat)
    def w13load(b):
        for qh in range(2):
            w13src(b, qh)
            for mat in range(2):
                VM.issue(("r", b), f"buffer_load_dwordx4 {vr(BQ(b,qh,mat),4)}, v{vW13}, {SR((S_W1, S_W3)[mat])}, s61 offen")
    SEL = 32
    first = set()
    def colsum(b):
        VM.wait([("r", b)])
        for qh in range(2):
            for mat in range(2):
                g = b // 4
                A(mfma16(ACC + 4 * g, BQ(b, qh, mat), SEL + 4 * mat, None if g in first else 0))
                first.add(g)
    W2Q = lambda n: quad(n - 23)
    def w2load(n):
        A(f"s_mov_b32 s61, {n*32768}")
        VM.issue(("w2", n), f"buffer_load_dwordx4 {vr(W2Q(n),4)}, v{vG64}, {SR(S_W2)}, s61 offen")
    def g64dma(tag, srdn, n, pos):
        A(f"s_mov_b32 s61, {n*32768}")
        dma(A, VM, tag, vG64, srdn, "s61", sM1, pos)
    nb = [0]
    def bar():
        A("s_waitcnt lgkmcnt(0)"); LG.q = []
        stamp(A, f"ha{nb[0]}")
        A("s_barrier")
        stamp(A, f"hb{nb[0]}")
        nb[0] += 1
    KV0 = int(E("KV0", 2))
    if BKV: A("s_barrier")
    for i in range(KV0): kvload(i)
    stamp(A, "kviss")
    kvcheck([0])
    stamp(A, "kvflag")
    kvwrite(0)
    bar()
    stamp(A, "bai")
    if E("T0") == "20": touch0()
    for i in range(KV0, 16): kvload(i)
    if E("T0", "22") == "22": touch0()
    kvcheck([1])
    kvwrite(1)
    bar()
    kvcheck(range(2, 8))
    kvwrite(2)
    group_flag_addr(A, 17)
    VM.issue("flag", flag_load(18, 17))
    WOD = [int(x) for x in E("WOD", "0,4,1,1,1,1,8").split(",")]
    assert sum(WOD) == 16
    def wodma(i):
        for n in range(sum(WOD[:i-1]), sum(WOD[:i])): g64dma("wo", S_WO, n, WOB + 4096 * n)
    wodma(1)
    def ldsw(tag, pos, r):
        LG.issue(tag, f"ds_write_b128 v{vWr[pos>>16]}, {vr(r,4)} offset:{pos&0xffff}")
    def blockw(b):
        VM.wait([("r", b)])
        for qh in range(2):
            for mat in range(2): ldsw(("bw", b), slot13(b) + mat * 8224 + qh * 4096, BQ(b, qh, mat))
    bar()
    kvwrite(3)
    w13load(0); w13load(1)
    VM.wait(["flag"])
    A(f"v_cmp_ne_u64 vcc, s[{S_TX}:{S_TX+1}], v[18:19]")
    A(f"s_cmp_lg_u64 vcc, 0")
    A(f"s_cselect_b32 s{S_MODE}, 1, 0")
    def pz(so, off): return f"buffer_store_dwordx4 v[4:7], v{vL16}, {SR(S_WS)}, s{so} offen offset:{off}"
    A("s_lshl_b32 s61, s2, 2")
    A(f"s_add_u32 s61, s61, s{sJ}")
    A("s_lshl_b32 s61, s61, 11")
    A(f"s_add_u32 s61, s61, {OF}")
    for o in (0, 1024): VM.issue("poison", pz(61, o) + " sc1")
    g64_ids(A, 62, 63, 64, 65, sJ)
    A("s_lshl_b32 s61, s62, 4")
    A("s_add_u32 s61, s61, s64")
    A("s_lshl_b32 s62, s61, 11")
    A(f"s_add_u32 s62, s62, {HF}")
    A("s_lshl_b32 s61, s61, 8")
    A(f"s_add_u32 s61, s61, {ST2}")
    lstore(A, VM, "poison", [pz(62, 0), pz(62, 1024), "s_mov_b64 exec, 0xffff", pz(61, 0), "s_mov_b64 exec, -1"])
    A(f"s_and_b32 s61, s{S_J}, 1")
    A(f"s_lshl1_add_u32 s61, s{S_XCD}, s61")
    A(f"s_lshl2_add_u32 s61, s61, s{sJ}")
    A(f"s_lshr_b32 s62, s{S_J}, 1")
    g_offsets(A, 61, 62, 63, 67)
    lstore(A, VM, "poison", [pz(63 + p, o) for p in range(3) for o in (0, 1024)])
    wodma(2)
    bar()
    kvwrite(4)
    colsum(0); colsum(1); blockw(0); blockw(1)
    w13load(2); w13load(8)
    for n in range(23, 31): w2load(n)
    wodma(3)
    bar()
    kvwrite(5)
    VM.wait(["poison"])
    w13load(9); w13load(10); w13load(11)
    for n in range(31, 35): w2load(n)
    wodma(4)
    colsum(2); colsum(8)
    bar()
    A(f"s_mul_i32 s61, s2, {FS}")
    A(f"s_add_u32 s61, s61, {FL2}")
    with only(A, sJ, 0): flag_store(A, 61, t)
    kvwrite(6)
    w13load(3); w13load(4)
    for n in range(35, 43): w2load(n)
    wodma(5)
    colsum(9); colsum(10); colsum(11)
    bar()
    kvwrite(7)
    w13load(5); w13load(6); w13load(7)
    A(f"s_mul_i32 s61, s{sJ}, {192*1024}")
    A(f"s_lshr_b32 s56, s{S_J}, 2")
    A("s_lshl_b32 s56, s56, 7")
    A("s_add_u32 s61, s61, s56")
    A(f"v_lshlrev_b32 v{t}, 10, v0")
    for i in range(3):
        VM.issue("touch", f"buffer_load_dword v{4+i}, v{t}, {SR(S_W2)}, s61 offen")
        if i < 2: A("s_add_u32 s61, s61, 65536")
    wodma(6)
    colsum(3); colsum(4)
    bar()
    flag_addr(A, 17, sJ, FL2)
    VM.issue("flag", flag_load(18, 17, SCF))
    if E("OT"):
        A(f"s_and_b32 s61, s{S_J}, 3")
        A(f"s_lshl2_add_u32 s61, s{S_XCD}, s61")
        A(f"s_lshl2_add_u32 s61, s61, s{sJ}")
        A("s_lshl_b32 s61, s61, 14")
        A(f"s_lshr_b32 s62, s{S_J}, 2")
        A("s_lshl_b32 s62, s62, 7")
        A("s_add_u32 s61, s61, s62")
        A(f"v_lshlrev_b32 v{t}, 10, v0")
        A("s_mov_b64 exec, 0xffff")
        VM.issue("touch", f"buffer_load_dword v7, v{t}, {SR(S_OUT)}, s61 offen")
        A("s_mov_b64 exec, -1")
    wodma(7)
    colsum(5); colsum(6); colsum(7)
    A(f"s_mul_i32 s61, s{sJ}, 3072")
    A(f"s_add_u32 s61, s61, {PSTG}")
    A(f"v_add_u32 v{t}, s61, v{vL16}")
    A("s_nop 6")
    for p in range(3): A(f"ds_write_b128 v{t}, {vr(ACC+4*p,4)} offset:{1024*p}")
    VM.drain()
    stamp(A, "x3")
    flag_check(A, 18, 17)
    A(f"s_add_u32 s61, s2, s{sJ}")
    with only(A, 61, 0): flag_store(A, 61, t)
    bar()
    bar()
    stamp(A, "be")
    blockw(2)
    blockw(3); blockw(4)
    A(f"s_min_u32 s61, s{sJ}, 2")
    A("s_lshl_b32 s62, s61, 10")
    A(f"s_add_u32 s62, s62, {PSTG}")
    A(f"v_add_u32 v{t}, s62, v{vL16}")
    for j in range(4): A(f"ds_read_b128 {vr(ACC+4*j,4)}, v{t} offset:{3072*j}")
    A(f"v_bfe_u32 v{t}, v0, 3, 1")
    A(f"v_lshlrev_b32 v{t}, 6, v{t}")
    A(f"v_and_b32 v{t+1}, 7, v0")
    A(f"v_lshl_add_u32 v{t}, v{t+1}, 2, v{t}")
    A("s_lshl_b32 s62, s61, 8")
    A(f"s_add_u32 s62, s62, {SC4}")
    A(f"v_add_u32 v{t}, s62, v{t}")
    A("s_waitcnt lgkmcnt(0)"); LG.q = []
    for q in range(4):
        A(f"v_add_f32 v{ACC+q}, v{ACC+q}, v{ACC+4+q}")
        A(f"v_add_f32 v{ACC+8+q}, v{ACC+8+q}, v{ACC+12+q}")
    for q in range(4): A(f"v_add_f32 v{ACC+q}, v{ACC+q}, v{ACC+8+q}")
    for sw in ("v_permlane32_swap_b32", "v_permlane16_swap_b32"):
        for q in range(4): A(f"v_mov_b32 v{ACC+4+q}, v{ACC+q}")
        A("s_nop 1")
        for q in range(4): A(f"{sw} v{ACC+q}, v{ACC+4+q}")
        A("s_nop 1")
        for q in range(4): A(f"v_add_f32 v{ACC+q}, v{ACC+q}, v{ACC+4+q}")
    for q in range(4): A(f"ds_write_b32 v{t}, v{ACC+q} offset:{128*(q>>1) + 32*(q&1)}")
    stamp(A, "cs1")
    bar()
    A("s_barrier")
    for b in (5, 6, 7): blockw(b)
    stamp(A, "cs2")
    bar()
    stamp(A, "w41")
    A("s_barrier")
    def w2w(n):
        VM.wait([("w2", n)])
        ldsw("w2", POS2[n], W2Q(n))
    for b in (8, 9, 10, 11): w13dma(b)
    for n in (0, 1, 2, 3, 20, 21, 22): g64dma("w2d", S_W2, n, POS2[n])
    VM.wait([("b", 11)])
    stamp(A, "w42")
    A("s_barrier")
    for n in range(4, 20): g64dma("w2d", S_W2, n, POS2[n])
    VM.wait(["w2d"])
    stamp(A, "w43")
    A("s_barrier")
    for n in range(23, 39): w2w(n)
    stamp(A, "w51")
    bar()
    for n in range(39, 43): w2w(n)
    bar()
    A("s_barrier")
    dump_stamps(A)

def descriptor():
    return f""".section .rodata,"a"
.p2align 6
.amdhsa_kernel {KNAME}
  .amdhsa_next_free_vgpr 256
  .amdhsa_next_free_sgpr 102
  .amdhsa_accum_offset 256
  .amdhsa_group_segment_fixed_size 0
  .amdhsa_kernarg_size 80
  .amdhsa_user_sgpr_count 2
  .amdhsa_user_sgpr_kernarg_segment_ptr 1
  .amdhsa_system_sgpr_workgroup_id_x 1
.end_amdhsa_kernel
"""

def main():
    ref = open(f"cdna_kernels/{NAME}.s.ref").read().splitlines()
    head = []
    for l in ref:
        if l.startswith("; Override") or "@launch" in l or l.startswith("; grid="): continue
        if not l.startswith(";"): break
        head.append(l)
    head.append(f"; @launch grid=(256,1,1) block=(512,1,1) lds={LDS_ALL}")
    A = Asm()
    A.raw('.amdgcn_target "amdgcn-amd-amdhsa--gfx950"')
    A.raw(".text")
    fin = prologue(A)
    A(f"s_cmp_lt_u32 s{S_W}, 4")
    A("s_cbranch_scc1 L_compute")
    helper(A, fin)
    A.label("L_end")
    A("s_endpgm")
    A.label("L_compute")
    ROLE[0] = 0
    c_k1(A, fin)
    c_attn(A)
    c_k3(A)
    c_k45(A)
    A.label("L_ool")
    i = 0
    while i < len(OOL):
        OOL[i](A); i += 1
    A.label("L_last")
    A("s_endpgm")
    if STAMP: head.append("; STS " + ",".join(STS[0]) + " " + ",".join(STS[1]))
    out = "\n".join(head) + "\n" + A.text() + descriptor()
    path = sys.argv[1] if len(sys.argv) > 1 else f"cdna_kernels/{NAME}.s"
    open(path, "w").write(out)

if __name__ == "__main__":
    main()
```

```python
import sys, os, struct
sys.path.insert(0, os.path.dirname(os.path.abspath(__file__)))
from asmlib import *

NAME = "sequential_preLN__softmax_full_mha__glu_gated_swiglu__prompt"
KNAME = NAME + "_kernel"
E = os.environ.get
FS = int(E("FS", 16))
NONCE = 0
FL1 = 0x1000
FL2 = FL1 + 256 * FS
FL3 = FL2 + 256 * FS
DUMMY = 0x40000
assert FL3 + 1024 * FS <= DUMMY
QKV = 0x100000
OF = 0x700000
HF = 0x900000
GF = 0xB00000
ST2 = 0x1060000
TS = 0x1100000
WS_BYTES = 0x1200000
LOG2E = 1.4426950408889634
def f32(x):
    return hex(struct.unpack("<I", struct.pack("<f", x))[0])

S_T = 4
S_WS, S_X, S_WQ, S_WO, S_W1, S_W3, S_W2, S_OUT, S_DBG = 8, 12, 16, 20, 24, 28, 32, 36, 40
S_W, S_XCD, S_J = 44, 45, 46
S_TO = 47
S_TX = 6
S_MODE = 66
PSTG = 83456
vL16, vP, RES = 1, 4, 8
LDS_ALL = 163840
SCR = 161280
SC1, ST1, SC4 = SCR, SCR + 512, SCR + 1536
RING = 32896; SEG = 16896; TILE = 2112; VH = 544; KO = 1088
WOB = 95744
BLK = 16448
XCH3 = SCR - 16384
XCH5 = 65728
STAMP = int(E("STAMP", 0))
TOLIM = 20000
BKV = int(E("BKV", 1))
BI = int(E("BI", 0))

class Q:
    def __init__(self, kind, A):
        self.kind, self.A, self.q = kind, A, []
        self.max = 63 if kind == "vmcnt" else 15
    def issue(self, tag, ins):
        self.A(ins); self.q.append(tag)
    def need(self, tags):
        idx = [i for i, t in enumerate(self.q) if t in tags]
        if not idx: return None
        n = len(self.q) - 1 - max(idx)
        n = min(n, self.max)
        self.q = self.q[len(self.q) - n:] if n else []
        return n
    def wait(self, tags):
        n = self.need(tags)
        if n is not None: self.A(f"s_waitcnt {self.kind}({n})")
    def drain(self):
        self.A(f"s_waitcnt {self.kind}(0)"); self.q = []

def wait2(A, VM, vt, LG, lt):
    a = VM.need(vt); b = LG.need(lt)
    s = []
    if a is not None: s.append(f"vmcnt({a})")
    if b is not None: s.append(f"lgkmcnt({b})")
    if s: A("s_waitcnt " + " ".join(s))

STS = [E("STS0", "start,b0,k1end,k1pub,bai,be,oflag,hpub,hflag,b41,b42,b43,fin,b51,b52,end").split(","),
       E("STS1", "start,iss,b0,bcs,kviss,kvflag,bai,be,cs1,cs2,w41,w42,w43,w51,end").split(",")]
ROLE = [0]
def stamp(A, name):
    if STAMP and name in STS[ROLE[0]]:
        n = STS[ROLE[0]].index(name)
        A(f"{'s_memtime' if STAMP == 2 else 's_memrealtime'} s[{100-2*n}:{101-2*n}]")
def dump_stamps(A):
    if not STAMP: return
    role = ROLE[0]
    lab = A.newlabel("st")
    stamp(A, "end")
    A(f"s_and_b32 s69, s{S_W}, 3")
    A("s_cmp_lg_u32 s69, 0")
    A(f"s_cbranch_scc1 {lab}")
    A("s_waitcnt lgkmcnt(0)")
    A("s_lshl_b32 s69, s2, 7")
    A(f"s_add_u32 s69, s69, {TS + role*64}")
    A("s_mov_b64 exec, 1")
    if E("DBGOUT") and int(E("DBGOUT")) == role:
        for i in range(len(STS[role])):
            if i == 0: A(f"v_not_b32 v4, s{100-2*i}")
            else: A(f"v_mov_b32 v4, s{100-2*i}")
            A(f"buffer_atomic_umax v4, off, s[{S_DBG}:{S_DBG+3}], 0 offset:{4*i}")
    for i in range(len(STS[role])):
        A(f"v_mov_b32 v4, s{100-2*i}")
        A(f"buffer_store_dword v4, off, s[{S_WS}:{S_WS+3}], s69 offset:{4*i}")
    A("s_waitcnt vmcnt(0)")
    A.label(lab)

def SR(n): return f"s[{n}:{n+3}]"

def dma(A, VM, tag, voff, srdn, soff, m0base, m0add):
    A(f"s_add_u32 m0, s{m0base}, {m0add}")
    A("s_nop 0")
    VM.issue(tag, f"buffer_load_dwordx4 v{voff}, {SR(srdn)}, {soff} offen lds")

OOL = []
def sent_reduce(regs, t):
    out = []
    regs = list(regs)
    if len(regs) > 1:
        if len(regs) == 2: out.append(f"v_max_u32 v{t}, v{regs[0]}, v{regs[1]}"); regs = []
        else: out.append(f"v_max3_u32 v{t}, v{regs[0]}, v{regs[1]}, v{regs[2]}"); regs = regs[3:]
        while regs:
            if len(regs) == 1: out.append(f"v_max_u32 v{t}, v{t}, v{regs[0]}"); regs = []
            else: out.append(f"v_max3_u32 v{t}, v{t}, v{regs[0]}, v{regs[1]}"); regs = regs[2:]
        r = t
    else: r = regs[0]
    out.append(f"v_cmp_eq_u32 vcc, -1, v{r}")
    return out
def sent_branch(A, group, pending, t=vP):
    s = A.newlabel("slow"); r = A.newlabel("back"); l = A.newlabel("rl"); g = A.newlabel("gu")
    A(f"s_cbranch_vccnz {s}")
    A.label(r)
    pending = list(pending)
    def ool(B):
        B.label(s)
        B("s_waitcnt vmcnt(0)")
        B.label(l)
        for reg, ins in pending:
            k = B.newlabel("sk")
            B(f"v_cmp_eq_u32 vcc, -1, v{reg}")
            B(f"s_cbranch_vccz {k}")
            for i in ins: B(i)
            B.label(k)
        B("s_waitcnt vmcnt(0)")
        B(f"s_sub_u32 s{S_TO}, s{S_TO}, 1")
        B(f"s_cbranch_scc1 {g}")
        for i in sent_reduce(group, t): B(i)
        B(f"s_cbranch_vccnz {l}")
        B(f"s_branch {r}")
        B.label(g)
        B(f"s_mov_b32 s{S_TO}, 0")
        B(f"s_branch {r}")
    OOL.append(ool)
def sent_check(A, group, pending, t=vP):
    for i in sent_reduce(group, t): A(i)
    sent_branch(A, group, pending, t)
S_TMP = 3
def ws_load(n, dst, voff, sbase, off, op="s_add_u32"):
    x = "" if n == 1 else f"x{n}"
    return [f"{op} s{S_TMP}, s{sbase}, {off}",
            f"buffer_load_dword{x} {vr(dst,n)}, v{voff}, {SR(S_WS)}, s{S_TMP} offen sc1"]
class Ld:
    def __init__(self, A, VM, sbase, scur, sc, op="s_add_u32"):
        self.A, self.VM, self.sbase, self.scur, self.hi = A, VM, sbase, scur, None
        self.op = op
        self.sc = " sc1" if E("SC", "qohg").find(sc) >= 0 else ""
        self.pend = {}
    def load(self, tag, n, dst, voff, off):
        hi = off & ~4095
        if hi == 0: so = self.sbase
        else:
            if hi != self.hi: self.A(f"{self.op} s{self.scur}, s{self.sbase}, {hi}"); self.hi = hi
            so = self.scur
        x = "" if n == 1 else f"x{n}"
        o = f" offset:{off & 4095}" if off & 4095 else ""
        self.VM.issue(tag, f"buffer_load_dword{x} {vr(dst,n)}, v{voff}, {SR(S_WS)}, s{so} offen{o}{self.sc}")
        self.pend.setdefault(tag, []).append((dst + n - 1, ws_load(n, dst, voff, self.sbase, off, self.op)))
def group_check(tags, lds):
    pend = [x for L in lds for v in L.pend.values() for x in v]
    grp = []
    for L in lds:
        for t in tags:
            if t in L.pend: grp += [r for r, _ in L.pend.pop(t)]
    return grp, pend
def clamp(r): return f"v_min_u32 v{r}, -2, v{r}"

def flag_store(A, soff, vt, st=S_T):
    A("s_mov_b64 exec, 1")
    A(f"v_mov_b32 v{vt}, s{st}")
    A(f"v_mov_b32 v{vt+1}, s{st+1}")
    A(f"buffer_store_dwordx2 {vr(vt,2)}, off, {SR(S_WS)}, s{soff} sc1")
    A("s_mov_b64 exec, -1")
def flag_addr(A, va, sw, base):
    A(f"s_mul_i32 s{S_TMP}, s{sw}, {64*FS}")
    A(f"s_add_u32 s{S_TMP}, s{S_TMP}, {base}")
    A(f"v_mul_u32_u24 v{va}, {FS}, v0")
    A(f"v_add_u32 v{va}, s{S_TMP}, v{va}")
def flag_load(vd, va, sc=" sc1"):
    return f"buffer_load_dwordx2 {vr(vd,2)}, v{va}, {SR(S_WS)}, 0 offen{sc}"
def flag_check(A, vd, va):
    s = A.newlabel("fs"); r = A.newlabel("fb"); g = A.newlabel("fg")
    test = f"v_cmp_ne_u64 vcc, s[{S_T}:{S_T+1}], {vr(vd,2)}"
    A(test)
    A(f"s_cbranch_vccnz {s}")
    A.label(r)
    def ool(B):
        B.label(s)
        B(flag_load(vd, va))
        B("s_waitcnt vmcnt(0)")
        B(f"s_sub_u32 s{S_TO}, s{S_TO}, 1")
        B(f"s_cbranch_scc1 {g}")
        B(test)
        B(f"s_cbranch_vccnz {s}")
        B(f"s_branch {r}")
        B.label(g)
        B(f"s_mov_b32 s{S_TO}, 0")
        B(f"s_branch {r}")
    OOL.append(ool)
def make_T(A):
    A(f"s_mul_i32 s{S_T}, s6, 0x9e3779b1")
    A(f"s_add_u32 s{S_T}, s{S_T}, 0x7f4a7c15")
    A(f"s_mul_i32 s{S_T+1}, s7, 0x85ebca6d")
    A(f"s_add_u32 s{S_T+1}, s{S_T+1}, 0x165667b1")
    A(f"s_getreg_b32 s{S_TX+1}, hwreg(HW_REG_XCC_ID, 0, 4)")
    if E("FAKEX"): A(f"s_bfe_u32 s{S_TX+1}, s2, 0x10003")
    A(f"s_mov_b32 s{S_TX}, s{S_T}")
    A(f"s_xor_b32 s{S_TX+1}, s{S_TX+1}, s{S_T+1}")
def group_flag_addr(A, va):
    A(f"s_mul_i32 s{S_TMP}, s{S_XCD}, {32*FS}")
    A(f"s_add_u32 s{S_TMP}, s{S_TMP}, {FL1}")
    A(f"v_and_b32 v{va}, 31, v0")
    A(f"v_mul_u32_u24 v{va}, {FS}, v{va}")
    A(f"v_add_u32 v{va}, s{S_TMP}, v{va}")
def lstore(A, VM, tag, ins):
    s = A.newlabel("wt"); r = A.newlabel("wb")
    A(f"s_cmp_lg_u32 s{S_MODE}, 0")
    A(f"s_cbranch_scc1 {s}")
    for i in ins:
        if VM is not None and i.startswith("buffer"): VM.issue(tag, i)
        else: A(i)
    A.label(r)
    def ool(B):
        B.label(s)
        for i in ins: B(i + (" sc1" if i.startswith("buffer") else ""))
        B(f"s_branch {r}")
    OOL.append(ool)
def group_check1(A, vd, va, repoison):
    s = A.newlabel("gs"); r = A.newlabel("gb"); g = A.newlabel("gg"); l2 = A.newlabel("g2"); rt = A.newlabel("gr")
    A(f"v_cmp_ne_u64 vcc, s[{S_TX}:{S_TX+1}], {vr(vd,2)}")
    A(f"s_cbranch_vccnz {s}")
    A.label(r)
    def ool(B):
        B.label(s)
        B(f"v_xor_b32 v{vd+1}, s{S_T+1}, v{vd+1}")
        B(f"v_xor_b32 v{vd}, s{S_T}, v{vd}")
        B(f"v_lshrrev_b32 v{vd+1}, 4, v{vd+1}")
        B(f"v_or_b32 v{vd}, v{vd}, v{vd+1}")
        B(f"v_cmp_ne_u32 vcc, 0, v{vd}")
        B(f"s_cbranch_vccnz {rt}")
        B(f"s_mov_b32 s{S_MODE}, 1")
        for i in repoison: B(i + " sc1")
        B("s_waitcnt vmcnt(0)")
        B(f"s_lshl_b32 s58, s{S_XCD}, 5")
        B(f"s_add_u32 s58, s58, s{S_J}")
        B("s_lshl_b32 s58, s58, 2")
        B(f"s_add_u32 s58, s58, s{S_W}")
        B(f"s_mul_i32 s58, s58, {FS}")
        B(f"s_add_u32 s58, s58, {FL3}")
        flag_store(B, 58, vd)
        B(f"s_mul_i32 s58, s{S_XCD}, {128*FS}")
        B(f"s_add_u32 s58, s58, {FL3}")
        B(f"s_add_u32 s59, s58, {64*FS}")
        B(f"v_mul_u32_u24 v{va}, {FS}, v0")
        B.label(l2)
        B(f"buffer_load_dwordx2 {vr(vd,2)}, v{va}, {SR(S_WS)}, s58 offen sc1")
        B(f"buffer_load_dwordx2 {vr(2,2)}, v{va}, {SR(S_WS)}, s59 offen sc1")
        B("s_waitcnt vmcnt(0)")
        B(f"s_sub_u32 s{S_TO}, s{S_TO}, 1")
        B(f"s_cbranch_scc1 {g}")
        B(f"v_cmp_ne_u64 vcc, s[{S_T}:{S_T+1}], {vr(vd,2)}")
        B(f"s_cbranch_vccnz {l2}")
        B(f"v_cmp_ne_u64 vcc, s[{S_T}:{S_T+1}], {vr(2,2)}")
        B(f"s_cbranch_vccnz {l2}")
        B(f"s_branch {r}")
        B.label(rt)
        B(flag_load(vd, va))
        B("s_waitcnt vmcnt(0)")
        B(f"s_sub_u32 s{S_TO}, s{S_TO}, 1")
        B(f"s_cbranch_scc1 {g}")
        B(f"v_cmp_ne_u64 vcc, s[{S_TX}:{S_TX+1}], {vr(vd,2)}")
        B(f"s_cbranch_vccnz {s}")
        B(f"s_branch {r}")
        B.label(g)
        B(f"s_mov_b32 s{S_TO}, 0")
        B(f"s_branch {r}")
    OOL.append(ool)
SCF = " sc1" if E("SCF", "1") == "1" else ""
class only:
    def __init__(self, A, reg, val): self.A, self.reg, self.val = A, reg, val
    def __enter__(self):
        self.l = self.A.newlabel("only")
        self.A(f"s_cmp_lg_u32 s{self.reg}, {self.val}")
        self.A(f"s_cbranch_scc1 {self.l}")
    def __exit__(self, *a): self.A.label(self.l)

def div12(A, idx, kr, wi):
    A(f"v_mul_u32_u24 v{kr}, 171, v{idx}")
    A(f"v_lshrrev_b32 v{kr}, 11, v{kr}")
    A(f"v_mul_u32_u24 v{wi}, 12, v{kr}")
    A(f"v_sub_u32 v{wi}, v{idx}, v{wi}")
assert all((i * 171) >> 11 == i // 12 for i in range(192))
assert all((i * 171) >> 9 == i // 3 for i in range(48))

def halfsum(A, r, t):
    A(f"v_mov_b32 v{t}, v{r}")
    A("s_nop 1")
    A(f"v_permlane32_swap_b32 v{r}, v{t}")
    A("s_nop 1")
    A(f"v_add_f32 v{r}, v{r}, v{t}")

def ln_final(s1, s2, t, nmean, var):
    return [f"v_mov_b32 v{t}, v{s1}", f"v_mov_b32 v{t+1}, v{s2}", "s_nop 1",
            f"v_permlane32_swap_b32 v{s1}, v{t}", f"v_permlane32_swap_b32 v{s2}, v{t+1}", "s_nop 1",
            f"v_add_f32 v{s1}, v{s1}, v{t}", f"v_add_f32 v{s2}, v{s2}, v{t+1}",
            f"v_mul_f32 v{nmean}, {f32(-1.0/512)}, v{s1}", f"v_mul_f32 v{s2}, {f32(1.0/512)}, v{s2}",
            f"v_fma_f32 v{var}, -v{nmean}, v{nmean}, v{s2}", f"v_max_f32 v{var}, 0, v{var}",
            f"v_add_f32 v{var}, {f32(1e-5)}, v{var}"]

def pk_fma(d, a, b, c, bc=()):
    hi = [0 if i in bc else 1 for i in range(3)]
    s = f"v_pk_fma_f32 {vr(d,2)}, {vr(a,2)}, {vr(b,2)}, {vr(c,2)}"
    if bc: s += f" op_sel_hi:[{hi[0]},{hi[1]},{hi[2]}]"
    return s
def pk_mul(d, a, b, bc=()):
    hi = [0 if i in bc else 1 for i in range(2)]
    s = f"v_pk_mul_f32 {vr(d,2)}, {vr(a,2)}, {vr(b,2)}"
    if bc: s += f" op_sel_hi:[{hi[0]},{hi[1]}]"
    return s
def pk_add(d, a, b):
    return f"v_pk_add_f32 {vr(d,2)}, {vr(a,2)}, {vr(b,2)}"

def swap23(A, d, t):
    A(f"v_and_b32 v{d}, 0x33, v0")
    A(f"v_bfe_u32 v{t}, v0, 2, 1")
    A(f"v_lshl_or_b32 v{d}, v{t}, 3, v{d}")
    A(f"v_bfe_u32 v{t}, v0, 3, 1")
    A(f"v_lshl_or_b32 v{d}, v{t}, 2, v{d}")
    A(f"v_lshlrev_b32 v{d}, 4, v{d}")

POS2 = [3 * BLK + 4096 * n for n in range(20)] + [9 * BLK + 4096 * n for n in range(3)] + \
       [8 * BLK + 4096 * n for n in range(4)] + [4096 * n for n in range(12)] + [3 * BLK + 4096 * n for n in range(4)]
assert len(POS2) == 43 and POS2[19] + 4096 <= 8 * BLK and POS2[22] + 4096 <= SCR and POS2[3] + 4096 <= 4 * BLK
def slot13(b): return (b if b < 9 else b - 9) * BLK

WB, XB = 0, 5 * 12288
sRB, sCB = 48, 49

def prologue(A):
    A.raw(f".globl {KNAME}")
    A.raw(".p2align 8")
    A.raw(f".type {KNAME},@function")
    A.label(KNAME)
    ET = int(E("ET", 2))
    A(f"s_lshr_b32 s{S_J}, s2, 3")
    A(f"s_cmp_ge_u32 s{S_J}, 32")
    A("s_cbranch_scc1 L_end")
    stamp(A, "start")
    if ET:
        A("s_load_dwordx4 s[68:71], s[0:1], 0")
        A(f"s_and_b32 s{S_XCD}, s2, 7")
        A(f"s_lshl_b32 s62, s{S_XCD}, 7")
        A(f"s_lshl_b32 s63, s{S_J}, 16")
        A("s_add_u32 s63, s63, s62")
        A(f"s_mul_i32 s61, s{S_J}, 49152")
        A("s_add_u32 s62, s62, s61")
        A("v_lshl_add_u32 v2, v0, 10, s63")
        A("v_subrev_u32 v3, 64, v0")
        A("v_cmp_gt_u32 vcc, 64, v0")
        A("v_cmp_gt_u32 s[64:65], 48, v3")
        A("v_lshl_add_u32 v3, v3, 10, s62")
        if ET == 2:
            A("s_or_b64 s[58:59], vcc, s[64:65]")
            A("s_cbranch_scc0 L_et")
        A("s_mov_b64 exec, vcc")
        A("s_waitcnt lgkmcnt(0)")
        A("global_load_dword v4, v2, s[68:69]")
        A("s_mov_b64 exec, s[64:65]")
        A("global_load_dword v5, v3, s[70:71]")
        A("s_mov_b64 exec, -1")
        A.label("L_et")
        stamp(A, "et")
    ptrs = [(72, S_WS, WS_BYTES), (0, S_X, 2048 * 1024), (8, S_WQ, 512 * 3072), (16, S_WO, 512 * 1024),
            (32, S_W1, 512 * 2752), (40, S_W3, 512 * 2752), (48, S_W2, 1376 * 1024), (56, S_OUT, 2048 * 1024), (64, S_DBG, 256)]
    ptrs = ptrs[1:3] + ptrs[0:1] + ptrs[3:]
    for n, (off, d, nb) in enumerate(ptrs):
        A(f"s_load_dwordx2 s[{d}:{d+1}], s[0:1], {off}")
    if E("KW"):
        A("s_waitcnt lgkmcnt(0)")
        stamp(A, "kw")
    A("v_lshrrev_b32 v1, 6, v0")
    A("v_and_b32 v0, 63, v0")
    A(f"v_readfirstlane_b32 s{S_W}, v1")
    if not ET: A(f"s_and_b32 s{S_XCD}, s2, 7")
    A(f"v_lshlrev_b32 v{vL16}, 4, v0")
    A(f"s_lshr_b32 s{sRB}, s{S_J}, 1")
    A(f"s_and_b32 s{sCB}, s{S_J}, 1")
    A(f"s_lshl1_add_u32 s{sCB}, s{S_XCD}, s{sCB}")
    A(f"s_mov_b32 s{S_MODE}, 0")
    for n, (off, d, nb) in enumerate(ptrs):
        A(f"s_mov_b32 s{d+2}, {hex(nb)}")
        A(f"s_mov_b32 s{d+3}, 0x00020000")
    A(f"s_mov_b32 s{S_TO}, {TOLIM}")
    stamp(A, "p1")
    def fin():
        A("s_waitcnt lgkmcnt(0)")
        A(f"s_load_dwordx2 s[6:7], s[{S_WS}:{S_WS+1}], {NONCE}")
    return fin

def k1_wa(A, vWa, t0, t1):
    A(f"v_lshrrev_b32 v{t0}, 5, v0")
    A(f"v_lshlrev_b32 v{t0}, 3, v{t0}")
    A(f"v_bfe_u32 v{t1}, v0, 2, 2")
    A(f"v_add_u32 v{t0}, v{t0}, v{t1}")
    A(f"v_mul_u32_u24 v{vWa}, 192, v{t0}")
    A(f"v_bfe_u32 v{t1}, v0, 4, 1")
    A(f"v_lshl_add_u32 v{vWa}, v{t1}, 5, v{vWa}")
    A(f"v_and_b32 v{t1}, 3, v0")
    A(f"v_lshl_add_u32 v{vWa}, v{t1}, 3, v{vWa}")

def c_k1(A, fin):
    R = Regs(8)
    vWa = R.alloc(); vOnes = R.alloc(); vt = R.alloc(); vh = R.alloc(); tm = R.alloc(3)
    vXa = R.alloc(4); vXb = R.alloc(4)
    s1 = R.alloc(2, 2); s2 = R.alloc(2, 2)
    acc = [R.alloc(16, 4) for _ in range(3)]
    XF = [R.alloc(4, 4) for _ in range(3)]
    WF = [[R.alloc(4, 4) for _ in range(3)] for _ in range(3)]
    T = R.alloc(4, 2); nm = R.alloc(2, 2); rs = R.alloc(2, 2); rq = R.alloc(2, 2); csv = R.alloc(6, 2)
    CS = R.alloc(48, 4); VS = R.alloc(32, 4); PK = R.alloc(24, 4)
    vA = R.alloc(4); vVo = R.alloc()
    TX = int(E("TX", 12 if int(E("ET", 1)) else 15))
    if TX & 4:
        with only(A, S_W, 2):
            A("s_getpc_b64 s[58:59]")
            A.label("L_pc")
            A(f"s_mul_i32 s60, s{S_J}, 12")
            A(f"v_add_u32 v{tm}, s60, v0")
            A(f"v_lshlrev_b32 v{tm}, 7, v{tm}")
            A(f"v_min_u32 v{tm}, {E('PFE','L_last')}-{KNAME}, v{tm}")
            A(f"s_sub_u32 s58, s58, L_pc-{KNAME}")
            A("s_subb_u32 s59, s59, 0")
            A(f"v_mov_b32 v{PK+1}, s59")
            A(f"v_add_co_u32 v{PK}, vcc, s58, v{tm}")
            A(f"v_addc_co_u32 v{PK+1}, vcc, 0, v{PK+1}, vcc")
            A("s_mov_b64 exec, 0xfff")
            A(f"global_load_dword v{PK+2}, {vr(PK,2)}, off")
            A("s_mov_b64 exec, -1")
    def touch():
        A(f"s_lshl_b32 s62, s{S_XCD}, 7")
        A(f"s_lshl_b32 s63, s{S_J}, 16")
        A("s_add_u32 s63, s63, s62")
        A(f"v_lshlrev_b32 v{VS}, 10, v0")
        A(f"s_mul_i32 s58, s{S_J}, {16*3072}")
        A("s_add_u32 s62, s62, s58")
        A(f"v_and_b32 v{VS+1}, 15, v0")
        A(f"v_mul_u32_u24 v{VS+1}, 3072, v{VS+1}")
        A(f"v_lshrrev_b32 v{VS+2}, 4, v0")
        A(f"v_lshl_add_u32 v{VS+1}, v{VS+2}, 10, v{VS+1}")
        if not E("TXD"): A("s_waitcnt lgkmcnt(0)")
        sk = A.newlabel("sk")
        if TX & 1:
            with only(A, S_W, 0):
                if E("TXS"):
                    A(f"s_cmp_lt_u32 s{S_XCD}, {E('TXS')}")
                    A(f"s_cbranch_scc1 {sk}")
                A(f"buffer_load_dword v{VS+3}, v{VS}, {SR(S_X)}, s63 offen")
        if TX & 2:
            with only(A, S_W, 1):
                if E("TXS"):
                    A(f"s_cmp_lt_u32 s{S_J}, {4*int(E('TXS'))}")
                    A(f"s_cbranch_scc1 {sk}")
                A(f"buffer_load_dword v{VS+3}, v{VS+1}, {SR(S_WQ)}, s62 offen")
        if TX & 8:
            with only(A, S_W, 3):
                A(f"s_lshl_b32 s58, s{S_J}, 16")
                A(f"s_add_u32 s59, s58, {OF}")
                A(f"v_lshlrev_b32 v{VS+2}, 21, v0")
                A("s_mov_b64 exec, 1")
                for n, sd in enumerate((S_WO, S_W1, S_W3, S_W2, S_OUT)):
                    A(f"buffer_load_dword v{VS+4+n}, off, {SR(sd)}, s58")
                A("s_mov_b64 exec, 0x1f")
                A(f"buffer_load_dword v{VS+9}, v{VS+2}, {SR(S_WS)}, s59 offen")
                A("s_mov_b64 exec, -1")
        A.label(sk)
        stamp(A, "tx")
    stamp(A, "c0")
    if TX & 11 and not E("TXD"): touch()
    k1_wa(A, vWa, tm, tm + 1)
    A(f"v_mov_b32 v{vOnes}, 0x3f803f80")
    A(f"v_and_b32 v{vt}, 31, v0")
    A(f"v_lshrrev_b32 v{vh}, 5, v0")
    A(f"v_bfe_u32 v{tm}, v0, 1, 3")
    A(f"s_lshl_b32 s50, s{S_W}, 12")
    A(f"s_add_u32 s50, s50, {XB}")
    A(f"v_lshlrev_b32 v{tm+1}, 7, v{vt}")
    A(f"v_add_u32 v{tm+1}, s50, v{tm+1}")
    for i in range(4):
        A(f"v_or_b32 v{vXa+i}, {2*i}, v{vh}")
        A(f"v_xor_b32 v{vXa+i}, v{vXa+i}, v{tm}")
        A(f"v_lshl_add_u32 v{vXa+i}, v{vXa+i}, 4, v{tm+1}")
        A(f"v_add_u32 v{vXb+i}, 0x10000, v{vXa+i}")
    for r in (s1, s1 + 1, s2, s2 + 1):
        A(f"v_mov_b32 v{r}, 0")
    A(f"s_lshl_b32 s50, s{S_W}, 8")
    A(f"s_add_u32 s50, s50, {ST1}")
    A(f"v_lshl_add_u32 v{vA}, v0, 2, s50")
    A(f"v_lshl_add_u32 v{vA+1}, v{vh}, 4, s50")
    A(f"v_lshlrev_b32 v{vA+2}, 4, v{vh}")
    A(f"v_add_u32 v{vA+2}, {SC1}, v{vA+2}")
    A(f"v_lshlrev_b32 v{vA+3}, 2, v{vt}")
    A(f"v_add_u32 v{vA+3}, {SC1}, v{vA+3}")
    A(f"v_and_b32 v{vVo}, 15, v0")
    A(f"v_lshlrev_b32 v{vVo}, 4, v{vVo}")
    A(f"v_lshl_or_b32 v{vVo}, v{vh}, 8, v{vVo}")
    A(f"v_bfe_u32 v{tm}, v0, 4, 1")
    A(f"v_lshl_or_b32 v{vVo}, v{tm}, 16, v{vVo}")
    sRU, sB = 50, 51
    for r in range(4): A(f"v_mov_b32 v{CS+r}, -1")
    group_flag_addr(A, 6)
    A(f"s_lshl_b32 s{sRU}, s{sRB}, 2")
    A(f"s_add_u32 s{sRU}, s{sRU}, s{S_W}")
    A(f"s_lshl_b32 s60, s{sCB}, 17")
    A(f"s_lshl_b32 s61, s{sRU}, 10")
    A("s_add_u32 s60, s60, s61")
    for i, o in enumerate((0, 0x10000, 0x200000, 0x210000, 0x400000)):
        A(f"s_add_u32 s{sB+i}, s60, {QKV + o}")
    def qkv_store(u, g, r):
        if u == 2: return f"buffer_store_dwordx4 {vr(r,4)}, v{vVo}, {SR(S_WS)}, s{sB+4} offen offset:{512*g}"
        return f"buffer_store_dwordx4 {vr(r,4)}, v{vL16}, {SR(S_WS)}, s{sB+2*u+g} offen"
    fin()
    if TX & 11 and E("TXD"): touch()
    def poison1():
        for u in range(0 if E("NOP1") else 3):
            for g in range(2): A(qkv_store(u, g, CS))
    PZ = int(E("PZ", 0))
    stamp(A, "abi")
    if BI: A("s_barrier")
    if PZ == 0: poison1()
    A(f"s_lshl_b32 s57, s{S_XCD}, 5")
    A(f"s_add_u32 s57, s57, s{S_J}")
    A(f"s_mul_i32 s57, s57, {FS}")
    A(f"s_add_u32 s57, s57, {FL1}")
    A("s_waitcnt lgkmcnt(0)")
    make_T(A)
    def reads(s):
        c, sub, b = s >> 2, s & 3, s % 3
        slot = c % 5
        out = []
        if slot < 4: out.append(f"ds_read_b128 {vr(XF[b],4)}, v{vXa+sub} offset:{slot*16384}")
        else: out.append(f"ds_read_b128 {vr(XF[b],4)}, v{vXb+sub}")
        for u in range(3):
            for sec in range(2):
                off = WB + slot * 12288 + (16 * sub + 4 * sec) * 192 + 64 * u
                out.append(f"ds_read_b64_tr_b16 {vr(WF[b][u]+2*sec,2)}, v{vWa} offset:{off}")
        return out
    A("s_barrier")
    stamp(A, "b0")
    for l in reads(0) + reads(1): A(l)
    if PZ == 1: poison1()
    PB, PC = int(E("PB", 3)), int(E("PC", 6))
    for pat in ((0, 0, 1),):
        for s in range(32):
            b = s % 3
            nx = reads(s + 2) if s + 2 < 32 else []
            if nx and (s + 2) % 4 == 0:
                stamp(A, f"k1a{(s+2)//4}")
                if (s + 2) // 4 == PB: A("s_waitcnt vmcnt(0)")
                A("s_barrier")
                stamp(A, f"k1b{(s+2)//4}")
                if (s + 2) // 4 == PB:
                    with only(A, S_W, 0): flag_store(A, 57, 2, S_TX)
                if (s + 2) // 4 == PC: A(flag_load(4, 6, SCF))
                if (s + 2) // 4 == PZ - 1: poison1()
            A(f"s_waitcnt lgkmcnt({7 if s < 31 else 0})")
            dots = []
            for r in range(4):
                dots.append(f"v_dot2_f32_bf16 v{s1+(r&1)}, v{XF[b]+r}, v{vOnes}, v{s1+(r&1)}")
                dots.append(f"v_dot2_f32_bf16 v{s2+(r&1)}, v{XF[b]+r}, v{XF[b]+r}, v{s2+(r&1)}")
            c0 = 0 if s == 0 else None
            for u in range(3):
                A(mfma(acc[u], XF[b], WF[b][u], c0) if pat[u] else mfma(acc[u], WF[b][u], XF[b], c0))
                for l in (nx[0:4], nx[4:7], [] if E("NODOT") else dots)[u]: A(l)
        stamp(A, "k1end")
        A("s_nop 2")
        A(f"v_add_f32 v{s1}, v{s1}, v{s1+1}")
        A(f"v_add_f32 v{s2}, v{s2}, v{s2+1}")
        for l in ln_final(s1, s2, T, nm, rs): A(l)
        A(f"v_rsq_f32 v{rs}, v{rs}")
        if any(pat):
            A("v_cmp_gt_u32 vcc, 32, v0")
            A("s_nop 1")
            A(f"v_cndmask_b32 v{T}, v{nm}, v{rs}, vcc")
            A(f"ds_write_b32 v{vA}, v{T}")
            A("s_waitcnt lgkmcnt(0)")
            for g in range(4):
                A(f"ds_read_b128 {vr(VS+4*g,4)}, v{vA+1} offset:{32*g}")
                A(f"ds_read_b128 {vr(VS+16+4*g,4)}, v{vA+1} offset:{128+32*g}")
            A("s_waitcnt lgkmcnt(0)")
        A("s_waitcnt vmcnt(0)")
        group_check1(A, 4, 6, [qkv_store(u, g, CS) for u in range(3) for g in range(2)])
        stamp(A, "acs")
        A("s_barrier")
        stamp(A, "bcs")
        LG = Q("lgkmcnt", A)
        order = (1, 2, 0)
        for u in order:
            if pat[u]:
                LG.issue(u, f"ds_read_b32 v{csv+2*u}, v{vA+3} offset:{128*u}")
            else:
                for g in range(4):
                    LG.issue(u, f"ds_read_b128 {vr(CS+16*u+4*g,4)}, v{vA+2} offset:{128*u+32*g}")
        A(f"v_mul_f32 v{rq}, {f32(0.25*LOG2E)}, v{rs}")
        for u in order:
            a = acc[u]
            LG.wait([u])
            for r in range(0, 16, 2):
                A(pk_fma(a + r, VS + 16 + r, csv + 2 * u, a + r, bc=(1,)) if pat[u] else pk_fma(a + r, CS + 16 * u + r, nm, a + r, bc=(1,)))
            for r in range(0, 16, 2):
                A(pk_mul(a + r, a + r, VS + r) if pat[u] else pk_mul(a + r, a + r, rs if u else rq, bc=(1,)))
            for r in range(8):
                A(f"v_cvt_pk_bf16_f32 v{PK+8*u+r}, v{a+2*r}, v{a+2*r+1}")
            for g in range(2): A(clamp(PK + 8 * u + 4 * g + 3))
            stamp(A, f"st{u}")
            lstore(A, None, None, [qkv_store(u, g, PK + 8 * u + 4 * g) for g in range(2)])
            if u == 2 and BKV: A("s_barrier")
    stamp(A, "k1pub")

def attn_ids(A, sHead, sQB):
    if E("XR", "1") == "1":
        A(f"s_and_b32 s{sHead}, s{S_J}, 1")
        A(f"s_lshl1_add_u32 s{sHead}, s{S_XCD}, s{sHead}")
        A(f"s_bfe_u32 s{sQB}, s{S_J}, 0x10001")
        A(f"s_lshl1_add_u32 s{sHead}, s{sHead}, s{sQB}")
    else:
        A(f"s_lshl_b32 s{sHead}, s{S_XCD}, 2")
        A(f"s_and_b32 s{sQB}, s{S_J}, 3")
        A(f"s_add_u32 s{sHead}, s{sHead}, s{sQB}")
    A(f"s_lshr_b32 s{sQB}, s{S_J}, 2")

def g64_ids(A, sRU, sKH, sCU, t, S_W=S_W):
    A(f"s_lshl_b32 s{sRU}, s{S_XCD}, 2")
    A(f"s_and_b32 s{t}, s{S_J}, 3")
    A(f"s_add_u32 s{sRU}, s{sRU}, s{t}")
    A(f"s_lshl_b32 s{sRU}, s{sRU}, 1")
    A(f"s_and_b32 s{t}, s{S_W}, 1")
    A(f"s_add_u32 s{sRU}, s{sRU}, s{t}")
    A(f"s_lshr_b32 s{sKH}, s{S_W}, 1")
    A(f"s_lshr_b32 s{sCU}, s{S_J}, 2")
    A(f"s_lshl_b32 s{sCU}, s{sCU}, 1")
    A(f"s_add_u32 s{sCU}, s{sCU}, s{sKH}")
sRU5, sKH5, sCU5 = 60, 61, 62

def c_attn(A):
    sHead, sQB, sRU, sSlot, sTrip = 48, 49, 50, 51, 52
    R = Regs(16)
    vIdx = R.alloc(); vVl = R.alloc(); vK = R.alloc(2); vV = R.alloc(2); T = R.alloc(2, 2)
    Qa = R.alloc(4, 4); Qb = R.alloc(4, 4)
    Na = R.alloc(16, 4); Nb = R.alloc(16, 4)
    Oa = R.alloc(16, 4); Ob = R.alloc(16, 4)
    Sa = R.alloc(16, 4); Sb = R.alloc(16, 4)
    K = [R.alloc(4, 4), R.alloc(4, 4)]
    V = [R.alloc(8, 4), R.alloc(8, 4)]
    attn_ids(A, sHead, sQB)
    A(f"s_lshl_b32 s{sRU}, s{sQB}, 3")
    A(f"s_lshl_b32 s53, s{S_W}, 1")
    A(f"s_add_u32 s{sRU}, s{sRU}, s53")
    A(f"s_lshl_b32 s54, s{sHead}, 16")
    A(f"s_lshl_b32 s55, s{sRU}, 10")
    A("s_add_u32 s54, s54, s55")
    A(f"s_add_u32 s54, s54, {QKV}")
    QE = int(E("QE", 1))
    VM = Q("vmcnt", A)
    LQ = Ld(A, VM, 54, None, "q")
    def qload():
        LQ.load("q", 4, Qa, vL16, 0)
        LQ.load("q", 4, Qb, vL16, 1024)
        stamp(A, "qiss")
    if QE: qload()
    g64_ids(A, sRU5, sKH5, sCU5, 55)
    A(f"v_and_b32 v{T+1}, 31, v0")
    A(f"v_lshlrev_b32 v5, 10, v{T+1}")
    A(f"v_lshrrev_b32 v{T+1}, 5, v0")
    A(f"v_lshl_add_u32 v5, v{T+1}, 3, v5")
    A(f"s_lshl_b32 s55, s{sRU5}, 15")
    A(f"s_lshl_b32 s56, s{sCU5}, 6")
    A("s_add_u32 s55, s55, s56")
    A(f"v_mov_b32 v{vIdx}, 0xdddddddd")
    A(f"v_and_b32 v{vVl}, 15, v0")
    A(f"v_lshlrev_b32 v{vVl}, 4, v{vVl}")
    A(f"v_lshl_add_u32 v{vVl}, v{T+1}, 8, v{vVl}")
    A(f"v_and_b32 v{T+1}, 16, v0")
    A(f"v_cmp_eq_u32 vcc, 0, v{T+1}")
    A(f"v_and_b32 v{T}, 0x1b, v0")
    A(f"v_cmp_eq_u32 s[56:57], 16, v{T}")
    A(f"v_mov_b32 v{T}, 512")
    A(f"v_mov_b32 v{T+1}, 528")
    A(f"v_cndmask_b32 v{T+1}, v{T+1}, v{T}, s[56:57]")
    for r in range(16):
        A(f"v_mov_b32 v{Oa+r}, 0")
        A(f"v_mov_b32 v{Ob+r}, 0")
        if r >= 8: A(f"v_mov_b32 v{Sb+r}, 0")
        if r < 4: A(f"v_mov_b32 v{V[1]+4+r}, 0")
    A(f"v_cndmask_b32 v{vVl}, v{T+1}, v{vVl}, vcc")
    for q in range(2):
        A(f"v_add_u32 v{vV+q}, {RING+q*SEG}, v{vVl}")
    A(f"s_mov_b32 s{sSlot}, {RING+SEG}")
    A(f"s_mov_b32 s{sTrip}, 0")
    def resload():
        for g in range(4):
            A(f"buffer_load_dwordx2 {vr(RES+2*g,2)}, v5, {SR(S_X)}, s55 offen offset:{16*g}")
    for q in range(2):
        A(f"v_add_u32 v{vK+q}, {RING+q*SEG}, v{vL16}")
    RL = int(E("RL", 2))
    if not QE: qload()
    VM.drain()
    stamp(A, "qland")
    sent_check(A, *group_check(["q"], [LQ]))
    if RL == 1: resload()
    stamp(A, "qflag")
    A("s_barrier")
    stamp(A, "bai")
    A(f"ds_read_b128 {vr(K[0],4)}, v{vK} offset:{KO}")
    A(f"ds_read_b128 {vr(V[0],4)}, v{vV}")
    A(f"ds_read_b128 {vr(V[0]+4,4)}, v{vV} offset:{VH}")
    A(f"ds_read_b128 {vr(K[1],4)}, v{vK} offset:{TILE+KO}")
    A("s_waitcnt lgkmcnt(3)")
    A(mfma(Na, K[0], Qa, 0))
    A(mfma(Nb, K[0], Qb, 0))
    if RL == 2: resload()
    if E("T0") == "23":
        A("s_lshl_b32 s57, s2, 2")
        A(f"s_add_u32 s57, s57, s{S_W}")
        A("s_mul_i32 s57, s57, 1408")
        A(f"v_lshlrev_b32 v5, 6, v0")
        A("s_mov_b64 exec, 0x3fffff")
        for n, sd in enumerate((S_WO, S_W1, S_W3, S_W2)):
            A(f"buffer_load_dword v{6+(n&1)}, v5, {SR(sd)}, s57 offen")
        A("s_mov_b64 exec, -1")
    A("s_nop 7")
    A("s_nop 2")
    def rowmax(N):
        A(f"v_max3_f32 v{T}, v{N}, v{N+1}, v{N+2}")
        A(f"v_max3_f32 v{T+1}, v{N+3}, v{N+4}, v{N+5}")
        for r in range(6, 14, 4):
            A(f"v_max3_f32 v{T}, v{N+r}, v{N+r+1}, v{T}")
            A(f"v_max3_f32 v{T+1}, v{N+r+2}, v{N+r+3}, v{T+1}")
        A(f"v_max3_f32 v{T}, v{N+14}, v{N+15}, v{T}")
        A(f"v_max_f32 v{T}, v{T}, v{T+1}")
        A(f"v_mov_b32 v{T+1}, v{T}")
        A("s_nop 1")
        A(f"v_permlane32_swap_b32 v{T}, v{T+1}")
        A("s_nop 1")
        A(f"v_max_f32 v{T}, v{T}, v{T+1}")
        A(f"v_sub_f32 v{T}, 0, v{T}")
        for r in range(16):
            A(f"v_mov_b32 v{N+r}, v{T}")
    rowmax(Na)
    A("s_nop 1")
    A(mfma(Sa, K[0], Qa, Na))
    rowmax(Nb)
    def ex(S, lo, hi):
        for r in range(lo, hi): A(f"v_exp_f32 v{S+r}, v{S+r}")
    A.raw(".p2align 6")
    A.label("L_attn")
    p1, p2, p3 = 2, 7, 12
    for q in range(2):
        for t in range(8):
            c = t & 1; n = c ^ 1
            va, vo = (vV + q, TILE * (t + 1)) if t + 1 < 8 else (vV + (q ^ 1), 0)
            ka, ko = (vK + q, TILE * (t + 2)) if t + 2 < 8 else (vK + (q ^ 1), TILE * (t + 2 - 8))
            ex(Sa, 0, p1)
            A(smfmac(Ob, V[n] + 4, Sb + 8, vIdx))
            A(f"ds_read_b128 {vr(V[n],4)}, v{va} offset:{vo}")
            ex(Sa, p1, p2)
            A(mfma(Sb, K[c], Qb, Nb))
            A(f"ds_read_b128 {vr(V[n]+4,4)}, v{va} offset:{vo+VH}")
            ex(Sa, p2, p3)
            A("s_waitcnt lgkmcnt(2)")
            A(smfmac(Oa, V[c], Sa, vIdx))
            if t == 6: A("s_barrier")
            A(f"ds_read_b128 {vr(K[c],4)}, v{ka} offset:{ko+KO}")
            ex(Sa, p3, 16)
            ex(Sb, 0, p1)
            A(smfmac(Oa, V[c] + 4, Sa + 8, vIdx))
            if t == 7:
                A(f"s_add_u32 s{sSlot}, s{sSlot}, {SEG}")
                A(f"s_cmp_eq_u32 s{sSlot}, {RING+3*SEG}")
                A(f"s_cselect_b32 s{sSlot}, {RING}, s{sSlot}")
            ex(Sb, p1, p2)
            A(mfma(Sa, K[n], Qa, Na))
            if t == 7:
                A(f"v_add_u32 v{vK+q}, s{sSlot}, v{vL16}")
                A(f"v_add_u32 v{vV+q}, s{sSlot}, v{vVl}")
            ex(Sb, p2, p3)
            A(smfmac(Ob, V[c], Sb, vIdx))
            if t == 7 and q == 1:
                A(f"s_add_u32 s{sTrip}, s{sTrip}, 1")
                A(f"s_cmp_lt_u32 s{sTrip}, 4")
            ex(Sb, p3, 16)
    A("s_cbranch_scc1 L_attn")
    A("s_nop 1")
    A(smfmac(Ob, V[1] + 4, Sb + 8, vIdx))
    A("s_waitcnt lgkmcnt(0)")
    A("s_barrier")
    stamp(A, "be")
    A(f"s_lshl_b32 s53, s{sRU}, 15")
    A(f"s_lshl_b32 s54, s{sHead}, 10")
    A("s_add_u32 s53, s53, s54")
    A(f"s_add_u32 s53, s53, {OF}")
    A("s_add_u32 s55, s53, 0x8000")
    A(f"v_mov_b32 v{T}, {f32(2.0**30)}")
    for nm_, O, Qx, so in (("a", Oa, Qa, 53), ("b", Ob, Qb, 55)):
        A(f"v_cmp_nge_f32 vcc, v{T}, v{O+8}")
        A(f"s_cbranch_vccnz L_fb_{nm_}")
        A.label(f"L_fz_{nm_}")
        A(f"v_rcp_f32 v{vK}, v{O+8}")
        A("s_nop 0")
        for r in range(0, 8, 2):
            A(pk_mul(O + r, O + r, vK, bc=(1,)))
        for r in range(4):
            A(f"v_cvt_pk_bf16_f32 v{O+12+r}, v{O+2*r}, v{O+2*r+1}")
        A(clamp(O + 15))
        A(f"buffer_store_dwordx4 {vr(O+12,4)}, v{vL16}, {SR(S_WS)}, s{so} offen sc1")
        def ool(B, nm_=nm_, O=O, Qx=Qx):
            B.label(f"L_fb_{nm_}")
            swap23(B, vK, vK + 1)
            B(f"s_lshl_b32 s57, s{sHead}, 16")
            B(f"s_add_u32 s57, s57, {QKV + 0x200000}")
            B("s_mov_b32 s58, s57")
            B(f"v_mov_b32 v{Nb}, 0xff800000")
            B(f"s_mov_b32 s{sTrip}, 0")
            B.label(f"L_fb1_{nm_}")
            B(f"buffer_load_dwordx4 {vr(K[0],4)}, v{vK}, {SR(S_WS)}, s58 offen sc1")
            B("s_waitcnt vmcnt(0)")
            B(mfma(Sa, K[0], Qx, 0))
            B("s_nop 7")
            B("s_nop 7")
            for r in range(0, 16, 2):
                B(f"v_max3_f32 v{Nb}, v{Sa+r}, v{Sa+r+1}, v{Nb}")
            B("s_add_u32 s58, s58, 1024")
            B(f"s_add_u32 s{sTrip}, s{sTrip}, 1")
            B(f"s_cmp_lt_u32 s{sTrip}, 64")
            B(f"s_cbranch_scc1 L_fb1_{nm_}")
            B(f"v_mov_b32 v{Nb+1}, v{Nb}")
            B("s_nop 1")
            B(f"v_permlane32_swap_b32 v{Nb}, v{Nb+1}")
            B("s_nop 1")
            B(f"v_max_f32 v{Nb}, v{Nb}, v{Nb+1}")
            B(f"v_sub_f32 v{Nb}, 0, v{Nb}")
            for r in range(16):
                B(f"v_mov_b32 v{Na+r}, v{Nb}")
                B(f"v_mov_b32 v{O+r}, 0")
            for r in range(8):
                B(f"v_mov_b32 v{V[0]+r}, 0x3f803f80")
            B("s_mov_b32 s58, s57")
            B(f"s_mov_b32 s{sTrip}, 0")
            B("s_mov_b32 s64, 0x0000ffff")
            B("s_mov_b32 s65, 0x0000ffff")
            B.label(f"L_fb2_{nm_}")
            B("s_add_u32 s59, s58, 0x200000")
            B(f"buffer_load_dwordx4 {vr(K[0],4)}, v{vK}, {SR(S_WS)}, s58 offen sc1")
            B("s_mov_b64 exec, s[64:65]")
            B(f"buffer_load_dwordx4 {vr(V[0],4)}, v{vVl}, {SR(S_WS)}, s59 offen sc1")
            B(f"buffer_load_dwordx4 {vr(V[0]+4,4)}, v{vVl}, {SR(S_WS)}, s59 offen offset:512 sc1")
            B("s_mov_b64 exec, -1")
            B("s_waitcnt vmcnt(0)")
            B(mfma(Sa, K[0], Qx, Na))
            B("s_nop 7")
            B("s_nop 7")
            for r in range(16): B(f"v_exp_f32 v{Sa+r}, v{Sa+r}")
            B("s_nop 1")
            B(smfmac(O, V[0], Sa, vIdx))
            B(smfmac(O, V[0] + 4, Sa + 8, vIdx))
            B("s_nop 7")
            B("s_add_u32 s58, s58, 1024")
            B(f"s_add_u32 s{sTrip}, s{sTrip}, 1")
            B(f"s_cmp_lt_u32 s{sTrip}, 64")
            B(f"s_cbranch_scc1 L_fb2_{nm_}")
            B("s_nop 7")
            B("s_nop 7")
            B(f"s_branch L_fz_{nm_}")
        OOL.append(ool)
    stamp(A, "opub")

def g64_addr(A, keep, send, t, base):
    A(f"v_lshrrev_b32 v{t}, 5, v0")
    A(f"v_lshlrev_b32 v{t}, 2, v{t}")
    A(f"v_bfe_u32 v{t+1}, v0, 2, 2")
    A(f"v_add_u32 v{t}, v{t}, v{t+1}")
    A(f"v_lshlrev_b32 v{t}, 7, v{t}")
    A(f"v_bfe_u32 v{t+1}, v0, 4, 1")
    A(f"v_lshl_add_u32 v{t}, v{t+1}, 5, v{t}")
    A(f"v_and_b32 v{t+1}, 3, v0")
    A(f"v_lshl_add_u32 v{t}, v{t+1}, 3, v{t}")
    A(f"v_bfe_u32 v{t+1}, v0, 3, 1")
    A(f"v_xor_b32 v{t+1}, s{sKH5}, v{t+1}")
    A(f"v_lshl_add_u32 v{t}, v{t+1}, 6, v{t}")
    A(f"v_xor_b32 v{t+1}, 64, v{t}")
    A(f"s_lshl_b32 s59, s{sKH5}, 11")
    if base: A(f"s_add_u32 s59, s59, {base}")
    A(f"v_add_u32 v{keep}, s59, v{t}")
    A(f"v_add_u32 v{send}, s59, v{t+1}")

def exchange(A, acc, UN, T, xch):
    A(f"s_lshl_b32 s59, s{S_W}, 12")
    A(f"s_add_u32 s58, s59, {xch}")
    A(f"v_add_u32 v{T}, s58, v{vL16}")
    A("s_xor_b32 s59, s59, 0x2000")
    A(f"s_add_u32 s59, s59, {xch}")
    A(f"v_add_u32 v{T+1}, s59, v{vL16}")
    for r in range(4):
        A(f"v_lshlrev_b32 v{UN+2*r}, 16, v{RES+r}")
        A(f"v_and_b32 v{UN+2*r+1}, 0xffff0000, v{RES+r}")
    for q in range(4):
        A(f"ds_write_b128 v{T}, {vr(acc[1]+4*q,4)} offset:{1024*q}")
    for r in range(4, 8):
        A(f"v_lshlrev_b32 v{UN+2*r}, 16, v{RES+r}")
        A(f"v_and_b32 v{UN+2*r+1}, 0xffff0000, v{RES+r}")
    A("s_waitcnt lgkmcnt(0)")
    A("s_barrier")
    for q in range(4):
        A(f"ds_read_b128 {vr(acc[1]+4*q,4)}, v{T+1} offset:{1024*q}")
    for r in range(0, 16, 2):
        A(pk_add(acc[0] + r, acc[0] + r, UN + r))

def c_k3(A):
    R = Regs(16)
    T = R.alloc(4, 2); vA = R.alloc(2); vSo = R.alloc()
    acc = [R.alloc(16, 4), R.alloc(16, 4)]
    WF = [[R.alloc(4, 4) for _ in range(2)] for _ in range(3)]
    R.n = 160
    AF = [R.alloc(4, 4) for _ in range(16)]
    A(f"s_lshl_b32 s48, s{sRU5}, 15")
    A(f"s_lshl_b32 s49, s{sKH5}, 10")
    A("s_add_u32 s48, s48, s49")
    A(f"s_add_u32 s48, s48, {OF}")
    g64_addr(A, vA, vA + 1, T, WOB)
    def reads(n):
        out = []
        for k in range(2):
            for sec in range(2):
                out.append(f"ds_read_b64_tr_b16 {vr(WF[n%3][k]+2*sec,2)}, v{vA+k} offset:{n*4096+sec*1024}")
        return out
    for l in reads(0) + reads(1): A(l)
    NS = 16
    VM = Q("vmcnt", A)
    LO = Ld(A, VM, 48, 49, "o")
    for n in range(NS): LO.load(n, 4, AF[n], vL16, 2048 * n)
    stamp(A, "oiss")
    A(f"s_lshl_b32 s50, s{sRU5}, 15")
    A(f"s_lshl_b32 s51, s{sCU5}, 11")
    A("s_add_u32 s50, s50, s51")
    A(f"s_add_u32 s50, s50, {HF}")
    A(f"s_lshl_b32 s51, s{sRU5}, 4")
    A(f"s_add_u32 s51, s51, s{sCU5}")
    A("s_lshl_b32 s51, s51, 8")
    A(f"s_add_u32 s51, s51, {ST2}")
    A(f"v_and_b32 v{vSo}, 31, v0")
    A(f"v_lshlrev_b32 v{vSo}, 3, v{vSo}")
    G3 = [int(x) for x in E("G3", "0,2,4,8,12,16").split(",")]
    for n in range(NS):
        nx = reads(n + 2) if n + 2 < NS else []
        if n in G3:
            g = list(range(n, G3[G3.index(n) + 1]))
            VM.wait(g)
            sent_check(A, *group_check(g, [LO]))
            if n == 0: stamp(A, "oflag")
        A(f"s_waitcnt lgkmcnt({4 if n < NS-1 else 0})")
        c0 = 0 if n == 0 else None
        A(mfma(acc[0], WF[n % 3][0], AF[n], c0))
        for l in nx[0:2]: A(l)
        A(mfma(acc[1], WF[n % 3][1], AF[n], c0))
        for l in nx[2:4]: A(l)
    stamp(A, "a30")
    A("s_barrier")
    stamp(A, "b30")
    UN = AF[0]
    exchange(A, acc, UN, T, XCH3)
    a = acc[0]
    for q in range(4):
        A(f"s_waitcnt lgkmcnt({3-q})")
        A(pk_add(a + 4 * q, a + 4 * q, acc[1] + 4 * q))
        A(pk_add(a + 4 * q + 2, a + 4 * q + 2, acc[1] + 4 * q + 2))
    for r in range(8):
        A(f"v_cvt_pk_bf16_f32 v{RES+r}, v{a+2*r}, v{a+2*r+1}")
    for g in range(2): A(clamp(RES + 4 * g + 3))
    lstore(A, None, None, [f"buffer_store_dwordx4 {vr(RES+4*g,4)}, v{vL16}, {SR(S_WS)}, s50 offen offset:{1024*g}" for g in range(2)])
    sq = acc[1]
    for r in range(0, 16, 2):
        A(pk_mul(sq + r, a + r, a + r))
    for w in (8, 4, 2):
        for r in range(0, w, 2):
            A(pk_add(a + r, a + r, a + w + r))
            A(pk_add(sq + r, sq + r, sq + w + r))
    A(f"v_add_f32 v{T}, v{a}, v{a+1}")
    A(f"v_add_f32 v{T+1}, v{sq}, v{sq+1}")
    A(f"v_mov_b32 v{T+2}, v{T}")
    A(f"v_mov_b32 v{T+3}, v{T+1}")
    A("s_nop 1")
    A(f"v_permlane32_swap_b32 v{T}, v{T+2}")
    A(f"v_permlane32_swap_b32 v{T+1}, v{T+3}")
    A("s_nop 1")
    A(pk_add(T, T, T + 2))
    A(clamp(T + 1))
    lstore(A, None, None, [f"buffer_store_dwordx2 {vr(T,2)}, v{vSo}, {SR(S_WS)}, s51 offen"])
    stamp(A, "hpub")

def k4_ids(A, sRU, sC, sw):
    A(f"s_and_b32 s58, s{S_J}, 1")
    A(f"s_lshl1_add_u32 s{sRU}, s{S_XCD}, s58")
    A(f"s_lshl2_add_u32 s{sRU}, s{sRU}, s{sw}")
    A(f"s_lshr_b32 s{sC}, s{S_J}, 1")
def g_offsets(A, sRU, sC, sGo, t=58):
    A(f"s_mul_i32 s{t}, s{sRU}, {86*1024}")
    A(f"s_lshl_b32 s{t+1}, s{sC}, 11")
    A(f"s_add_u32 s{t}, s{t}, s{t+1}")
    for p in range(3): A(f"s_add_u32 s{sGo+p}, s{t}, {GF + 16*2048*p}")
    A(f"s_lshl_b32 s{t}, s{sC}, 6")
    A(f"s_add_u32 s{t}, s{t}, s{sRU}")
    A(f"s_lshl_b32 s{t}, s{t}, 11")
    A(f"s_add_u32 s{t}, s{t}, {(DUMMY - 11*64*2048) & 0xffffffff}")
    A(f"s_cmp_gt_u32 s{sC}, 10")
    A(f"s_cselect_b32 s{sGo+2}, s{t}, s{sGo+2}")

def c_k45(A):
    H = [16 + 4 * i for i in range(32)]
    acc = [[144, 160], [176, 192]]
    WF = [[208 + 8 * b + 4 * u for u in range(2)] for b in range(3)]
    CS, EE = 232, 240
    nm, var, rl = 248, 250, 252
    vWa = [249, 251, 253]; vCS, vSt = 254, 255
    sRU, sC, sAo, sSo, sGo, sCur, sG5 = 48, 49, 50, 51, 53, 56, 57
    k4_ids(A, sRU, sC, S_W)
    A(f"s_lshl_b32 s{sAo}, s{sRU}, 15")
    A(f"s_add_u32 s{sAo}, s{sAo}, {HF}")
    A(f"s_lshl_b32 s{sSo}, s{sRU}, 12")
    A(f"s_add_u32 s{sSo}, s{sSo}, {ST2}")
    VM = Q("vmcnt", A); LG = Q("lgkmcnt", A)
    LH = Ld(A, VM, sAo, sCur, "h"); LS = Ld(A, VM, sSo, None, "h"); LGn = Ld(A, VM, sG5, sCur, "g")
    SD = acc[1][0]
    HP, HE = int(E("HP", 12)), int(E("HE", 1))
    def hload(s): LH.load(("H", s), 4, H[s], vL16, 1024 * s)
    def hfirst():
        for s in range(HP): hload(s)
        stamp(A, "hiss")
    if HE: hfirst()
    g_offsets(A, sRU, sC, sGo)
    A(f"s_mul_i32 s{sG5}, s{sRU5}, {86*1024}")
    A(f"s_lshl_b32 s58, s{sKH5}, 10")
    A(f"s_add_u32 s{sG5}, s{sG5}, s58")
    A(f"s_add_u32 s{sG5}, s{sG5}, {GF}")
    t = CS
    A(f"v_lshrrev_b32 v{t}, 5, v0")
    A(f"v_lshlrev_b32 v{vCS}, 4, v{t}")
    A(f"v_add_u32 v{vCS}, {SC4}, v{vCS}")
    A(f"v_lshlrev_b32 v{vSt}, 11, v{t}")
    A(f"v_and_b32 v{t+1}, 31, v0")
    A(f"v_lshl_add_u32 v{vSt}, v{t+1}, 3, v{vSt}")
    A(f"v_lshlrev_b32 v{t}, 2, v{t}")
    A(f"v_bfe_u32 v{t+1}, v0, 2, 2")
    A(f"v_add_u32 v{t}, v{t}, v{t+1}")
    A(f"v_lshlrev_b32 v{t}, 6, v{t}")
    A(f"v_bfe_u32 v{t+1}, v0, 4, 1")
    A(f"v_mul_u32_u24 v{t+1}, 8224, v{t+1}")
    A(f"v_add_u32 v{t}, v{t}, v{t+1}")
    A(f"v_and_b32 v{t+1}, 3, v0")
    A(f"v_lshl_add_u32 v{vWa[0]}, v{t+1}, 3, v{t}")
    A(f"v_add_u32 v{vWa[1]}, 0x10000, v{vWa[0]}")
    A(f"v_add_u32 v{vWa[2]}, 0x20000, v{vWa[0]}")
    g64_addr(A, 6, 7, 208, 0)
    if not HE: hfirst()
    for i in range(8): LS.load("st", 2, SD + 2 * i, vSt, 256 * i)
    stamp(A, "a40")
    A("s_barrier")
    stamp(A, "b40")
    def reads(S):
        p, s = divmod(S, 32)
        out = []
        for u in range(2):
            for sec in range(2):
                o = slot13(4 * p + (s >> 3)) + (s & 7) * 1024 + sec * 512 + 32 * u
                out.append((("W", S), f"ds_read_b64_tr_b16 {vr(WF[S%3][u]+2*sec,2)}, v{vWa[o>>16]} offset:{o&0xffff}"))
        return out
    for tg, l in reads(0) + reads(1): LG.issue(tg, l)

    def V(s, c=4): return (c, lambda: None if E("NOFILL") else A(s))
    def stats_items():
        it = [(0, lambda: VM.wait(["st"]))]
        red = sent_reduce([SD + 2 * i + 1 for i in range(8)], vP + 1)
        for l in red[:-1]: it.append(V(l))
        it.append((8, lambda: (A(red[-1]), sent_branch(A, *group_check(["st"], [LH, LS]), t=vP + 1))))
        for w in (8, 4, 2):
            for r in range(w): it.append(V(f"v_add_f32 v{SD+r}, v{SD+r}, v{SD+w+r}"))
        for l in ln_final(SD, SD + 1, SD + 2, nm, var): it.append(V(l))
        it.append(V(f"v_rsq_f32 v{rl}, v{var}", 8))
        it.append(V("s_nop 0"))
        it.append(V(f"v_mul_f32 v{rl}, {f32(-LOG2E)}, v{rl}"))
        return it
    def cs_reads(U, tag):
        for g in range(2): LG.issue(tag, f"ds_read_b128 {vr(CS+4*g,4)}, v{vCS} offset:{128*U+32*g}")
        for g in range(2): LG.issue(tag, f"ds_read_b128 {vr(EE+4*g,4)}, v{vCS} offset:{128*U+64+32*g}")
    def epi_items(p, u):
        a = acc[p & 1][u]; U = 2 * p + u
        it = [(16, lambda: cs_reads(U, ("cs", U))), (int(E("CSW", 24)), lambda: None), (0, lambda: LG.wait([("cs", U)]))]
        for r in range(8): it.append(V(f"v_fma_f32 v{a+r}, v{CS+r}, v{nm}, v{a+r}"))
        for r in range(8): it.append(V(f"v_fma_f32 v{a+8+r}, v{EE+r}, v{nm}, v{a+8+r}"))
        for r in range(8):
            it.append(V(f"v_mul_f32 v{EE+r}, v{a+r}, v{rl}"))
        for r in range(8):
            it.append(V(f"v_exp_f32 v{EE+r}, v{EE+r}", 8))
            it.append(V(f"v_mul_f32 v{a+r}, v{a+r}, v{a+8+r}"))
        for r in range(8): it.append(V(f"v_fma_f32 v{EE+r}, v{EE+r}, v{var}, v{var}"))
        for r in range(8):
            it.append(V(f"v_rcp_f32 v{EE+r}, v{EE+r}", 8))
            if r >= 2: it.append(V(f"v_mul_f32 v{a+r-2}, v{a+r-2}, v{EE+r-2}"))
        it.append(V(f"v_mul_f32 v{a+6}, v{a+6}, v{EE+6}"))
        it.append(V(f"v_cvt_pk_bf16_f32 v{a+8}, v{a}, v{a+1}"))
        it.append(V(f"v_mul_f32 v{a+7}, v{a+7}, v{EE+7}"))
        for r in range(1, 4): it.append(V(f"v_cvt_pk_bf16_f32 v{a+8+r}, v{a+2*r}, v{a+2*r+1}"))
        it.append(V(clamp(a + 11)))
        it.append((8, lambda: lstore(A, VM, ("G", U), [f"buffer_store_dwordx4 {vr(a+8,4)}, v{vL16}, {SR(S_WS)}, s{sGo+p} offen offset:{1024*u}"])))
        return it
    AF = H + [144 + 4 * i for i in range(8)] + [232, 236, 240]
    def gload(n): LGn.load(("A", n), 4, AF[n], vL16, 2048 * n)
    BUD = [int(x) for x in E("BUD", "12,12,12").split(",")]
    G4 = [int(x) for x in E("G4", "0,2,4,8,12,16,20,24,28,32").split(",")]
    G5 = [int(x) for x in E("G5", "0,4,8,12,16,20,24,28,32,36,40,43").split(",")]
    GS0, GS1, GS2, GR2 = [int(x) for x in E("GS", "8,16,12,2").split(",")]
    vA5 = [[6, 249, 251], [7, 253, 255]]
    EI = int(E("EI", 0))
    for p in range(3):
        bud = BUD[p]
        if p == 0: items = [(int(E("STD", 26)) * bud, lambda: None)] + stats_items()
        else: items = [(2 * bud, lambda: None)] + epi_items(p - 1, 0) + epi_items(p - 1, 1)
        credit = 0
        ng = 0
        for s in range(32):
            S = 32 * p + s
            nx = reads(S + 2) if S + 2 < 96 else []
            if p and s == 0:
                stamp(A, f"a4{p}")
                A("s_barrier")
                stamp(A, f"b4{p}")
            if s % 8 == 0 and s: stamp(A, f"p{p}s{s}")
            chk = p == 0 and s in G4
            if chk:
                g = [("H", i) for i in range(s, G4[G4.index(s) + 1])]
                assert all(x in LH.pend for x in g)
                VM.wait(g)
                sent_check(A, *group_check(g, [LH, LS]))
                if s == 0: stamp(A, "hflag")
            LG.wait([("W", S)])
            for u in range(2):
                A(mfma(acc[p & 1][u], WF[S % 3][u], H[s], 0 if s == 0 else None))
                for tg, l in nx[2 * u:2 * u + 2]: LG.issue(tg, l)
                credit = min(credit + bud, bud) if items and items[0][0] <= 8 else credit + bud
                if p == 0 and u == 0 and HP + s < 32:
                    hload(HP + s); credit -= 4
                if p == 2 and s >= GS0 and ng < GS1 and ng < s:
                    gload(ng); ng += 1; credit -= 4
                while items and (items[0][0] <= credit or (s == 31 and u == 1)):
                    c, f = items.pop(0)
                    f(); credit -= c
        assert not items
    while ng < GS1:
        gload(ng); ng += 1
    C2 = acc[1][0]; E2 = acc[1][1]
    if not EI:
        cs_reads(4, ("cs", 4))
        for g in range(4): LG.issue(("cs", 5), f"ds_read_b128 {vr(C2+4*g,4)}, v{vCS} offset:{128*5+32*g}")
    for k in range(2):
        for w in (1, 2): A(f"v_add_u32 v{vA5[k][w]}, {w*65536}, v{vA5[k][0]}")
    stamp(A, "a43")
    A("s_barrier")
    stamp(A, "b43")
    def reads5(n):
        out = []
        for k in range(2):
            for sec in range(2):
                o = POS2[n] + sec * 1024
                out.append((("W5", n), f"ds_read_b64_tr_b16 {vr(WF[n%3][k]+2*sec,2)}, v{vA5[k][o>>16]} offset:{o&0xffff}"))
        return out
    if EI:
        for tg, l in reads5(0) + reads5(1): LG.issue(tg, l)
    items = epi_items(2, 0) + epi_items(2, 1) if EI else []
    bud = int(E("BUD5", 20)); credit = 0
    for u in range(0 if EI else 2):
        a = acc[0][u]; c = (CS, C2)[u]; e = (CS, E2)[u]
        LG.wait([("cs", 4 + u)])
        if u == 1:
            for tg, l in reads5(0) + reads5(1): LG.issue(tg, l)
        for r in range(0, 16, 2): A(pk_fma(a + r, c + r, nm, a + r, bc=(1,)))
        for r in range(0, 8, 2): A(pk_mul(e + r, a + r, rl, bc=(1,)))
        for r in range(8): A(f"v_exp_f32 v{e+r}, v{e+r}")
        for r in range(0, 8, 2): A(pk_mul(a + r, a + r, a + 8 + r))
        for r in range(0, 8, 2): A(pk_fma(e + r, e + r, var, var, bc=(1, 2)))
        for r in range(8): A(f"v_rcp_f32 v{e+r}, v{e+r}")
        A("s_nop 0")
        for r in range(0, 8, 2): A(pk_mul(a + r, a + r, e + r))
        for r in range(4): A(f"v_cvt_pk_bf16_f32 v{a+8+r}, v{a+2*r}, v{a+2*r+1}")
        A(clamp(a + 11))
        lstore(A, VM, ("G", 4 + u), [f"buffer_store_dwordx4 {vr(a+8,4)}, v{vL16}, {SR(S_WS)}, s{sGo+2} offen offset:{1024*u}"])
        for i in range(int(E("GF", 8))):
            if ng < 32: gload(ng); ng += 1
    stamp(A, "fin")
    acc5 = acc[1]
    NS = 43
    for n in range(NS):
        nx = reads5(n + 2) if n + 2 < NS else []
        if n in (21, 37):
            stamp(A, "a51" if n == 21 else "a52")
            A("s_barrier")
            stamp(A, "b51" if n == 21 else "b52")
        if n % 4 == 0: stamp(A, f"k5s{n}")
        if n in G5:
            g = [("A", i) for i in range(n, G5[G5.index(n) + 1])]
            assert all(x in LGn.pend for x in g)
            VM.wait(g)
            sent_check(A, *group_check(g, [LGn]))
        LG.wait([("W5", n)])
        for u in range(2):
            A(mfma(acc5[u], WF[n % 3][u], AF[n], 0 if n == 0 else None))
            for tg, l in nx[2 * u:2 * u + 2]: LG.issue(tg, l)
            credit = min(credit + bud, bud) if items and items[0][0] <= 8 else credit + bud
            if (ng < 32 or (n >= GS2 and ng < NS and not items)) and (GR2 == 2 or u == 0) and n >= int(E("GD", 0)):
                gload(ng); ng += 1; credit -= 4
            while items and items[0][0] <= credit:
                c, f = items.pop(0)
                f(); credit -= c
                if not items: stamp(A, "epi")
    T = H[8]
    stamp(A, "k5end")
    exchange(A, acc5, H[0], T, XCH5)
    A(f"v_and_b32 v{T}, 31, v0")
    A(f"v_lshlrev_b32 v{T+1}, 10, v{T}")
    A(f"v_lshrrev_b32 v{T}, 5, v0")
    A(f"v_lshl_add_u32 v{T+1}, v{T}, 4, v{T+1}")
    A(f"s_lshl_b32 s58, s{sRU5}, 15")
    A(f"s_lshl_b32 s59, s{sCU5}, 6")
    A("s_add_u32 s58, s58, s59")
    a = acc5[0]
    for q in range(4):
        A(f"s_waitcnt lgkmcnt({3-q})")
        A(pk_add(a + 4 * q, a + 4 * q, acc5[1] + 4 * q))
        A(pk_add(a + 4 * q + 2, a + 4 * q + 2, acc5[1] + 4 * q + 2))
    for r in range(8):
        A(f"v_cvt_pk_bf16_f32 v{RES+r}, v{a+2*r}, v{a+2*r+1}")
    A("s_nop 1")
    for g in range(2):
        A(f"v_permlane32_swap_b32 v{RES+4*g}, v{RES+4*g+2}")
        A(f"v_permlane32_swap_b32 v{RES+4*g+1}, v{RES+4*g+3}")
    A("s_nop 1")
    for g in range(2):
        A(f"buffer_store_dwordx4 {vr(RES+4*g,4)}, v{T+1}, {SR(S_OUT)}, s58 offen offset:{32*g}")
    if STAMP: A("s_waitcnt vmcnt(0)")
    dump_stamps(A)
    A("s_endpgm")

def mfma16(d, a, b, c=None):
    c = vr(d, 4) if c is None else "0"
    return f"v_mfma_f32_16x16x32_bf16 {vr(d,4)}, {vr(a,4)}, {vr(b,4)}, {c}"

def helper(A, fin):
    ROLE[0] = 1
    VM = Q("vmcnt", A); LG = Q("lgkmcnt", A)
    sJ, sMX, sMW = 50, 51, 52
    ONE = 44; ACC = 20
    vXg, vWg, vWa, vAdd = 8, 12, 15, 16
    t = 2
    A(f"s_sub_u32 s{sJ}, s{S_W}, 4")
    if E("PRI") == "1": A("s_setprio 3")
    A(f"s_lshl_b32 s53, s{sRB}, 17")
    A(f"s_lshl_b32 s54, s{sJ}, 15")
    A("s_add_u32 s53, s53, s54")
    A(f"v_lshrrev_b32 v{t}, 3, v0")
    A(f"v_lshlrev_b32 v{t}, 10, v{t}")
    A(f"v_add_u32 v{t}, s53, v{t}")
    A(f"v_and_b32 v{t+1}, 7, v0")
    A(f"v_lshrrev_b32 v{t+2}, 4, v0")
    A(f"v_xor_b32 v{t+1}, v{t+1}, v{t+2}")
    A(f"v_lshl_add_u32 v{vXg}, v{t+1}, 4, v{t}")
    A(f"v_xor_b32 v{vXg+1}, 64, v{vXg}")
    A(f"v_add_u32 v{vXg+1}, 0x2000, v{vXg+1}")
    A(f"v_add_u32 v{vXg+2}, 0x4000, v{vXg}")
    A(f"v_add_u32 v{vXg+3}, 0x4000, v{vXg+1}")
    A(f"s_mul_i32 s53, s{sJ}, {16*3072}")
    A(f"s_lshl_b32 s54, s{sCB}, 6")
    A("s_add_u32 s53, s53, s54")
    for r in range(3):
        A(f"v_add_u32 v{t}, {64*r}, v0")
        div12(A, t, t + 1, t + 2)
        A(f"v_mul_u32_u24 v{t+1}, 3072, v{t+1}")
        A(f"v_and_b32 v{t}, 3, v{t+2}")
        A(f"v_lshl_add_u32 v{t+1}, v{t}, 4, v{t+1}")
        A(f"v_lshrrev_b32 v{t+2}, 2, v{t+2}")
        A(f"v_lshl_add_u32 v{t+1}, v{t+2}, 10, v{t+1}")
        A(f"v_add_u32 v{vWg+r}, s53, v{t+1}")
    A(f"s_lshl_b32 s{sMX}, s{sJ}, 12")
    A(f"s_mul_i32 s{sMW}, s{sJ}, 3072")
    stamp(A, "h0")
    fin()
    stamp(A, "h1")
    ROT = int(E("ROT", 0))
    if ROT == 1: A(f"s_lshr_b32 s63, s{S_J}, 2")
    if ROT == 2: A(f"s_lshl_b32 s63, s{S_J}, 1")
    if ROT == 3:
        A(f"s_lshr_b32 s63, s{S_J}, 2")
        A(f"s_lshl_b32 s53, s{S_J}, 1")
        A("s_add_u32 s63, s63, s53")
    if ROT == 4: A(f"s_mov_b32 s63, s{S_XCD}")
    def issue(c):
        slot = c % 5
        if ROT:
            A(f"s_add_u32 s53, s63, {c}")
            A("s_and_b32 s53, s53, 7")
            A(f"s_mul_i32 s54, s53, {64*3072}")
            A("s_lshl_b32 s53, s53, 7")
        else:
            A(f"s_movk_i32 s53, {c*128}")
            A(f"s_mov_b32 s54, {c*64*3072}")
        for q in range(4):
            if not E("NOX"): dma(A, VM, ("c", c), vXg + q, S_X, "s53", sMX, XB + slot * 16384 + q * 1024)
            if q < 3 and not E("NOW"): dma(A, VM, ("c", c), vWg + q, S_WQ, "s54", sMW, WB + slot * 12288 + q * 1024)
    D1 = int(E("D1", 2))
    DL = int(E("DL", 1))
    for c in range(D1):
        issue(c)
        if c == 0: stamp(A, "iss")
        if BI and c == BI - 1: A("s_barrier")
    stamp(A, "iss3")
    k1_wa(A, vWa, t, t + 1)
    A(f"s_min_u32 s62, s{sJ}, 2")
    A("s_lshl_b32 s62, s62, 6")
    A(f"v_add_u32 v{vWa}, s62, v{vWa}")
    A("s_mov_b32 vcc_lo, 0x00100001")
    A("s_mov_b32 vcc_hi, 0x00100001")
    A(f"v_mov_b32 v{t}, 0")
    A(f"v_mov_b32 v{t+1}, 0x3f803f80")
    for r in range(4):
        A(f"v_cndmask_b32 v{ONE+r}, v{t}, v{t+1}, vcc")
    A("s_lshl_b32 s62, s62, 1")
    A(f"s_add_u32 s62, s62, {SC1}")
    A(f"v_lshl_add_u32 v{vAdd}, v0, 2, s62")
    A(f"v_lshrrev_b32 v{t}, 4, v0")
    A(f"v_min_u32 v{t}, 2, v{t}")
    A(f"v_mul_u32_u24 v{t}, {SEG}, v{t}")
    A(f"v_bfe_u32 v{t+1}, v0, 1, 3")
    A(f"v_mul_u32_u24 v{t+1}, {TILE}, v{t+1}")
    A(f"v_add_u32 v{t}, v{t}, v{t+1}")
    A(f"v_and_b32 v{t+1}, 1, v0")
    A(f"v_mul_u32_u24 v{t+1}, {VH}, v{t+1}")
    A(f"v_add_u32 v17, v{t}, v{t+1}")
    for r in range(4): A(f"v_mov_b32 v{24+r}, 0x3f803f80")
    for r in range(4): A(f"v_mov_b32 v{28+r}, {0x3f803f80 if E('ONES') else 0}")
    assert int(E("T0", 22)) >= 20
    vW13, vG64 = 40, 41
    sPair, sM1 = 57, 60
    A(f"v_lshrrev_b32 v{t}, 2, v0")
    A(f"v_mul_u32_u24 v{t}, 2752, v{t}")
    A(f"v_and_b32 v{t+1}, 3, v0")
    A(f"v_lshl_add_u32 v{t}, v{t+1}, 4, v{t}")
    A(f"s_mul_i32 s56, s{sJ}, {16*2752}")
    A(f"v_add_u32 v{vW13}, s56, v{t}")
    A(f"v_lshrrev_b32 v{t}, 3, v0")
    A(f"v_lshlrev_b32 v{t}, 10, v{t}")
    A(f"v_bfe_u32 v{t+1}, v0, 4, 1")
    A(f"v_lshlrev_b32 v{t+1}, 2, v{t+1}")
    A(f"v_and_b32 v{vG64}, 7, v0")
    A(f"v_xor_b32 v{t+1}, v{t+1}, v{vG64}")
    A(f"v_lshl_add_u32 v{t}, v{t+1}, 4, v{t}")
    A(f"s_lshr_b32 s56, s{S_J}, 2")
    A("s_lshl_b32 s56, s56, 7")
    A(f"s_lshl_b32 s{sM1}, s{sJ}, 13")
    A(f"s_add_u32 s56, s56, s{sM1}")
    A(f"v_add_u32 v{vG64}, s56, v{t}")
    A(f"s_lshl_b32 s{sM1}, s{sJ}, 10")
    A(f"s_lshr_b32 s56, s{S_J}, 1")
    for p in range(3):
        A(f"s_add_u32 s{sPair+p}, s56, {16*p}")
        if p == 2 and E("ZW", "1") == "0": A(f"s_min_u32 s{sPair+p}, s{sPair+p}, 42")
        A(f"s_lshl_b32 s{sPair+p}, s{sPair+p}, 6")
    if E("ZW", "1") == "1":
        A("s_cmp_gt_u32 s56, 10")
        A(f"s_cselect_b32 s{sPair+2}, 0x40000000, s{sPair+2}")
    vWr = [42, 43, 44]
    SEL = 32
    A(f"v_and_b32 v{t}, 1, v0")
    A(f"v_lshlrev_b32 v{t}, 4, v{t}")
    A(f"v_mov_b32 v{t+1}, 0x3f80")
    A(f"v_lshlrev_b32 v{t}, v{t}, v{t+1}")
    for r in range(8): A(f"v_mov_b32 v{SEL+r}, 0")
    for r in range(8):
        A(f"s_mov_b32 exec_lo, {hex((3 << 2*r) * 0x10001)}")
        A(f"s_mov_b32 exec_hi, {hex((3 << 2*r) * 0x10001)}")
        A(f"v_mov_b32 v{SEL+r}, v{t}")
    A("s_mov_b64 exec, -1")
    for r in range(4): A(f"v_mov_b32 v{4+r}, -1")
    A(f"v_add_u32 v{vWr[0]}, s{sM1}, v{vL16}")
    A(f"v_add_u32 v{vWr[1]}, 65536, v{vWr[0]}")
    A("s_waitcnt lgkmcnt(0)")
    make_T(A)
    CF = 48
    def touch0():
        A("s_lshl_b32 s61, s2, 2")
        A(f"s_add_u32 s61, s61, s{sJ}")
        A("s_mul_i32 s61, s61, 1408")
        A(f"v_lshlrev_b32 v{t}, {7 if E('T128') else 6}, v0")
        A(f"s_mov_b64 exec, {'0x7ff' if E('T128') else '0x3fffff'}")
        for n, sd in enumerate((S_WO, S_W1, S_W3, S_W2)):
            VM.issue("t0", f"buffer_load_dword v{28+n}, v{t}, {SR(sd)}, s61 offen")
        A("s_mov_b64 exec, -1")
    nis = D1
    if DL == 0:
        while nis < 3: issue(nis); nis += 1
    for c in range(8):
        VM.wait([("c", c)])
        stamp(A, f"h1a{c}")
        A("s_barrier")
        if c == 0: stamp(A, "b0")
        slot = c % 5
        for u in range(0 if E("NOCS") else 4):
            for sec in range(2):
                A(f"ds_read_b64_tr_b16 {vr(CF+4*u+2*sec,2)}, v{vWa} offset:{WB + slot*12288 + (16*u+4*sec)*192}")
        while nis <= c + 3 and nis < 8: issue(nis); nis += 1
        if c == int(E("T0", 22)): touch0()
        A("s_waitcnt lgkmcnt(0)")
        for u in range(4): A(mfma16(ACC, ONE, CF + 4 * u, 0 if c == 0 and u == 0 else None))
    sHead, sK, sKc = 53, 54, 55
    vKg, vVg, vKd, vVd = 8, 9, 10, 11
    attn_ids(A, sHead, 61)
    swap23(A, vKg, t)
    A(f"v_add_u32 v{vVg}, 0x200000, v{vL16}")
    A("s_mov_b32 exec_hi, 0")
    A(f"ds_write_b32 v{vAdd}, v{ACC}")
    A("s_mov_b32 exec_hi, -1")
    A(f"s_mul_i32 s61, s{sJ}, {TILE}")
    A(f"s_add_u32 s62, s61, {RING+KO}")
    A(f"v_add_u32 v{vKd}, s62, v{vL16}")
    A(f"v_lshrrev_b32 v{t}, 5, v0")
    A(f"v_lshlrev_b32 v{t}, 5, v{t}")
    A(f"s_add_u32 s62, s61, {RING}")
    A(f"v_add3_u32 v{vVd}, v{vL16}, v{t}, s62")
    A(f"s_lshl_b32 s{sK}, s{sHead}, 16")
    if E("XR", "1") == "1":
        A(f"s_lshr_b32 s61, s{S_J}, 2")
        A("s_lshl_b32 s61, s61, 13")
        A(f"s_add_u32 s{sK}, s{sK}, s61")
    A(f"s_lshl_b32 s61, s{sJ}, 10")
    A(f"s_add_u32 s{sK}, s{sK}, s61")
    A(f"s_add_u32 s{sK}, s{sK}, {QKV + 0x200000}")
    A("s_waitcnt lgkmcnt(0)")
    A("s_barrier")
    stamp(A, "bcs")
    A(f"ds_write_b128 v17, v[24:27] offset:{RING+512}")
    A(f"ds_write_b128 v17, v[28:31] offset:{RING+528}")
    A(f"v_add_u32 v{vWr[2]}, {2*65536}, v{vWr[0]}")
    quad = lambda q: 48 + 4 * q
    LK = Ld(A, VM, sK, sKc, "q", "s_xor_b32")
    def kvload(i):
        LK.load(("kv", i >> 1), 4, quad(20 + 2 * i), vKg, 4096 * i)
        LK.load(("kv", i >> 1), 4, quad(21 + 2 * i), vVg, 4096 * i)
    def kvcheck(segs):
        g = [("kv", s) for s in segs]
        VM.wait(g)
        if 0 in segs: stamp(A, "kvland")
        sent_check(A, *group_check(g, [LK]), t=t)
    def kvwrite(s):
        for i in (2 * s, 2 * s + 1):
            o = (s % 3) * SEG + 4 * (i & 1) * TILE
            A(f"ds_write_b128 v{vKd}, {vr(quad(20+2*i),4)} offset:{o}")
            A(f"ds_write_b128 v{vVd}, {vr(quad(21+2*i),4)} offset:{o}")
    def w13src(b, qh):
        p, kb = divmod(b, 4)
        A(f"s_add_u32 s61, s{sPair+p}, {(128*kb+64*qh)*2752}")
    def w13dma(b):
        for qh in range(2):
            w13src(b, qh)
            for mat in range(2):
                dma(A, VM, ("b", b), vW13, (S_W1, S_W3)[mat], "s61", sM1, slot13(b) + mat * 8224 + qh * 4096)
    BQ0 = {0: 20, 1: 24, 2: 28, 8: 32, 9: 20, 10: 24, 11: 36, 3: 32, 4: 40, 5: 20, 6: 24, 7: 36}
    BQ = lambda b, qh, mat: quad(BQ0[b] + 2 * qh + mat)
    def w13load(b):
        for qh in range(2):
            w13src(b, qh)
            for mat in range(2):
                VM.issue(("r", b), f"buffer_load_dwordx4 {vr(BQ(b,qh,mat),4)}, v{vW13}, {SR((S_W1, S_W3)[mat])}, s61 offen")
    SEL = 32
    first = set()
    def colsum(b):
        VM.wait([("r", b)])
        for qh in range(2):
            for mat in range(2):
                g = b // 4
                A(mfma16(ACC + 4 * g, BQ(b, qh, mat), SEL + 4 * mat, None if g in first else 0))
                first.add(g)
    W2Q = lambda n: quad(n - 23)
    def w2load(n):
        A(f"s_mov_b32 s61, {n*32768}")
        VM.issue(("w2", n), f"buffer_load_dwordx4 {vr(W2Q(n),4)}, v{vG64}, {SR(S_W2)}, s61 offen")
    def g64dma(tag, srdn, n, pos):
        A(f"s_mov_b32 s61, {n*32768}")
        dma(A, VM, tag, vG64, srdn, "s61", sM1, pos)
    nb = [0]
    def bar():
        A("s_waitcnt lgkmcnt(0)"); LG.q = []
        stamp(A, f"ha{nb[0]}")
        A("s_barrier")
        stamp(A, f"hb{nb[0]}")
        nb[0] += 1
    KV0 = int(E("KV0", 2))
    if E("PRI") == "2": A("s_setprio 3")
    if BKV: A("s_barrier")
    for i in range(KV0): kvload(i)
    stamp(A, "kviss")
    kvcheck([0])
    stamp(A, "kvflag")
    kvwrite(0)
    bar()
    stamp(A, "bai")
    KVS = int(E("KVS", 10)); KVC = int(E("KVC", 1)); PM = int(E("PM", 1))
    if PM:
        group_flag_addr(A, 17)
        VM.issue("flag", flag_load(18, 17))
    for i in range(KV0, KVS): kvload(i)
    if E("T0", "22") == "22": touch0()
    kvcheck([1])
    kvwrite(1)
    bar()
    for i in range(KVS, 16): kvload(i)
    if E("T0") == "24": touch0()
    kvcheck([2] if KVC else range(2, 8))
    kvwrite(2)
    if not PM:
        group_flag_addr(A, 17)
        VM.issue("flag", flag_load(18, 17))
    WOD = [int(x) for x in E("WOD", "0,2,3,3,2,2,4").split(",")]
    assert sum(WOD) == 16
    def wodma(i):
        for n in range(sum(WOD[:i-1]), sum(WOD[:i])): g64dma("wo", S_WO, n, WOB + 4096 * n)
    def pz(so, off): return f"buffer_store_dwordx4 v[4:7], v{vL16}, {SR(S_WS)}, s{so} offen offset:{off}"
    PO = int(E("PO", 2))
    def poisonO():
        A("s_lshl_b32 s61, s2, 2")
        A(f"s_add_u32 s61, s61, s{sJ}")
        A("s_lshl_b32 s61, s61, 11")
        A(f"s_add_u32 s61, s61, {OF}")
        for o in (0, 1024): VM.issue("poison", pz(61, o) + " sc1")
    def poison2():
        VM.wait(["flag"])
        A(f"v_cmp_ne_u64 vcc, s[{S_TX}:{S_TX+1}], v[18:19]")
        A(f"s_cmp_lg_u64 vcc, 0")
        A(f"s_cselect_b32 s{S_MODE}, 1, 0")
        if PO == 1: poisonO()
        g64_ids(A, 62, 63, 64, 65, sJ)
        A("s_lshl_b32 s61, s62, 4")
        A("s_add_u32 s61, s61, s64")
        A("s_lshl_b32 s62, s61, 11")
        A(f"s_add_u32 s62, s62, {HF}")
        A("s_lshl_b32 s61, s61, 8")
        A(f"s_add_u32 s61, s61, {ST2}")
        lstore(A, VM, "poison", [pz(62, 0), pz(62, 1024), "s_mov_b64 exec, 0xffff", pz(61, 0), "s_mov_b64 exec, -1"])
        A(f"s_and_b32 s61, s{S_J}, 1")
        A(f"s_lshl1_add_u32 s61, s{S_XCD}, s61")
        A(f"s_lshl2_add_u32 s61, s61, s{sJ}")
        A(f"s_lshr_b32 s62, s{S_J}, 1")
        g_offsets(A, 61, 62, 63, 67)
        lstore(A, VM, "poison", [pz(63 + p, o) for p in range(3) for o in (0, 1024)])
    if PM: poison2()
    wodma(1)
    def ldsw(tag, pos, r):
        LG.issue(tag, f"ds_write_b128 v{vWr[pos>>16]}, {vr(r,4)} offset:{pos&0xffff}")
    def blockw(b):
        VM.wait([("r", b)])
        for qh in range(2):
            for mat in range(2): ldsw(("bw", b), slot13(b) + mat * 8224 + qh * 4096, BQ(b, qh, mat))
    bar()
    if KVC: kvcheck([3])
    kvwrite(3)
    w13load(0); w13load(1)
    if not PM: poison2()
    if PO == 2: poisonO()
    W2A = int(E("W2A", 27))
    for n in range(23, W2A): w2load(n)
    wodma(2)
    bar()
    if KVC: kvcheck([4])
    kvwrite(4)
    colsum(0); colsum(1); blockw(0); blockw(1)
    w13load(2); w13load(8)
    for n in range(max(23, W2A), 31): w2load(n)
    if PO == 3: poisonO()
    wodma(3)
    bar()
    if KVC: kvcheck([5])
    kvwrite(5)
    VM.wait(["poison"])
    w13load(9); w13load(10); w13load(11)
    for n in range(31, 35): w2load(n)
    wodma(4)
    colsum(2); colsum(8)
    bar()
    A(f"s_mul_i32 s61, s2, {FS}")
    A(f"s_add_u32 s61, s61, {FL2}")
    with only(A, sJ, 0): flag_store(A, 61, t)
    if KVC: kvcheck([6])
    kvwrite(6)
    w13load(3); w13load(4)
    for n in range(35, 43): w2load(n)
    wodma(5)
    colsum(9); colsum(10); colsum(11)
    bar()
    if KVC: kvcheck([7])
    kvwrite(7)
    w13load(5); w13load(6); w13load(7)
    A(f"s_mul_i32 s61, s{sJ}, {192*1024}")
    A(f"s_lshr_b32 s56, s{S_J}, 2")
    A("s_lshl_b32 s56, s56, 7")
    A("s_add_u32 s61, s61, s56")
    A(f"v_lshlrev_b32 v{t}, 10, v0")
    for i in range(3):
        VM.issue("touch", f"buffer_load_dword v{4+i}, v{t}, {SR(S_W2)}, s61 offen")
        if i < 2: A("s_add_u32 s61, s61, 65536")
    wodma(6)
    colsum(3); colsum(4)
    bar()
    flag_addr(A, 17, sJ, FL2)
    VM.issue("flag", flag_load(18, 17, SCF))
    if E("OT"):
        A(f"s_and_b32 s61, s{S_J}, 3")
        A(f"s_lshl2_add_u32 s61, s{S_XCD}, s61")
        A(f"s_lshl2_add_u32 s61, s61, s{sJ}")
        A("s_lshl_b32 s61, s61, 14")
        A(f"s_lshr_b32 s62, s{S_J}, 2")
        A("s_lshl_b32 s62, s62, 7")
        A("s_add_u32 s61, s61, s62")
        A(f"v_lshlrev_b32 v{t}, 10, v0")
        A("s_mov_b64 exec, 0xffff")
        VM.issue("touch", f"buffer_load_dword v7, v{t}, {SR(S_OUT)}, s61 offen")
        A("s_mov_b64 exec, -1")
    wodma(7)
    colsum(5); colsum(6); colsum(7)
    A(f"s_mul_i32 s61, s{sJ}, 3072")
    A(f"s_add_u32 s61, s61, {PSTG}")
    A(f"v_add_u32 v{t}, s61, v{vL16}")
    A("s_nop 6")
    for p in range(3): A(f"ds_write_b128 v{t}, {vr(ACC+4*p,4)} offset:{1024*p}")
    VM.drain()
    stamp(A, "x3")
    flag_check(A, 18, 17)
    A(f"s_add_u32 s61, s2, s{sJ}")
    with only(A, 61, 0): flag_store(A, 61, t)
    bar()
    bar()
    stamp(A, "be")
    blockw(2)
    blockw(3); blockw(4)
    A(f"s_min_u32 s61, s{sJ}, 2")
    A("s_lshl_b32 s62, s61, 10")
    A(f"s_add_u32 s62, s62, {PSTG}")
    A(f"v_add_u32 v{t}, s62, v{vL16}")
    for j in range(4): A(f"ds_read_b128 {vr(ACC+4*j,4)}, v{t} offset:{3072*j}")
    A(f"v_bfe_u32 v{t}, v0, 3, 1")
    A(f"v_lshlrev_b32 v{t}, 6, v{t}")
    A(f"v_and_b32 v{t+1}, 7, v0")
    A(f"v_lshl_add_u32 v{t}, v{t+1}, 2, v{t}")
    A("s_lshl_b32 s62, s61, 8")
    A(f"s_add_u32 s62, s62, {SC4}")
    A(f"v_add_u32 v{t}, s62, v{t}")
    A("s_waitcnt lgkmcnt(0)"); LG.q = []
    for q in range(4):
        A(f"v_add_f32 v{ACC+q}, v{ACC+q}, v{ACC+4+q}")
        A(f"v_add_f32 v{ACC+8+q}, v{ACC+8+q}, v{ACC+12+q}")
    for q in range(4): A(f"v_add_f32 v{ACC+q}, v{ACC+q}, v{ACC+8+q}")
    for sw in ("v_permlane32_swap_b32", "v_permlane16_swap_b32"):
        for q in range(4): A(f"v_mov_b32 v{ACC+4+q}, v{ACC+q}")
        A("s_nop 1")
        for q in range(4): A(f"{sw} v{ACC+q}, v{ACC+4+q}")
        A("s_nop 1")
        for q in range(4): A(f"v_add_f32 v{ACC+q}, v{ACC+q}, v{ACC+4+q}")
    for q in range(4): A(f"ds_write_b32 v{t}, v{ACC+q} offset:{128*(q>>1) + 32*(q&1)}")
    stamp(A, "cs1")
    bar()
    A("s_barrier")
    for b in (5, 6, 7): blockw(b)
    stamp(A, "cs2")
    bar()
    stamp(A, "w41")
    A("s_barrier")
    def w2w(n):
        VM.wait([("w2", n)])
        ldsw("w2", POS2[n], W2Q(n))
    for b in (8, 9, 10, 11): w13dma(b)
    for n in (0, 1, 2, 3, 20, 21, 22): g64dma("w2d", S_W2, n, POS2[n])
    VM.wait([("b", 11)])
    stamp(A, "w42")
    A("s_barrier")
    for n in range(4, 20): g64dma("w2d", S_W2, n, POS2[n])
    VM.wait(["w2d"])
    stamp(A, "w43")
    A("s_barrier")
    for n in range(23, 39): w2w(n)
    stamp(A, "w51")
    bar()
    for n in range(39, 43): w2w(n)
    bar()
    A("s_barrier")
    dump_stamps(A)

def descriptor():
    return f""".section .rodata,"a"
.p2align 6
.amdhsa_kernel {KNAME}
  .amdhsa_next_free_vgpr 256
  .amdhsa_next_free_sgpr 102
  .amdhsa_accum_offset 256
  .amdhsa_group_segment_fixed_size 0
  .amdhsa_kernarg_size 80
  .amdhsa_user_sgpr_count 2
  .amdhsa_user_sgpr_kernarg_segment_ptr 1
  .amdhsa_system_sgpr_workgroup_id_x 1
.end_amdhsa_kernel
"""

def main():
    ref = open(f"cdna_kernels/{NAME}.s.ref").read().splitlines()
    head = []
    for l in ref:
        if l.startswith("; Override") or "@launch" in l or l.startswith("; grid="): continue
        if not l.startswith(";"): break
        head.append(l)
    head.append(f"; @launch grid=(256,1,1) block=(512,1,1) lds={LDS_ALL}")
    A = Asm()
    A.raw('.amdgcn_target "amdgcn-amd-amdhsa--gfx950"')
    A.raw(".text")
    fin = prologue(A)
    A(f"s_cmp_lt_u32 s{S_W}, 4")
    A("s_cbranch_scc1 L_compute")
    helper(A, fin)
    A.label("L_end")
    A("s_endpgm")
    A.label("L_compute")
    ROLE[0] = 0
    c_k1(A, fin)
    c_attn(A)
    c_k3(A)
    c_k45(A)
    A.label("L_ool")
    i = 0
    while i < len(OOL):
        OOL[i](A); i += 1
    A.label("L_last")
    A("s_endpgm")
    if STAMP: head.append("; STS " + ",".join(STS[0]) + " " + ",".join(STS[1]))
    out = "\n".join(head) + "\n" + A.text() + descriptor()
    path = sys.argv[1] if len(sys.argv) > 1 else f"cdna_kernels/{NAME}.s"
    open(path, "w").write(out)

if __name__ == "__main__":
    main()
```
